```python
import torch

def _softmax(x, axis=-1):
    return torch.softmax(x, dim=axis)
def _gelu(x):
    return torch.nn.functional.gelu(x, approximate="tanh")
def _silu(x):
    return torch.nn.functional.silu(x)
def _sigmoid(x):
    return torch.sigmoid(x)
def _layernorm(x, axis=-1, eps=1e-5):
    m = x.mean(dim=axis, keepdim=True)
    v = x.var(dim=axis, keepdim=True, unbiased=False)
    return (x - m) / torch.sqrt(v + eps)
def _scatter_add(tgt, idx, src, axis=0):
    return tgt.clone().index_add_(axis, idx, src)
def _segment_sum(src, seg, n):
    out = torch.zeros((n,) + src.shape[1:], dtype=src.dtype)
    return out.index_add_(0, seg, src)
def _pad(x, pw):
    flat = tuple(v for pair in reversed(pw) for v in pair)
    return torch.nn.functional.pad(x, flat)

kernel_name = 'parallel_sum__linear_attn_block__dense_activation_mish__prompt'

def setup_inputs():

    _w = (lambda a: (lambda t: t.to(torch.bfloat16) if t.is_floating_point() else t)(torch.as_tensor(a)))
    def _A_setup():
        B, S, D = 1, 2048, 512
        return {
            "x": _w((lambda *s: torch.randn(*s, dtype=torch.bfloat16) * 0.05)(B, S, D)),
            "wqkv": _w((lambda *s: torch.randn(*s, dtype=torch.bfloat16) * 0.1)(D, 3 * D)),
            "wo": _w((lambda *s: torch.randn(*s, dtype=torch.bfloat16) * 0.05)(D, D)),
        }
    _A_in = _A_setup()

    def _B_setup():
        B, S, D, F = 1, 2048, 512, 1376
        return {
            "x": _w((lambda *s: torch.randn(*s, dtype=torch.bfloat16) * 0.05)(B, S, D)),
            "w1": _w((lambda *s: torch.randn(*s, dtype=torch.bfloat16) * 0.8)(D, F) * (D ** -0.5)),
            "b1": _w((lambda *s: torch.randn(*s, dtype=torch.bfloat16) * 0.4)(F)),
            "w2": _w((lambda *s: torch.randn(*s, dtype=torch.bfloat16) * 0.1)(F, D) * (F ** -0.5)),
        }
    _B_in = _B_setup()

    return {
        "A_x": _A_in["x"],
        "A_wqkv": _A_in["wqkv"],
        "A_wo": _A_in["wo"],
        "B_x": _B_in["x"],
        "B_w1": _B_in["w1"],
        "B_b1": _B_in["b1"],
        "B_w2": _B_in["w2"],
    }

def reference(A_x, A_wqkv, A_wo, B_x, B_w1, B_b1, B_w2):
    def _A_ref(x, wqkv, wo):
        B, S, D = x.shape
        H = 32; Dh = D // H
        qkv = (lambda x, *d: x.permute(*d))((x @ wqkv).reshape(B, S, 3, H, Dh), 2, 0, 3, 1, 4)
        q, k, v = qkv[0], qkv[1], qkv[2]
        phi = lambda t: torch.where(t > 0, t + 1, torch.exp(t)) + 1e-6
        pq, pk = phi(q), phi(k)
        kv = torch.einsum("bhsd,bhse->bhde", pk, v)
        z = torch.einsum("bhsd->bhd", pk)
        num = torch.einsum("bhqd,bhde->bhqe", pq, kv)
        den = torch.einsum("bhqd,bhd->bhq", pq, z)[..., None] + 1e-6
        o = num / den
        return (lambda x, *d: x.permute(*d))(o, 0, 2, 1, 3).reshape(B, S, D) @ wo

    def _B_ref(x, w1, b1, w2):
        h = torch.einsum("bsd,df->bsf", x, w1) + b1
        sp = torch.log1p(torch.exp(-torch.abs(h))) + torch.where(h > 0, h, torch.zeros_like(h))
        act = h * torch.tanh(sp)
        return torch.einsum("bsf,fd->bsd", act, w2)

    x = A_x
    xn = _layernorm(x, axis=-1)
    return x + _A_ref(xn, A_wqkv, A_wo) + _B_ref(xn, B_w1, B_b1, B_w2)
```

```python
import re


class I:
    __slots__ = ("t", "tag")

    def __init__(self, t, tag=None):
        self.t = t
        self.tag = tag

    def __repr__(self):
        return self.t


class W:
    __slots__ = ("kind", "tag")

    def __init__(self, kind, tag=None):
        self.kind = kind
        self.tag = tag


class Reset:
    __slots__ = ("kind",)

    def __init__(self, kind):
        self.kind = kind


def is_vm(t):
    return t.startswith("buffer_") or t.startswith("global_")


def is_ds(t):
    return t.startswith("ds_")


def is_smem(t):
    return t.startswith("s_load") or t.startswith("s_memrealtime") or t.startswith("s_memtime")


def resolve_waits(seq):
    out = []
    q = {"vm": [], "lg": []}
    smem_out = False
    mx = {"vm": 63, "lg": 15}
    peak = {"vm": 0, "lg": 0}
    for it in seq:
        if isinstance(it, Reset):
            q[it.kind] = []
            if it.kind == "lg":
                smem_out = False
            continue
        if isinstance(it, W):
            k = it.kind
            name = "vmcnt" if k == "vm" else "lgkmcnt"
            if it.tag is None:
                if q[k] or (k == "lg" and smem_out):
                    out.append(I(f"s_waitcnt {name}(0)"))
                q[k] = []
                if k == "lg":
                    smem_out = False
                continue
            idx = [n for n, tg in enumerate(q[k]) if tg == it.tag]
            if not idx:
                continue
            n = len(q[k]) - idx[-1] - 1
            if k == "lg" and smem_out:
                n = 0
            n = min(n, mx[k])
            out.append(I(f"s_waitcnt {name}({n})"))
            q[k] = q[k][len(q[k]) - n:] if n else []
            if k == "lg" and n == 0:
                smem_out = False
            continue
        t = it.t
        if is_vm(t):
            q["vm"].append(it.tag)
            peak["vm"] = max(peak["vm"], len(q["vm"]))
            assert len(q["vm"]) <= 63, "more than 63 VMEM ops outstanding at: " + t
        elif is_ds(t):
            q["lg"].append(it.tag)
            peak["lg"] = max(peak["lg"], len(q["lg"]))
        elif is_smem(t):
            smem_out = True
        m = re.match(r"s_waitcnt (.*)", t)
        if m:
            for nm, k in (("vmcnt", "vm"), ("lgkmcnt", "lg")):
                mm = re.search(nm + r"\((\d+)\)", m.group(1))
                if mm:
                    n = int(mm.group(1))
                    q[k] = q[k][len(q[k]) - n:] if n and n < len(q[k]) else ([] if n == 0 else q[k])
                    if k == "lg" and n == 0:
                        smem_out = False
        out.append(it)
    return out, peak


_REG = re.compile(r"^(-?)(?:abs\()?([vas])(?:(\d+)|\[(\d+):(\d+)\])\)?$")


def regs_of(tok):
    tok = tok.strip()
    if tok in ("vcc", "exec", "m0", "scc"):
        return {tok}
    m = _REG.match(tok)
    if not m:
        return set()
    f = m.group(2)
    if m.group(3) is not None:
        return {f + m.group(3)}
    return {f + str(n) for n in range(int(m.group(4)), int(m.group(5)) + 1)}


TRANS = ("v_exp_f32", "v_log_f32", "v_rcp_f32", "v_rsq_f32", "v_sqrt_f32", "v_sin_f32", "v_cos_f32")


class Info:
    __slots__ = ("op", "w", "r", "cls", "passes", "srcc", "ab", "dpp", "states", "stdata", "lds_dma", "trans")


def decode(t):
    inf = Info()
    parts = t.split(None, 1)
    op = parts[0]
    rest = parts[1] if len(parts) > 1 else ""
    ops = [x.strip() for x in rest.split(",")] if rest else []
    if ops:
        last = ops[-1].split()
        ops[-1] = last[0] if last else ""
        mods = " ".join(last[1:])
    else:
        mods = ""
    clean = []
    for o in ops:
        clean.append(o)
    ops = clean
    inf.op = op
    inf.w = set()
    inf.r = set()
    inf.cls = "other"
    inf.passes = 0
    inf.srcc = set()
    inf.ab = set()
    inf.dpp = "dpp" in op or "row_" in rest
    inf.states = 1
    inf.stdata = set()
    inf.lds_dma = False
    inf.trans = False
    R = [regs_of(o.split()[0]) if o else set() for o in ops]
    if op == "s_nop":
        inf.states = int(ops[0]) + 1
    elif op.startswith("v_mfma"):
        inf.cls = "mfma"
        inf.passes = 8 if "32x32" in op else 4
        inf.w = R[0]
        inf.ab = R[1] | R[2]
        inf.srcc = R[3]
        inf.r = inf.ab | inf.srcc
    elif op.startswith("v_"):
        inf.cls = "valu"
        base = op.replace("_e64", "").replace("_e32", "").replace("_dpp", "")
        inf.trans = base in TRANS
        if op.startswith("v_cmp"):
            inf.w = R[0]
            inf.r = set().union(*R[1:])
        elif op.startswith("v_permlane"):
            inf.w = R[0] | R[1]
            inf.r = R[0] | R[1]
        elif op.startswith(("v_add_co", "v_sub_co", "v_addc_co")):
            inf.w = R[0] | R[1]
            inf.r = set().union(*R[2:])
        else:
            inf.w = R[0]
            inf.r = set().union(*R[1:]) if len(R) > 1 else set()
            if base.startswith(("v_fmac", "v_dot2c")) or inf.dpp:
                inf.r |= R[0]
    elif op.startswith("ds_"):
        inf.cls = "ds"
        if "read" in op:
            inf.w = R[0]
            inf.r = set().union(*R[1:])
        else:
            inf.r = set().union(*R)
    elif op.startswith("buffer_"):
        inf.cls = "vm"
        if re.search(r"\blds\b", rest):
            inf.lds_dma = True
            inf.r = set().union(*R) | {"m0"}
        elif "load" in op:
            inf.w = R[0]
            inf.r = set().union(*R[1:])
        else:
            inf.r = set().union(*R)
            if op.endswith(("x3", "x4")):
                inf.stdata = R[0]
    elif op.startswith("s_"):
        inf.cls = "salu"
        if op.startswith(("s_cmp", "s_bitcmp", "s_cbranch", "s_branch", "s_waitcnt", "s_barrier", "s_endpgm", "s_sleep", "s_setprio")):
            inf.r = set().union(*R) if R else set()
        else:
            inf.w = R[0] if R else set()
            inf.r = set().union(*R[1:]) if len(R) > 1 else set()
    return inf


def need_states(p, c):
    n = 0
    vw = {x for x in p.w if x[0] in "va" and x != "vcc"}
    sw = {x for x in p.w if x[0] == "s" or x == "vcc"}
    if p.cls == "valu":
        if c.cls == "mfma" and vw & c.r:
            n = max(n, 2)
        if c.cls == "valu":
            if sw & c.r:
                n = max(n, 4 if c.op.startswith(("v_readlane", "v_writelane")) else 2)
            if vw & c.r:
                if c.op.startswith(("v_readlane", "v_readfirstlane")):
                    n = max(n, 1)
                if c.dpp or c.op.startswith("v_permlane"):
                    n = max(n, 2)
                if p.trans and not c.trans:
                    n = max(n, 1)
        if c.cls == "vm" and sw & c.r:
            n = max(n, 5)
        if c.cls == "salu" and sw & c.r and not c.op.startswith("s_cbranch"):
            n = max(n, 2)
    if p.cls == "mfma":
        far = 12 if p.passes == 8 else 8
        if c.cls == "mfma":
            if p.w & c.ab:
                n = max(n, far)
            if p.w & c.srcc:
                if not (p.w == c.srcc and p.passes == c.passes):
                    n = max(n, far - 2)
            elif p.w & c.w:
                n = max(n, far)
        elif c.cls in ("valu", "ds", "vm"):
            if p.w & (c.r | c.w):
                n = max(n, far)
            if c.cls == "valu" and p.srcc & c.w:
                n = max(n, 7 if p.passes == 8 else 3)
    if p.cls == "salu" and "m0" in p.w and c.lds_dma:
        n = max(n, 1)
    if p.cls == "vm" and p.stdata & c.w:
        n = max(n, 2 if c.cls == "valu" else 1)
    return n


def pad_hazards(seq):
    out = []
    hist = []
    pos = 0
    nops = 0
    for it in seq:
        t = it.t
        if t.endswith(":") or t.startswith((";", ".")):
            out.append(it)
            continue
        c = decode(t)
        need = 0
        for p, pp in hist:
            d = pos - pp - 1
            n = need_states(p, c)
            if n > d:
                need = max(need, n - d)
        while need > 0:
            k = min(need, 16)
            out.append(I(f"s_nop {k - 1}"))
            pos += k
            need -= k
            nops += 1
        out.append(it)
        hist.append((c, pos + c.states - 1))
        pos += c.states
        hist = [(p, pp) for p, pp in hist if pos - pp < 24]
    return out, nops


def interleave(main, fill, anchor=lambda it: isinstance(it, I) and it.t.startswith("v_mfma"), start=0):
    anchors = [n for n, it in enumerate(main) if anchor(it)][start:]
    if not fill:
        return list(main)
    if not anchors:
        return list(main) + [x for g in fill for x in g]
    place = {}
    for k, g in enumerate(fill):
        a = anchors[min(len(anchors) - 1, k * len(anchors) // len(fill))]
        place.setdefault(a, []).extend(g)
    out = []
    for n, it in enumerate(main):
        out.append(it)
        out.extend(place.get(n, []))
    return out


def finalize(seq):
    seq, peak = resolve_waits(seq)
    seq, nops = pad_hazards(seq)
    return [it.t for it in seq], peak, nops
```

```python
import sys
sys.path.insert(0, "dev")
from asmfw import I, W, Reset, interleave, finalize

NAME = "parallel_sum__linear_attn_block__dense_activation_mish__prompt"

WS_E = 0x0
WS_STAT = 0x1000
WS_ZF = 0x8000
WS_KVF = 0x9000
WS_ACTF = 0xA000
WS_OF = 0xB000
WS_KV = 0x10000
WS_ACT = 0x100000
WS_STAMP = 0x1000000
WS_BYTES = 0x2000000
TAGC = 0x5BD1E995
OOB = 0x7FFF0000
SPIN = 200000

SLOT0 = 8192
SLOT = [8192, 40960, 73728]
BBASE = 98304
SC_RS = 0
SC_CS1 = 1024
SC_CS2 = 3072
SC_KV = 4096
RED = 98304


def bpos(b):
    return 0 if b == 7 else b + 1


def pc_addr(n):
    if n >= 38:
        n -= 38
    elif n == 21:
        return 69632
    elif n >= 22:
        return BBASE + (n - 22) * 4096
    if n < 6:
        return 73728 + n * 4096
    if n < 14:
        return 8192 + (n - 6) * 4096
    return 40960 + (n - 14) * 4096


NREGW = 21

sW = "s3"
SRD = dict(x="s[4:7]", qkv="s[8:11]", w1="s[12:15]", wo="s[16:19]", w2="s[20:23]", b1="s[24:27]", out="s[28:31]", ws="s[32:35]")
sI, sJ, sP, sRH, sCH, sT, sR2, sC2, sSig = "s36", "s37", "s38", "s39", "s40", "s41", "s42", "s43", "s44"
sSET0 = "s[46:47]"
sRHM = "s[48:49]"
sW8K, sW2K, sW1K = "s50", "s51", "s52"
sXO, sWO = "s53", "s54"
sA, sB, sC, sD = "s55", "s56", "s57", "s58"
sActB = "s59"
sCnt = "s60"
sE = "s61"
sM0, sM1 = "s62", "s63"
STAMP0 = 84

vLane, vL16, vL4, vMH0, vL0 = "v1", "v2", "v3", "v4", "v5"
vW2s, vWos = "v6", "v7"
vXs = [8, 9, 10, 11]
vWs = [12, 13, 14, 15]
vBs = [16, 17]
vXrA = [18, 19, 20, 21]
vXrB = [22, 23, 24, 25]
vWrA = [26, 27]
vWrB = [28, 29]
vBr = [30, 31]
vSel = 32
vCs = [36, 40, 44]
vWf = [[48, 52], [56, 60]]
vAcc1 = lambda G, gg: 64 + 32 * G + 16 * gg
vAcc2 = lambda gg: 128 + 16 * gg
vSt = [160, 162]
vZf = 164
vB1 = [165, 166]
vP32 = 167
vXa = [168, 172]
vWa = 176
vRs = [180, 182]
vC12 = 184
vEL = 186
vNE = 188
vRsA = [190, 206]
vT = 222
vP2r = [[8, 9], [10, 11], [12, 13]]
vAo = [64, 80]
vXr = 244


def v(n, k=1):
    return f"v{n}" if k == 1 else f"v[{n}:{n + k - 1}]"


def a(n, k=1):
    return f"a{n}" if k == 1 else f"a[{n}:{n + k - 1}]"


def act_reg(n):
    return v(96 + 4 * n, 4) if n < 37 else a(168 + 4 * (n - 37), 4)


def f2u(x):
    import struct
    return "0x%08x" % struct.unpack("<I", struct.pack("<f", x))[0]


LOG2E = 1.4426950408889634
LN2 = 0.6931471805599453


class Gen:
    def __init__(self, opt):
        self.opt = opt
        self.slow = []
        self.nst = 0
        self.uid = 0

    def stamp(self, S, name):
        if not self.opt.get("stamps"):
            return
        idx = self.names.setdefault(name, len(self.names))
        r = 64 + 2 * idx
        assert r <= 100
        S.append(I(f"s_memrealtime s[{r}:{r + 1}]"))
        S.append(W("lg"))

    def label(self, base):
        self.uid += 1
        return f"L_{base}_{self.uid}"

    def prologue(self):
        o = self.opt
        S = []
        e = lambda t, tag=None: S.append(I(t, tag))
        e("s_cmp_ge_u32 s2, 256")
        e("s_cbranch_scc1 L_end")
        if o.get("stamps"):
            e("s_memrealtime s[100:101]")
        e("s_load_dwordx16 s[64:79], s[0:1], 0")
        e("s_load_dwordx2 s[80:81], s[0:1], 72")
        e(f"v_lshrrev_b32 v6, 6, v0")
        e(f"v_and_b32 {vLane}, 63, v0")
        e(f"v_readfirstlane_b32 {sW}, v6")
        ra = o.get("ra", 8)
        cb = 32 // ra
        xc = 16 // cb
        lg = lambda x: x.bit_length() - 1
        e(f"s_and_b32 {sA}, s2, 7")
        e(f"s_lshr_b32 {sB}, s2, 3")
        e(f"s_lshr_b32 {sI}, {sA}, {lg(xc)}")
        e(f"s_lshl_b32 {sI}, {sI}, {lg(ra)}")
        e(f"s_lshr_b32 {sC}, {sB}, {lg(cb)}")
        e(f"s_add_u32 {sI}, {sI}, {sC}")
        e(f"s_and_b32 {sJ}, {sA}, {xc - 1}")
        e(f"s_lshl_b32 {sJ}, {sJ}, {lg(cb)}")
        e(f"s_and_b32 {sC}, {sB}, {cb - 1}")
        e(f"s_add_u32 {sJ}, {sJ}, {sC}")
        e(f"s_lshr_b32 {sP}, {sJ}, 1")
        rb2 = o.get("rb2", 4)
        cb2 = 32 // rb2
        xc2 = 8 // cb2
        e(f"s_lshr_b32 {sR2}, {sA}, {lg(xc2)}")
        e(f"s_lshl_b32 {sR2}, {sR2}, {lg(rb2)}")
        e(f"s_lshr_b32 {sC}, {sB}, {lg(cb2)}")
        e(f"s_add_u32 {sR2}, {sR2}, {sC}")
        e(f"s_and_b32 {sC2}, {sA}, {xc2 - 1}")
        e(f"s_lshl_b32 {sC2}, {sC2}, {lg(cb2)}")
        e(f"s_and_b32 {sC}, {sB}, {cb2 - 1}")
        e(f"s_add_u32 {sC2}, {sC2}, {sC}")
        rot = o.get("rot", "ip")
        if rot == "ip":
            e(f"s_add_u32 {sSig}, {sI}, {sP}")
        elif rot == "i2j":
            e(f"s_lshl_b32 {sSig}, {sJ}, 1")
            e(f"s_add_u32 {sSig}, {sSig}, {sI}")
        else:
            e(f"s_mov_b32 {sSig}, 0")
        e(f"s_and_b32 {sRH}, {sW}, 1")
        e(f"s_lshr_b32 {sCH}, {sW}, 1")
        e(f"s_lshl_b32 {sW8K}, {sW}, 13")
        e(f"s_lshl_b32 {sW2K}, {sW}, 11")
        e(f"s_lshl_b32 {sW1K}, {sW}, 10")
        e(f"v_lshlrev_b32 {vL16}, 4, {vLane}")
        e(f"v_lshrrev_b32 v240, 3, {vLane}")
        e(f"v_and_b32 v241, 7, {vLane}")
        e("v_bfe_u32 v242, v240, 1, 1")
        e("v_lshlrev_b32 v242, 2, v242")
        e("v_xor_b32 v242, v242, v241")
        e("v_lshlrev_b32 v242, 4, v242")
        e(f"s_lshl_b32 {sC}, {sI}, 7")
        e(f"s_lshl_b32 {sD}, {sW}, 5")
        e(f"s_add_u32 {sC}, {sC}, {sD}")
        e(f"v_add_u32 v243, {sC}, v240")
        e("v_lshlrev_b32 v243, 10, v243")
        e("v_lshrrev_b32 v244, 1, v240")
        e("v_xor_b32 v244, v244, v241")
        e("v_xor_b32 v245, 4, v244")
        e(f"v_lshl_add_u32 {v(vXs[0])}, v244, 4, v243")
        e(f"v_lshl_add_u32 {v(vXs[1])}, v245, 4, v243")
        e(f"v_add_u32 {v(vXs[1])}, {7168}, {v(vXs[1])}")
        e(f"v_add_u32 {v(vXs[2])}, {2 * 7168}, {v(vXs[0])}")
        e(f"v_add_u32 {v(vXs[3])}, {2 * 7168}, {v(vXs[1])}")
        e(f"s_lshl_b32 {sD}, {sW}, 4")
        e(f"v_add_u32 v246, {sD}, v240")
        e("v_mul_u32_u24 v247, 3072, v246")
        e("v_add_u32 v247, v247, v242")
        e("v_mul_u32_u24 v248, 2752, v246")
        e("v_add_u32 v248, v248, v242")
        e(f"s_lshl_b32 {sA}, {sI}, 7")
        e(f"s_lshl_b32 {sB}, {sJ}, 3")
        e(f"s_add_u32 {sA}, {sA}, {sB}")
        e(f"s_lshl_b32 {sB}, {sW}, 1")
        e(f"s_add_u32 {sM0}, {sA}, {sB}")
        e(f"s_lshl_b32 {sM1}, {sM0}, 10")
        S.append(W("lg"))
        for nm, p, n in (("x", 64, 2048 * 1024), ("qkv", 66, 512 * 3072), ("w1", 72, 512 * 2752), ("ws", 80, WS_BYTES),
                         ("b1", 74, 2752), ("wo", 68, 512 * 1024), ("w2", 76, 1376 * 1024), ("out", 78, 2048 * 1024)):
            b = int(SRD[nm][2:].split(":")[0])
            e(f"s_mov_b32 s{b}, s{p}")
            e(f"s_and_b32 s{b + 1}, s{p + 1}, 0xffff")
            e(f"s_mov_b32 s{b + 2}, {n}")
            e(f"s_mov_b32 s{b + 3}, 0x20000")
            if nm == "x":
                e(f"buffer_load_dwordx4 v[224:227], {vL16}, {SRD['x']}, {sM1} offen", "strow")
                e(f"buffer_load_dwordx4 v[228:231], {vL16}, {SRD['x']}, {sM1} offen offset:1024", "strow")
            if nm == "ws":
                e(f"s_load_dword {sE}, s[80:81], {WS_E}")
        e(f"s_bitcmp1_b32 {sJ}, 0")
        e("s_cbranch_scc1 L_typeB")
        return S

    def slab_off(self, s, stride):
        return [I(f"s_add_u32 {sXO}, {sSig}, {s}"), I(f"s_and_b32 {sXO}, {sXO}, 7"),
                I(f"s_mul_i32 {sWO}, {sXO}, {64 * stride}"), I(f"s_lshl_b32 {sXO}, {sXO}, 7")]

    def dma_a(self, s, typ):
        srd, stride = (SRD["qkv"], 3072) if typ == "A" else (SRD["w1"], 2752)
        slot = SLOT[s % 3]
        tag = f"a{s}"
        G = []
        g0 = self.slab_off(s, stride) + [I(f"s_add_u32 m0, {sW8K}, {slot}")]
        for pp in range(4):
            off = f" offset:{1024 * pp}" if pp else ""
            ins = I(f"buffer_load_dwordx4 {v(vXs[pp])}, {SRD['x']}, {sXO} offen{off} lds", tag)
            G.append((g0 if pp == 0 else []) + [ins])
        for g in range(2):
            G.append([I(f"s_add_u32 m0, {sW8K}, {slot + 4096 + 2048 * g}"),
                      I(f"buffer_load_dwordx4 {v(vWs[2 * g])}, {srd}, {sWO} offen lds", tag)])
            G.append([I(f"buffer_load_dwordx4 {v(vWs[2 * g + 1])}, {srd}, {sWO} offen offset:1024 lds", tag)])
        return G

    def dma_b(self, b, typ):
        srd, stride = (SRD["w1"], 2752) if typ == "A" else (SRD["qkv"], 3072)
        tag = f"b{b}"
        pre = [I(f"s_add_u32 {sWO}, {sSig}, {b}"), I(f"s_and_b32 {sWO}, {sWO}, 7"), I(f"s_mul_i32 {sWO}, {sWO}, {64 * stride}"),
               I(f"s_add_u32 m0, {sW2K}, {BBASE + 8192 * bpos(b)}")]
        return [pre + [I(f"buffer_load_dwordx4 {v(vBs[0])}, {srd}, {sWO} offen lds", tag)],
                [I(f"buffer_load_dwordx4 {v(vBs[1])}, {srd}, {sWO} offen offset:1024 lds", tag)]]

    def dma_w2(self, n):
        if n < 43:
            srd, vv, so = SRD["w2"], vW2s, n * 16384
        else:
            srd, vv, so = SRD["wo"], vWos, (n - 43) * 16384
        return [I(f"s_add_u32 m0, {sW1K}, {pc_addr(n)}"), I(f"s_mov_b32 {sWO}, {so}"),
                I(f"buffer_load_dwordx4 {vv}, {srd}, {sWO} offen lds", f"c{n}")]

    def reads1(self, T):
        s, tau = divmod(T, 4)
        slot = s % 3
        xr = vXrA if slot < 2 else vXrB
        wr = vWrA if slot < 2 else vWrB
        so = 32768 if slot == 1 else 0
        buf = T & 1
        tag = f"r{T}"
        R = []
        for g in range(2):
            for u in range(2):
                R.append(I(f"ds_read_b64_tr_b16 {v(vWf[buf][g] + 2 * u, 2)}, {v(wr[tau & 1])} offset:{so + (tau & 2) * 8192 + 2048 * g + 512 * u}", tag))
            R.append(I(f"ds_read_b128 {a(8 * T + 4 * g, 4)}, {v(xr[tau])} offset:{so + 8192 * g}", tag))
        return R

    def mfma1(self, T, typ):
        buf = T & 1
        M = []
        for g in range(2):
            for gg in range(2):
                acc = v(vAcc1(g, gg), 16)
                c = "0" if T == 0 else acc
                xf, wf = a(8 * T + 4 * gg, 4), v(vWf[buf][g], 4)
                A_, B_ = (xf, wf) if typ == "A" else (wf, xf)
                M.append(I(f"v_mfma_f32_32x32x16_bf16 {acc}, {A_}, {B_}, {c}"))
            if (T & 1) == 0:
                cs = v(vCs[g], 4)
                M.append(I(f"v_mfma_f32_16x16x32_bf16 {cs}, {v(vSel, 4)}, {v(vWf[buf][g], 4)}, {'0' if T == 0 else cs}"))
        return M

    def reads2(self, T):
        b, tau = divmod(T, 4)
        buf = T & 1
        tag = f"q{T}"
        return [I(f"ds_read_b64_tr_b16 {v(vWf[buf][0] + 2 * u, 2)}, {v(vBr[tau & 1])} offset:{8192 * bpos(b) + (tau & 2) * 2048 + 512 * u}", tag)
                for u in range(2)]

    def mfma2(self, T):
        buf = T & 1
        M = []
        for gg in range(2):
            acc = v(vAcc2(gg), 16)
            M.append(I(f"v_mfma_f32_32x32x16_bf16 {acc}, {v(vWf[buf][0], 4)}, {a(8 * T + 4 * gg, 4)}, {'0' if T == 0 else acc}"))
        if (T & 1) == 0:
            cs = v(vCs[2], 4)
            M.append(I(f"v_mfma_f32_16x16x32_bf16 {cs}, {v(vSel, 4)}, {v(vWf[buf][0], 4)}, {'0' if T == 0 else cs}"))
        return M

    def setup_rest(self, typ):
        S = []
        e = lambda t, tag=None: S.append(I(t, tag))
        e(f"v_lshlrev_b32 {vL4}, 2, {vLane}")
        e(f"v_cmp_gt_u32 vcc, 32, {vLane}")
        e(f"v_and_b32 v232, 31, {vLane}")
        e(f"v_cndmask_b32 {vMH0}, 0, -1, vcc")
        e(f"v_lshrrev_b32 v233, 5, {vLane}")
        e(f"v_cmp_eq_u32 vcc, 0, {vLane}")
        e(f"v_mov_b32 v234, {OOB}")
        e(f"v_lshlrev_b32 {v(vP32)}, 2, v232")
        e(f"v_cndmask_b32 {vL0}, v234, 0, vcc")
        e(f"v_and_b32 v234, 16, {vLane}")
        e(f"v_cmp_eq_u32 {sSET0}, 0, v234")
        e(f"s_cmp_eq_u32 {sRH}, 1")
        e(f"s_cselect_b64 {sRHM}, -1, 0")
        e("v_bfe_u32 v234, v232, 1, 3")
        e("v_xor_b32 v234, v234, v233")
        e(f"s_lshl_b32 {sA}, {sRH}, 14")
        e(f"s_add_u32 {sA}, {sA}, {SLOT0}")
        e(f"v_lshl_add_u32 v235, v232, 7, {sA}")
        for tau in range(4):
            e(f"s_xor_b32 {sB}, {sRH}, {tau}")
            e(f"s_lshl_b32 {sB}, {sB}, 1")
            e(f"v_xor_b32 v236, {sB}, v234")
            e(f"v_lshl_add_u32 {v(vXrA[tau])}, v236, 4, v235")
            e(f"v_add_u32 {v(vXrB[tau])}, 65536, {v(vXrA[tau])}")
        e(f"v_bfe_u32 v239, {vLane}, 2, 2")
        e(f"v_bfe_u32 v238, {vLane}, 4, 1")
        e("v_lshlrev_b32 v238, 5, v238")
        e(f"v_and_b32 v236, 3, {vLane}")
        e("v_lshl_add_u32 v238, v236, 3, v238")
        e("v_lshrrev_b32 v236, 1, v239")
        e(f"v_xor_b32 v236, {sCH}, v236")
        e("v_lshl_add_u32 v236, v236, 6, v238")
        e("v_lshl_add_u32 v237, v233, 3, v239")
        e("v_lshl_add_u32 v237, v237, 7, v236")
        e(f"s_lshl_b32 {sA}, {sRH}, 13")
        e(f"s_add_u32 {sB}, {sA}, {SLOT0 + 4096}")
        e(f"s_sub_u32 {sC}, {SLOT0 + 4096 + 8192}, {sA}")
        e(f"v_add_u32 {v(vWrA[0])}, {sB}, v237")
        e(f"v_add_u32 {v(vWrA[1])}, {sC}, v237")
        e(f"v_add_u32 {v(vWrB[0])}, 65536, {v(vWrA[0])}")
        e(f"v_add_u32 {v(vWrB[1])}, 65536, {v(vWrA[1])}")
        e(f"s_lshl_b32 {sA}, {sRH}, 11")
        e(f"s_add_u32 {sB}, {sA}, {BBASE}")
        e(f"s_sub_u32 {sC}, {BBASE + 2048}, {sA}")
        e(f"v_add_u32 {v(vBr[0])}, {sB}, v237")
        e(f"v_add_u32 {v(vBr[1])}, {sC}, v237")
        e(f"v_bfe_u32 v234, {vLane}, 2, 1")
        e(f"v_bfe_u32 v235, {vLane}, 4, 1")
        e("v_cmp_eq_u32 vcc, v234, v235")
        e(f"v_mov_b32 {v(vNE + 1)}, 0x3f803f80")
        for r in range(4):
            e(f"v_cndmask_b32 {v(vSel + r)}, 0, {v(vNE + 1)}, vcc")
        e(f"s_lshl_b32 {sA}, {sRH}, 3")
        e(f"v_add_u32 v234, {sA}, v240")
        e("v_lshl_add_u32 v234, v234, 10, v242")
        e(f"s_lshl_b32 {sA}, {sC2}, 7")
        e(f"s_mul_i32 {sB}, {sCH}, {688 * 1024}")
        e(f"s_add_u32 {sB}, {sB}, {sA}")
        e(f"v_add_u32 {vW2s}, {sB}, v234")
        e(f"s_lshl_b32 {sB}, {sCH}, 18")
        e(f"s_add_u32 {sB}, {sB}, {sA}")
        e(f"v_add_u32 {vWos}, {sB}, v234")
        e(f"v_mov_b32 {v(vC12)}, {f2u(-2 * LN2)}")
        e(f"v_mov_b32 {v(vC12 + 1)}, {f2u(LN2)}")
        e(f"v_mov_b32 {v(vEL)}, {f2u(1e-6)}")
        e(f"v_mov_b32 {v(vEL + 1)}, {f2u(LOG2E)}")
        e(f"v_mov_b32 {v(vNE)}, {f2u(-1e-6 * LOG2E)}")
        for r in (vXa[0] + 2, vXa[0] + 3, vXa[1] + 2, vXa[1] + 3, vWa + 2, vWa + 3):
            e(f"v_mov_b32 {v(r)}, 0")
        e(f"s_lshl_b32 {sA}, {sI}, 1")
        e(f"s_add_u32 {sA}, {sA}, {sRH}")
        e(f"s_lshl_b32 {sActB}, {sA}, 18")
        e(f"s_add_u32 {sActB}, {sActB}, {WS_ACT}")
        return S

    def stats_produce(self):
        S = []
        e = lambda t, tag=None: S.append(I(t, tag))
        S.append(W("vm", "strow"))
        base = [224, 228]
        X = [96, 104]
        acc = [112, 113]
        for k in range(2):
            for d in range(4):
                e(f"v_lshlrev_b32 {v(X[k] + 2 * d)}, 16, {v(base[k] + d)}")
                e(f"v_and_b32 {v(X[k] + 2 * d + 1)}, 0xffff0000, {v(base[k] + d)}")
        for k in range(2):
            t = 116 + 4 * k
            e(f"v_pk_add_f32 {v(t, 2)}, {v(X[k], 2)}, {v(X[k] + 2, 2)}")
            e(f"v_pk_add_f32 {v(t + 2, 2)}, {v(X[k] + 4, 2)}, {v(X[k] + 6, 2)}")
            e(f"v_pk_add_f32 {v(t, 2)}, {v(t, 2)}, {v(t + 2, 2)}")
            e(f"v_add_f32 {v(acc[k])}, {v(t)}, {v(t + 1)}")

        def reduce():
            for m in ("row_ror:8 row_mask:0xf", "row_ror:4 row_mask:0xf", "row_ror:2 row_mask:0xf", "row_ror:1 row_mask:0xf",
                      "row_bcast:15 row_mask:0xa", "row_bcast:31 row_mask:0xc"):
                for k in range(2):
                    e(f"v_add_f32_dpp {v(acc[k])}, {v(acc[k])}, {v(acc[k])} {m} bank_mask:0xf")
            for k in range(2):
                e(f"v_mul_f32 {v(acc[k])}, {f2u(1.0 / 512)}, {v(acc[k])}")
        reduce()
        sm = [sA, sB]
        for k in range(2):
            e(f"v_readlane_b32 {sm[k]}, {v(acc[k])}, 63")
        for k in range(2):
            e(f"v_mov_b32 {v(114 + k)}, {v(acc[k])}")
        for k in range(2):
            for d in range(8):
                e(f"v_subrev_f32 {v(X[k] + d)}, {sm[k]}, {v(X[k] + d)}")
        for k in range(2):
            t = 116 + 4 * k
            e(f"v_pk_mul_f32 {v(t, 2)}, {v(X[k], 2)}, {v(X[k], 2)}")
            for d in (2, 4, 6):
                e(f"v_pk_fma_f32 {v(t, 2)}, {v(X[k] + d, 2)}, {v(X[k] + d, 2)}, {v(t, 2)}")
            e(f"v_add_f32 {v(acc[k])}, {v(t)}, {v(t + 1)}")
        reduce()
        e(f"v_cvt_pk_bf16_f32 v116, {v(acc[0])}, {v(acc[1])}")
        e("v_lshlrev_b32 v117, 16, v116")
        e("v_and_b32 v118, 0xffff0000, v116")
        e(f"v_add_f32 v117, {f2u(1e-5)}, v117")
        e(f"v_add_f32 v118, {f2u(1e-5)}, v118")
        e("v_cvt_pk_bf16_f32 v116, v117, v118")
        e("v_lshlrev_b32 v117, 16, v116")
        e("v_and_b32 v118, 0xffff0000, v116")
        e("v_sqrt_f32 v117, v117")
        e("v_sqrt_f32 v118, v118")
        S.append(W("lg"))
        e(f"s_add_u32 {sT}, {sE}, {TAGC}")
        e("v_cvt_pk_bf16_f32 v120, v114, v117")
        e(f"v_mov_b32 v121, {sT}")
        e("v_cvt_pk_bf16_f32 v122, v115, v118")
        e(f"v_mov_b32 v123, {sT}")
        e(f"v_cmp_eq_u32 vcc, 63, {vLane}")
        e(f"v_mov_b32 v124, {OOB}")
        e(f"s_lshl_b32 {sA}, {sM0}, 3")
        e(f"s_add_u32 {sA}, {sA}, {WS_STAT}")
        e("v_cndmask_b32 v124, v124, 0, vcc")
        e(f"buffer_store_dwordx4 v[120:123], v124, {SRD['ws']}, {sA} offen sc1")
        return S

    def stat_loads(self, typ):
        G = []
        pre = [I(f"s_lshl_b32 {sM0}, {sI}, 1"), I(f"s_add_u32 {sM0}, {sM0}, {sRH}"), I(f"s_lshl_b32 {sM0}, {sM0}, 9"),
               I(f"s_add_u32 {sM0}, {sM0}, {WS_STAT}"), I(f"v_lshlrev_b32 v255, 1, {v(vP32)}")]
        G.append(pre + [I(f"buffer_load_dwordx2 {v(vSt[0], 2)}, v255, {SRD['ws']}, {sM0} offen sc1", "stat")])
        G.append([I(f"buffer_load_dwordx2 {v(vSt[1], 2)}, v255, {SRD['ws']}, {sM0} offen offset:256 sc1", "stat")])
        if typ == "A":
            G.append([I(f"s_lshl_b32 {sM1}, {sP}, 1"), I(f"s_add_u32 {sM1}, {sM1}, {sCH}"), I(f"s_lshl_b32 {sM1}, {sM1}, 7"),
                      I(f"s_add_u32 {sM1}, {sM1}, {WS_ZF}"), I("v_mov_b32 v254, 0"),
                      I(f"buffer_load_dword {v(vZf)}, v254, {SRD['ws']}, {sM1} offen sc1", "stat")])
        return G

    def stat_check(self, typ):
        S = []
        e = lambda t, tag=None: S.append(I(t, tag))
        slow, back = self.label("slow"), self.label("back")

        def cmp(ee):
            ee(f"v_cmp_ne_u32 vcc, {sT}, {v(vSt[0] + 1)}")
            ee(f"v_cmp_ne_u32 s[56:57], {sT}, {v(vSt[1] + 1)}")
            ee("s_nop 1")
            ee("s_or_b64 vcc, vcc, s[56:57]")
            if typ == "A":
                ee(f"v_cmp_ne_u32 s[56:57], {sT}, {v(vZf)}")
                ee("s_nop 1")
                ee("s_or_b64 vcc, vcc, s[56:57]")
        S.append(W("vm", "stat"))
        cmp(e)
        e(f"s_cbranch_vccnz {slow}")
        e(f"{back}:")
        L = self.slow
        ee = lambda t: L.append(t)
        ee(f"{slow}:")
        ee(f"s_mov_b32 {sCnt}, {SPIN}")
        ee(f"{slow}_l:")
        ee(f"buffer_load_dwordx2 {v(vSt[0], 2)}, v255, {SRD['ws']}, {sM0} offen sc1")
        ee(f"buffer_load_dwordx2 {v(vSt[1], 2)}, v255, {SRD['ws']}, {sM0} offen offset:256 sc1")
        if typ == "A":
            ee(f"buffer_load_dword {v(vZf)}, v254, {SRD['ws']}, {sM1} offen sc1")
        ee("s_waitcnt vmcnt(0)")
        cmp(ee)
        ee(f"s_cbranch_vccz {back}")
        ee(f"s_sub_u32 {sCnt}, {sCnt}, 1")
        ee(f"s_cbranch_scc0 {slow}_l")
        ee(f"s_branch {back}")
        for gg in range(2):
            g = v(vSt[gg])
            e(f"v_and_b32 v222, 0xffff, {g}")
            e(f"v_and_b32 v223, 0xffff0000, {g}")
            e("v_xor_b32 v222, 0x8000, v222")
            e(f"v_rcp_f32 {v(vRs[gg])}, v223")
            e("v_lshl_or_b32 v222, v222, 16, v222")
            e(f"v_lshrrev_b32 v223, 16, {g}")
            e(f"v_and_b32 {v(vXa[gg])}, {vMH0}, v222")
            e(f"v_and_b32 {v(vXa[gg] + 1)}, {vMH0}, v223")
            e(f"v_mul_f32 {v(vRs[gg] + 1)}, {v(vEL + 1)}, {v(vRs[gg])}")
        return S

    def poll(self, S, line_s, vaddr, counted=None):
        e = lambda t, tag=None: S.append(I(t, tag))
        lp, out = self.label("poll"), self.label("pout")
        e(f"s_mov_b32 {sCnt}, {SPIN}")
        e(f"{lp}:")
        e(f"buffer_load_dword v253, {vaddr}, {SRD['ws']}, {line_s} offen sc1")
        e(f"s_sub_u32 {sCnt}, {sCnt}, 1")
        e("s_waitcnt vmcnt(0)")
        e(f"v_cmp_ne_u32 vcc, {sT}, v253")
        e(f"s_cbranch_scc1 {out}")
        e(f"s_cbranch_vccnz {lp}")
        e(f"{out}:")

    def poll_check(self, S, line_s, vaddr, reg, tag):
        e = lambda t, tg=None: S.append(I(t, tg))
        slow, back = self.label("slow"), self.label("back")
        S.append(W("vm", tag))
        e(f"v_cmp_ne_u32 vcc, {sT}, {reg}")
        e(f"s_cbranch_vccnz {slow}")
        e(f"{back}:")
        L = self.slow
        L += [f"{slow}:", f"s_mov_b32 {sCnt}, {SPIN}", f"{slow}_l:",
              f"buffer_load_dword {reg}, {vaddr}, {SRD['ws']}, {line_s} offen sc1", "s_waitcnt vmcnt(0)",
              f"v_cmp_ne_u32 vcc, {sT}, {reg}", f"s_cbranch_vccz {back}", f"s_sub_u32 {sCnt}, {sCnt}, 1",
              f"s_cbranch_scc0 {slow}_l", f"s_branch {back}"]

    def flag_store(self, S, line_expr):
        for t in line_expr:
            S.append(I(t))
        S.append(I(f"v_mov_b32 v252, {sT}"))
        S.append(I(f"buffer_store_dword v252, {vL0}, {SRD['ws']}, {sA} offen sc1"))

    def cs_write(self, regs, area, stride):
        S = [I(f"s_mul_i32 {sA}, {sW}, {stride}"), I(f"v_add_u32 v250, {sA}, {vL4}"),
             I(f"s_xor_b32 {sA}, {sW}, 1"), I(f"s_mul_i32 {sA}, {sA}, {stride}"), I(f"v_add_u32 v251, {sA}, {vL4}")]
        for k, r in enumerate(regs):
            S.append(I(f"ds_write_b32 v250, {v(r)} offset:{area + 256 * k}"))
        return S

    def cs_read(self, regs, area):
        return [I(f"ds_read_b32 {v(r + 1)}, v251 offset:{area + 256 * k}", "cs") for k, r in enumerate(regs)]

    def aug(self, cs, b1, accs, typ_normal):
        S = []
        e = lambda t, tag=None: S.append(I(t, tag))
        e(f"v_add_f32 {v(cs)}, {v(cs)}, {v(cs + 1)}")
        e(f"v_cvt_pk_bf16_f32 {v(cs + 1)}, {v(cs)}, {v(cs)}")
        e(f"v_and_b32 {v(cs + 1)}, 0xffff0000, {v(cs + 1)}")
        e(f"v_sub_f32 {v(cs + 2)}, {v(cs)}, {v(cs + 1)}")
        e(f"v_cvt_pk_bf16_f32 {v(cs)}, {v(cs + 1)}, {v(cs + 2)}")
        e(f"v_mov_b32 {v(cs + 1)}, {v(b1) if b1 is not None else 0}")
        e(f"v_mov_b32 {v(cs + 2)}, 0")
        e(f"v_mov_b32 {v(cs + 3)}, 0")
        for gg, acc in enumerate(accs):
            xa, wa = v(vXa[gg], 4), v(cs, 4)
            A_, B_ = (xa, wa) if typ_normal else (wa, xa)
            e(f"v_mfma_f32_32x32x16_bf16 {v(acc, 16)}, {A_}, {B_}, {v(acc, 16)}")
        return S

    def mish(self, acc, gg, tile_expr):
        S = []
        e = lambda t, tag=None: S.append(I(t, tag))
        E, U, P = vT, vT + 8, vT + 16
        for half in range(2):
            b = acc + 8 * half
            po = P + 4 * half
            for q in range(0, 8, 4):
                for r in (q, q + 2):
                    e(f"v_pk_mul_f32 {v(E + r, 2)}, {v(b + r, 2)}, {v(vRs[gg], 2)} op_sel:[0,1] op_sel_hi:[1,1]")
                for r in range(q, q + 4):
                    e(f"v_exp_f32 {v(U + r)}, {v(E + r)}")
                for r in (q, q + 2):
                    e(f"v_pk_add_f32 {v(U + r, 2)}, {v(U + r, 2)}, 1.0 op_sel_hi:[1,0]")
                for r in (q, q + 2):
                    e(f"v_pk_fma_f32 {v(U + r, 2)}, {v(U + r, 2)}, {v(U + r, 2)}, 1.0 op_sel_hi:[1,1,0]")
                for r in range(q, q + 4):
                    e(f"v_rcp_f32 {v(U + r)}, {v(U + r)}")
                for r in (q, q + 2):
                    e(f"v_pk_fma_f32 {v(U + r, 2)}, {v(U + r, 2)}, {v(vC12, 2)}, {v(vC12, 2)} op_sel:[0,0,1] op_sel_hi:[1,0,1]")
                for r in (q, q + 2):
                    e(f"v_pk_mul_f32 {v(E + r, 2)}, {v(E + r, 2)}, {v(U + r, 2)}")
                for r in (q, q + 2):
                    e(f"v_cvt_pk_bf16_f32 {v(po + r // 2)}, {v(E + r)}, {v(E + r + 1)}")
            if half == 0:
                for t in tile_expr:
                    e(t)
            off = " offset:1024" if half else ""
            e(f"buffer_store_dwordx4 {v(po, 4)}, {vL16}, {SRD['ws']}, {sD} offen{off} sc1", "actst")
        return S

    def act_addr(self, gg, tconst):
        return [f"s_mul_i32 {sD}, {sP}, 6", f"s_add_u32 {sD}, {sD}, {sCH}", f"s_lshl_b32 {sD}, {sD}, 11",
                f"s_add_u32 {sD}, {sD}, {sActB}", f"s_add_u32 {sD}, {sD}, {gg * 131072 + tconst * 1024}"]

    def phi(self, acc, dst, rs_fn):
        S = []
        e = lambda t, tag=None: S.append(I(t, tag))
        Tt, U = vT, vT + 8
        for q in range(0, 16, 4):
            o = q & 7
            for r in (0, 2):
                op, sel, selh = rs_fn(q + r)
                e(f"v_pk_fma_f32 {v(Tt + o + r, 2)}, {v(acc + q + r, 2)}, {op}, {v(vEL, 2)} op_sel:[0,{sel},0] op_sel_hi:[1,{selh},0]")
            for r in (0, 2):
                e(f"v_pk_fma_f32 {v(U + o + r, 2)}, {v(Tt + o + r, 2)}, {v(vEL, 2)}, {v(vNE, 2)} op_sel:[0,1,0] op_sel_hi:[1,1,0]")
            for r in range(4):
                e(f"v_exp_f32_e64 {v(U + o + r)}, {v(U + o + r)} clamp")
            for r in range(4):
                e(f"v_max_f32 {v(Tt + o + r)}, {v(Tt + o + r)}, {v(vEL)}")
            for r in (0, 2):
                e(f"v_pk_add_f32 {v(Tt + o + r, 2)}, {v(Tt + o + r, 2)}, {v(U + o + r, 2)}")
            for r in (0, 2):
                e(f"v_cvt_pk_bf16_f32 {v(dst + (q + r) // 2)}, {v(Tt + o + r)}, {v(Tt + o + r + 1)}")
        return S

    def p2_setup(self):
        S = []
        e = lambda t, tag=None: S.append(I(t, tag))
        e(f"v_bfe_u32 v14, {vLane}, 2, 2")
        e(f"v_lshrrev_b32 v15, 5, {vLane}")
        e("v_lshl_add_u32 v15, v15, 2, v14")
        e("v_lshlrev_b32 v15, 7, v15")
        e(f"v_bfe_u32 v16, {vLane}, 4, 1")
        e("v_lshl_add_u32 v15, v16, 5, v15")
        e(f"v_and_b32 v16, 3, {vLane}")
        e("v_lshl_add_u32 v15, v16, 3, v15")
        e(f"s_lshl_b32 {sA}, {sCH}, 11")
        e(f"s_add_u32 {sA}, {sA}, {SLOT0}")
        e(f"v_add_u32 v15, {sA}, v15")
        e("v_lshrrev_b32 v14, 1, v14")
        e(f"v_xor_b32 v14, {sCH}, v14")
        e(f"v_lshl_add_u32 {v(vP2r[0][0])}, v14, 6, v15")
        e("v_xor_b32 v14, 1, v14")
        e(f"v_lshl_add_u32 {v(vP2r[0][1])}, v14, 6, v15")
        for rg in (1, 2):
            for t in range(2):
                e(f"v_add_u32 {v(vP2r[rg][t])}, {65536 * rg}, {v(vP2r[0][t])}")
        return S

    def p2_reads(self, n, dst_fn, tag):
        ad = pc_addr(n) - SLOT0
        rg, off = divmod(ad, 65536)
        R = []
        for t in range(2):
            for u in range(2):
                R.append(I(f"ds_read_b64_tr_b16 {dst_fn(t, u)}, {v(vP2r[rg][t])} offset:{off + 1024 * u}", tag))
        return R

    def w_to_regs(self):
        G = []
        for n in range(NREGW):
            R = self.p2_reads(n, lambda t, u: a(8 * n + 4 * t + 2 * u, 2), "wreg")
            G.append(R[:2])
            G.append(R[2:])
        return G

    def xres_loads(self):
        S = []
        e = lambda t, tag=None: S.append(I(t, tag))
        e(f"s_lshl_b32 {sA}, {sR2}, 1")
        e(f"s_add_u32 {sA}, {sA}, {sRH}")
        e(f"s_lshl_b32 {sA}, {sA}, 15")
        e(f"s_lshl_b32 {sB}, {sC2}, 1")
        e(f"s_add_u32 {sB}, {sB}, {sCH}")
        e(f"s_lshl_b32 {sB}, {sB}, 6")
        e(f"s_add_u32 {sA}, {sA}, {sB}")
        e(f"v_lshrrev_b32 v17, 5, {vLane}")
        e("v_lshlrev_b32 v17, 4, v17")
        e(f"v_lshl_add_u32 v17, {v(vP32)}, 8, v17")
        e(f"v_add_u32 v17, {sA}, v17")
        e(f"buffer_load_dwordx4 {v(vXr, 4)}, v17, {SRD['x']}, 0 offen", "xres")
        e(f"buffer_load_dwordx4 {v(vXr + 4, 4)}, v17, {SRD['x']}, 0 offen offset:32", "xres")
        return S

    def xres_unpack(self):
        S = [W("vm", "xres")]
        e = lambda t, tag=None: S.append(I(t, tag))
        for k in range(2):
            e(f"v_permlane32_swap_b32 {v(vXr + 4 * k)}, {v(vXr + 4 * k + 2)}")
            e(f"v_permlane32_swap_b32 {v(vXr + 4 * k + 1)}, {v(vXr + 4 * k + 3)}")
        for d in range(8):
            e(f"v_lshlrev_b32 {v(vAo[0] + 2 * d)}, 16, {v(vXr + d)}")
            e(f"v_and_b32 {v(vAo[0] + 2 * d + 1)}, 0xffff0000, {v(vXr + d)}")
        return S

    def pass1(self, typ):
        S = []
        fillq = []
        S.append(W("vm", "a0"))
        S.append(I("s_barrier"))
        self.stamp(S, "a0")
        S += self.reads1(0)
        if typ == "A":
            fillq.append([I(f"s_lshl_b32 {sA}, {sP}, 1"), I(f"s_add_u32 {sA}, {sA}, {sI}"), I(f"s_lshl_b32 {sA}, {sA}, 7"),
                          I(f"s_add_u32 {sA}, {sA}, {WS_ZF}"), I(f"v_mov_b32 v252, {sT}"),
                          I(f"v_or_b32 v251, {vL0}, v249"),
                          I(f"buffer_store_dword v252, v251, {SRD['ws']}, {sA} offen sc1")])
        left = 3
        for T in range(32):
            seg = []
            if T == 31:
                seg += self.cs_write([vCs[0], vCs[1]], SC_CS1, 512)
                seg += [W("lg"), I("s_barrier")]
                self.stamp(seg, "p1end")
                seg += self.cs_read([vCs[0], vCs[1]], SC_CS1)
                fillq += [self.dma_w2(n) for n in range(14, 22)]
                left = 1
            elif T % 4 == 3:
                k = (T + 1) // 4
                seg += [W("lg"), W("vm", f"a{k}"), I("s_barrier")]
                if k == 4:
                    self.stamp(seg, "a4")
                assert not fillq
                if k <= 5:
                    fillq += self.dma_a(k + 2, typ)
                if k == 5:
                    fillq += self.stat_loads(typ)
                if k == 6:
                    for b in range(8):
                        fillq += self.dma_b(b, typ)
                    fillq += [self.dma_w2(n) for n in range(0, 6)]
                if k == 7:
                    fillq += [self.dma_w2(n) for n in range(6, 14)]
                left = 4
            if T < 31:
                seg += self.reads1(T + 1)
                seg.append(W("lg", f"r{T}"))
            nf = -(-len(fillq) // left)
            take, fillq = fillq[:nf], fillq[nf:]
            left -= 1
            seg += interleave(self.mfma1(T, typ), take)
            S += seg
        return S

    def pass2(self, typ, mid=None, pre_last=None):
        S = []
        S += [W("vm", "b3"), I("s_barrier")]
        S += self.reads2(0)
        for T in range(32):
            if T == 15:
                S += [W("lg"), W("vm", "b7"), I("s_barrier")]
            if T == 31:
                S += self.cs_write([vCs[2]], SC_CS2, 256)
                S += [W("lg"), W("vm", "c21"), I("s_barrier")]
                self.stamp(S, "p2end")
                S += self.cs_read([vCs[2]], SC_CS2)
            else:
                S += self.reads2(T + 1)
                S.append(W("lg", f"q{T}"))
            fill = []
            if mid and T in mid:
                fill = mid[T]
            S += interleave(self.mfma2(T), fill)
        return S

    def path_a(self):
        S = []
        e = lambda t, tag=None: S.append(I(t, tag))
        e(f"s_lshl_b32 {sA}, {sP}, 7")
        e(f"s_add_u32 {sB}, {sA}, 1024")
        e(f"v_add_u32 {v(vWs[0])}, {sB}, v247")
        e(f"v_add_u32 {v(vWs[1])}, {8 * 3072 - 1024}, {v(vWs[0])}")
        e(f"v_add_u32 {v(vWs[2])}, 1024, {v(vWs[0])}")
        e(f"v_add_u32 {v(vWs[3])}, 1024, {v(vWs[1])}")
        e(f"s_sub_u32 {sB}, {sW}, 3")
        e(f"s_lshr_b32 {sC}, {sI}, 1")
        e(f"s_or_b32 {sB}, {sB}, {sC}")
        e(f"s_cmp_eq_u32 {sB}, 0")
        e(f"s_cselect_b32 {sB}, 0, {OOB}")
        e(f"v_mov_b32 v249, {sB}")
        e(f"v_add_u32 v250, {sB}, {vL16}")
        e(f"s_lshl_b32 {sA}, {sP}, 1")
        e(f"s_add_u32 {sA}, {sA}, {sI}")
        e(f"s_lshl_b32 {sA}, {sA}, 12")
        e(f"s_add_u32 {sA}, {sA}, {WS_KV}")
        for r in range(4):
            e(f"v_mov_b32 v{232 + r}, 0")
        for k in range(3):
            e(f"buffer_store_dwordx4 v[232:235], v250, {SRD['ws']}, {sA} offen offset:{1024 * k} sc1")
        for s in range(3):
            for g in self.dma_a(s, "A"):
                S += g
        e(f"s_mul_i32 {sA}, {sP}, 384")
        e(f"v_add_u32 {v(vBs[0])}, {sA}, v248")
        e(f"v_add_u32 {v(vBs[1])}, {8 * 2752 - 1024}, {v(vBs[0])}")
        S += self.setup_rest("A")
        e(f"s_mul_i32 {sA}, {sP}, 6")
        e(f"s_add_u32 {sA}, {sA}, {sCH}")
        e(f"s_lshl_b32 {sA}, {sA}, 6")
        e(f"v_lshrrev_b32 v253, 1, {v(vP32)}")
        e(f"buffer_load_ushort {v(vB1[0])}, v253, {SRD['b1']}, {sA} offen", "b1")
        S += self.stats_produce()
        S += self.pass1("A")
        S += self.stat_check("A")
        e(f"s_lshl_b32 {sA}, {sW}, 8")
        e(f"v_add_u32 v222, {sA}, {v(vP32)}")
        e(f"ds_write_b32 v222, {v(vRs[0])} offset:{SC_RS}")
        e(f"ds_write_b32 v222, {v(vRs[1])} offset:{SC_RS + 128}")
        e(f"v_lshrrev_b32 v223, 5, {vLane}")
        e(f"v_lshl_add_u32 v223, v223, 4, {sA}")
        S.append(W("lg"))
        for gg in range(2):
            for jj in range(4):
                e(f"ds_read_b128 {v(vRsA[gg] + 4 * jj, 4)}, v223 offset:{SC_RS + 128 * gg + 32 * jj}", "rs")
        S += self.aug(vCs[0], None, [vAcc1(0, 0), vAcc1(0, 1)], True)
        S += self.aug(vCs[1], None, [vAcc1(1, 0), vAcc1(1, 1)], True)
        S.append(W("lg"))
        PK, PV = 128, 144
        C0, C1 = 64, 80
        for gg in range(2):
            S += self.phi(vAcc1(0, gg), PK + 8 * gg, lambda r, gg=gg: (v(vRsA[gg] + r, 2), 0, 1))
        for gg in range(2):
            acc = vAcc1(1, gg)
            for r in range(0, 16, 2):
                e(f"v_pk_mul_f32 {v(acc + r, 2)}, {v(acc + r, 2)}, {v(vRsA[gg] + r, 2)}")
            for r in range(0, 16, 2):
                e(f"v_cvt_pk_bf16_f32 {v(PV + 8 * gg + r // 2)}, {v(acc + r)}, {v(acc + r + 1)}")
        ONE = 96
        for r in range(4):
            e(f"v_mov_b32 {v(ONE + r)}, {v(vNE + 1)}")
        for f in range(4):
            e(f"v_mfma_f32_32x32x16_bf16 {v(C0, 16)}, {v(PK + 4 * f, 4)}, {v(PV + 4 * f, 4)}, {'0' if f == 0 else v(C0, 16)}")
        for f in range(4):
            e(f"v_mfma_f32_32x32x16_bf16 {v(C1, 16)}, {v(PK + 4 * f, 4)}, {v(ONE, 4)}, {'0' if f == 0 else v(C1, 16)}")
        e(f"s_lshl_b32 {sA}, {sW}, 10")
        e(f"v_add_u32 v222, {sA}, {vL16}")
        e(f"s_xor_b32 {sA}, {sA}, 1024")
        e(f"v_add_u32 v223, {sA}, {vL16}")
        e(f"v_bfe_u32 v224, {vLane}, 4, 1")
        e(f"v_lshrrev_b32 v225, 5, {vLane}")
        e("v_lshlrev_b32 v224, 6, v224")
        e("v_lshl_add_u32 v224, v225, 5, v224")
        e(f"s_lshl_b32 {sA}, {sW}, 8")
        e(f"v_add_u32 v224, {sA}, v224")
        M, Z, SD, KP = 100, 108, 116, 120
        for r in range(8):
            e(f"v_cndmask_b32 {v(M + r)}, {v(C0 + 8 + r)}, {v(C0 + r)}, {sSET0}")
        for r in range(4):
            e(f"v_cndmask_b32 {v(SD + r)}, {v(M + 4 + r)}, {v(M + r)}, {sRHM}")
            e(f"v_cndmask_b32 {v(KP + r)}, {v(M + r)}, {v(M + 4 + r)}, {sRHM}")
        e(f"ds_write_b128 v222, {v(SD, 4)} offset:{SC_KV}")
        for r in range(8):
            e(f"v_cndmask_b32 {v(Z + r)}, {v(C1 + 8 + r)}, {v(C1 + r)}, {sSET0}")
        e(f"ds_write_b128 v224, {v(Z, 4)} offset:{SC_RS}")
        e(f"ds_write_b128 v224, {v(Z + 4, 4)} offset:{SC_RS + 16}")
        e(f"v_and_b32 v225, 15, {vLane}")
        e(f"s_lshl_b32 {sB}, {sRH}, 6")
        e(f"v_lshl_add_u32 v225, v225, 2, {sB}")
        e(f"v_add_u32 v226, {sA}, v225")
        e(f"s_xor_b32 {sA}, {sA}, 256")
        e(f"v_add_u32 v227, {sA}, v225")
        e(f"v_cmp_gt_u32 vcc, 16, {vLane}")
        e(f"v_mov_b32 v228, {OOB}")
        e("v_cndmask_b32 v225, v228, v225, vcc")
        S += [W("lg"), I("s_barrier")]
        e(f"ds_read_b128 {v(SD, 4)}, v223 offset:{SC_KV}")
        e(f"ds_read_b32 {v(Z)}, v226 offset:{SC_RS}")
        e(f"ds_read_b32 {v(Z + 1)}, v227 offset:{SC_RS}")
        e(f"s_lshl_b32 {sA}, {sP}, 1")
        e(f"s_add_u32 {sA}, {sA}, {sCH}")
        e(f"s_lshl_b32 {sA}, {sA}, 12")
        e(f"s_add_u32 {sA}, {sA}, {WS_KV}")
        e(f"s_lshl_b32 {sB}, {sRH}, 10")
        e(f"s_add_u32 {sB}, {sB}, {sA}")
        S.append(W("lg"))
        for r in range(4):
            e(f"v_add_f32 {v(KP + r)}, {v(KP + r)}, {v(SD + r)}")
        e(f"v_add_f32 {v(Z)}, {v(Z)}, {v(Z + 1)}")
        for r in range(4):
            e(f"buffer_atomic_add_f32 {v(KP + r)}, {vL4}, {SRD['ws']}, {sB} offen offset:{256 * r}", "kvat")
        e(f"buffer_atomic_add_f32 {v(Z)}, v225, {SRD['ws']}, {sA} offen offset:2048", "kvat")
        self.stamp(S, "epi1")
        kvflag = []
        kvflag.append(W("vm", "kvat"))
        self.flag_store(kvflag, [f"s_lshl_b32 {sA}, {sP}, 1", f"s_add_u32 {sA}, {sA}, {sCH}", f"s_lshl_b32 {sA}, {sA}, 5",
                                 f"s_lshl_b32 {sB}, {sI}, 1", f"s_add_u32 {sA}, {sA}, {sB}", f"s_add_u32 {sA}, {sA}, {sRH}",
                                 f"s_lshl_b32 {sA}, {sA}, 2", f"s_add_u32 {sA}, {sA}, {WS_KVF}"])
        S += self.pass2("A", mid={self.opt.get("kvflagT", 20): [kvflag]})
        for n in range(22, 38):
            S += self.dma_w2(n)
        S += self.p2_setup()
        S += [W("lg", "cs"), W("vm", "b1")]
        S += self.aug(vCs[2], vB1[0], [vAcc2(0), vAcc2(1)], False)
        mi = self.mish(vAcc2(0), 0, self.act_addr(0, 0)) + self.mish(vAcc2(1), 1, self.act_addr(1, 0))
        S += interleave(mi, self.w_to_regs(), anchor=lambda it: isinstance(it, I) and it.t.startswith("v_rcp"))
        S += [W("lg"), I("s_barrier")]
        self.stamp(S, "epi2")
        for n in range(38, 59):
            S += self.dma_w2(n)
        S += self.xres_loads()
        S.append(W("vm", "actst"))
        self.flag_store(S, self.actflag_addr())
        S += self.phase2()
        return S

    def actflag_addr(self):
        return [f"s_lshl_b32 {sA}, {sI}, 1", f"s_add_u32 {sA}, {sA}, {sRH}", f"s_lshl_b32 {sA}, {sA}, 5",
                f"s_lshl_b32 {sB}, {sJ}, 1", f"s_add_u32 {sA}, {sA}, {sB}", f"s_add_u32 {sA}, {sA}, {sCH}",
                f"s_lshl_b32 {sA}, {sA}, 2", f"s_add_u32 {sA}, {sA}, {WS_ACTF}"]

    def path_b(self):
        S = []
        e = lambda t, tag=None: S.append(I(t, tag))
        e(f"s_mul_i32 {sA}, {sP}, 384")
        e(f"s_add_u32 {sA}, {sA}, 128")
        e(f"v_add_u32 {v(vWs[0])}, {sA}, v248")
        e(f"v_add_u32 {v(vWs[1])}, {8 * 2752 - 1024}, {v(vWs[0])}")
        e(f"v_add_u32 {v(vWs[2])}, 128, {v(vWs[0])}")
        e(f"v_add_u32 {v(vWs[3])}, 128, {v(vWs[1])}")
        for s in range(3):
            for g in self.dma_a(s, "B"):
                S += g
        e(f"s_lshl_b32 {sA}, {sP}, 7")
        e(f"v_add_u32 {v(vBs[0])}, {sA}, v247")
        e(f"v_add_u32 {v(vBs[1])}, {8 * 3072 - 1024}, {v(vBs[0])}")
        S += self.setup_rest("B")
        e(f"s_mul_i32 {sA}, {sP}, 6")
        e(f"s_add_u32 {sA}, {sA}, {sCH}")
        e(f"s_lshl_b32 {sA}, {sA}, 6")
        e(f"v_lshrrev_b32 v253, 1, {v(vP32)}")
        e(f"buffer_load_ushort {v(vB1[0])}, v253, {SRD['b1']}, {sA} offen offset:128", "b1")
        e(f"buffer_load_ushort {v(vB1[1])}, v253, {SRD['b1']}, {sA} offen offset:256", "b1")
        S += self.stats_produce()
        S += self.pass1("B")
        S += self.stat_check("B")
        S += [W("lg", "cs"), W("vm", "b1")]
        S += self.aug(vCs[0], vB1[0], [vAcc1(0, 0), vAcc1(0, 1)], False)
        S += self.aug(vCs[1], vB1[1], [vAcc1(1, 0), vAcc1(1, 1)], False)
        for g in range(2):
            for gg in range(2):
                S += self.mish(vAcc1(g, gg), gg, self.act_addr(gg, 4 + 4 * g))
        self.stamp(S, "epi1")
        actflag = [W("vm", "actst")]
        self.flag_store(actflag, self.actflag_addr())
        S += self.pass2("B", mid={self.opt.get("actflagT", 16): [actflag]})
        e(f"s_lshl_b32 {sA}, {sP}, 1")
        e(f"s_add_u32 {sA}, {sA}, {sCH}")
        e(f"s_lshl_b32 {sM0}, {sA}, 7")
        e(f"s_add_u32 {sM0}, {sM0}, {WS_KVF}")
        e(f"s_lshl_b32 {sM1}, {sA}, 12")
        e(f"s_add_u32 {sM1}, {sM1}, {WS_KV}")
        S += self.p2_setup()
        S += [W("lg", "cs")]
        S += self.aug(vCs[2], None, [vAcc2(0), vAcc2(1)], False)
        e(f"v_bfe_u32 v64, {vLane}, 4, 1")
        e("v_xor_b32 v64, 1, v64")
        e(f"v_lshrrev_b32 v65, 5, {vLane}")
        e("v_lshlrev_b32 v64, 6, v64")
        e("v_lshl_add_u32 v64, v65, 5, v64")
        self.poll(S, sM0, v(vP32))
        self.stamp(S, "kvok")
        KV, ZZ = 96, 104
        for r in range(8):
            e(f"buffer_load_dword {v(KV + r)}, {vL4}, {SRD['ws']}, {sM1} offen offset:{256 * r} sc1", "kvld")
        e(f"buffer_load_dwordx4 {v(ZZ, 4)}, v64, {SRD['ws']}, {sM1} offen offset:2048 sc1", "kvld")
        e(f"buffer_load_dwordx4 {v(ZZ + 4, 4)}, v64, {SRD['ws']}, {sM1} offen offset:2064 sc1", "kvld")
        for n in range(22, 38):
            S += self.dma_w2(n)
        PQ = 112
        ph = []
        for gg in range(2):
            ph += self.phi(vAcc2(gg), PQ + 8 * gg, lambda r, gg=gg: (v(vRs[gg], 2), 0, 0))
        S += interleave(ph, self.w_to_regs(), anchor=lambda it: isinstance(it, I) and it.t.startswith("v_max"))
        S.append(W("vm", "kvld"))
        KP_, ZP = 64, 68
        F0, F1 = 72, 76
        for r in range(4):
            e(f"v_cvt_pk_bf16_f32 {v(KP_ + r)}, {v(KV + 2 * r)}, {v(KV + 2 * r + 1)}")
            e(f"v_cvt_pk_bf16_f32 {v(ZP + r)}, {v(ZZ + 2 * r)}, {v(ZZ + 2 * r + 1)}")
        for r in range(4):
            e(f"v_cndmask_b32 {v(F0 + r)}, {v(ZP + r)}, {v(KP_ + r)}, {sSET0}")
            e(f"v_cndmask_b32 {v(F1 + r)}, {v(KP_ + r)}, {v(ZP + r)}, {sSET0}")
        D = [128, 144, 190, 206]
        for gg in range(2):
            e(f"v_mfma_f32_32x32x16_bf16 {v(D[2 * gg], 16)}, {v(F0, 4)}, {v(PQ + 8 * gg, 4)}, 0")
            e(f"v_mfma_f32_32x32x16_bf16 {v(D[2 * gg + 1], 16)}, {v(F1, 4)}, {v(PQ + 8 * gg + 4, 4)}, 0")
        e(f"s_lshl_b32 {sD}, {sP}, 1")
        e(f"s_add_u32 {sD}, {sD}, {sCH}")
        e(f"s_lshl_b32 {sD}, {sD}, 11")
        e(f"s_add_u32 {sD}, {sD}, {sActB}")
        e(f"s_add_u32 {sD}, {sD}, {96 * 1024}")
        for gg in range(2):
            for hd in range(2):
                d = D[2 * gg + hd]
                num, den = (d, d + 8) if hd == 0 else (d + 8, d)
                po = 80 + 4 * (2 * gg + hd)
                e(f"v_add_f32 {v(den)}, {v(vEL)}, {v(den)}")
                e(f"v_rcp_f32 {v(den)}, {v(den)}")
                for r in range(0, 8, 2):
                    e(f"v_pk_mul_f32 {v(num + r, 2)}, {v(num + r, 2)}, {v(den, 2)} op_sel_hi:[1,0]")
                for r in range(0, 8, 2):
                    e(f"v_cvt_pk_bf16_f32 {v(po + r // 2)}, {v(num + r)}, {v(num + r + 1)}")
                off = " offset:1024" if hd else ""
                e(f"buffer_store_dwordx4 {v(po, 4)}, {vL16}, {SRD['ws']}, {sD} offen{off} sc1", "ost")
            if gg == 0:
                e(f"s_add_u32 {sD}, {sD}, 131072")
        S += [W("lg"), I("s_barrier")]
        self.stamp(S, "epi2")
        for n in range(38, 59):
            S += self.dma_w2(n)
        S += self.xres_loads()
        S.append(W("vm", "ost"))
        self.flag_store(S, [f"s_lshl_b32 {sA}, {sI}, 1", f"s_add_u32 {sA}, {sA}, {sRH}", f"s_lshl_b32 {sA}, {sA}, 5",
                            f"s_lshl_b32 {sB}, {sP}, 1", f"s_add_u32 {sA}, {sA}, {sB}", f"s_add_u32 {sA}, {sA}, {sCH}",
                            f"s_lshl_b32 {sA}, {sA}, 2", f"s_add_u32 {sA}, {sA}, {WS_OF}"])
        S += self.phase2()
        return S

    def phase2(self):
        S = []
        e = lambda t, tag=None: S.append(I(t, tag))
        e(f"s_lshl_b32 {sM0}, {sR2}, 7")
        e(f"s_add_u32 {sM1}, {sM0}, {WS_OF}")
        e(f"s_add_u32 {sM0}, {sM0}, {WS_ACTF}")
        e(f"s_lshl_b32 {sA}, {sR2}, 1")
        e(f"s_add_u32 {sA}, {sA}, {sRH}")
        e(f"s_lshl_b32 {sA}, {sA}, 17")
        e(f"s_add_u32 {sA}, {sA}, {WS_ACT}")
        e(f"s_mul_i32 {sB}, {sCH}, {43 * 1024}")
        e(f"s_add_u32 {sC}, {sA}, {sB}")
        e(f"s_lshl_b32 {sB}, {sCH}, 14")
        e(f"s_add_u32 {sD}, {sA}, {sB}")
        e(f"s_add_u32 {sD}, {sD}, {96 * 1024}")
        e(f"v_and_b32 v16, 60, {v(vP32)}")
        self.stamp(S, "flagged")
        self.poll(S, sM0, v(vP32))
        self.stamp(S, "actok")

        def ld(n):
            R = []
            k = n if n < 43 else n - 43
            sb = sC if n < 43 else sD
            off = f" offset:{1024 * (k & 3)}" if k & 3 else ""
            R.append(I(f"buffer_load_dwordx4 {act_reg(n)}, {vL16}, {SRD['ws']}, {sb} offen{off} sc1", f"x{n}"))
            if (k & 3) == 3:
                R.append(I(f"s_add_u32 {sb}, {sb}, 4096"))
            return R
        OP = self.opt.get("opollN", 30)
        for n in range(43):
            if n == OP:
                e(f"buffer_load_dword v14, v16, {SRD['ws']}, {sM1} offen sc1", "opoll")
            S += ld(n)
        S += self.xres_unpack()
        frag = lambda n: (lambda t, u: v(vWf[n & 1][t] + 2 * u, 2))
        for n in range(59):
            if n == NREGW - 1:
                S.append(I("s_barrier"))
            if n == OP:
                self.poll_check(S, sM1, "v16", "v14", "opoll")
                self.stamp(S, "ook")
                for m in range(43, 59):
                    S += ld(m)
                e(f"s_or_b32 {sA}, s2, {sW}")
                e(f"s_cmp_eq_u32 {sA}, 0")
                e(f"s_cselect_b32 {sA}, 0, {OOB}")
                e(f"v_or_b32 v250, {sA}, {vL0}")
                e(f"v_mov_b32 v252, {sT}")
                e(f"buffer_store_dword v252, v250, {SRD['ws']}, 0 offen offset:{WS_E}")
            if n == 44:
                S.append(I("s_barrier"))
            if NREGW - 1 <= n < 58:
                S += self.p2_reads(n + 1, frag(n + 1), f"w{n + 1}")
            S.append(W("vm", f"x{n}"))
            if n >= NREGW:
                S.append(W("lg", f"w{n}"))
            for t in range(2):
                wf = a(8 * n + 4 * t, 4) if n < NREGW else v(vWf[n & 1][t], 4)
                acc = v(vAo[t], 16)
                c = "0" if (n == 0 and t == 1) else acc
                e(f"v_mfma_f32_32x32x16_bf16 {acc}, {wf}, {act_reg(n)}, {c}")
        self.stamp(S, "gemm2")
        e(f"s_lshl_b32 {sA}, {sW}, 12")
        e(f"s_add_u32 {sB}, {sA}, {RED}")
        e(f"v_add_u32 v18, {sB}, {vL16}")
        e(f"s_xor_b32 {sA}, {sA}, 8192")
        e(f"s_add_u32 {sB}, {sA}, {RED}")
        e(f"v_add_u32 v19, {sB}, {vL16}")
        for q in range(4):
            e(f"ds_write_b128 v18, {v(vAo[1] + 4 * q, 4)} offset:{1024 * q}")
        S += [W("lg"), I("s_barrier")]
        for q in range(4):
            e(f"ds_read_b128 {v(96 + 4 * q, 4)}, v19 offset:{1024 * q}", f"f{q}")
        for q in range(4):
            S.append(W("lg", f"f{q}"))
            for r in (0, 2):
                e(f"v_pk_add_f32 {v(vAo[0] + 4 * q + r, 2)}, {v(vAo[0] + 4 * q + r, 2)}, {v(96 + 4 * q + r, 2)}")
            for r in (0, 2):
                e(f"v_cvt_pk_bf16_f32 {v(112 + 2 * q + r // 2)}, {v(vAo[0] + 4 * q + r)}, {v(vAo[0] + 4 * q + r + 1)}")
            if q & 1:
                k = q >> 1
                e(f"v_permlane32_swap_b32 {v(112 + 4 * k)}, {v(112 + 4 * k + 2)}")
                e(f"v_permlane32_swap_b32 {v(112 + 4 * k + 1)}, {v(112 + 4 * k + 3)}")
                off = " offset:32" if k else ""
                e(f"buffer_store_dwordx4 {v(112 + 4 * k, 4)}, v17, {SRD['out']}, 0 offen{off} {self.opt.get('outaux', '')}".rstrip())
        if self.opt.get("stamps"):
            S.append(W("vm"))
            self.stamp(S, "end")
            e(f"s_lshl_b32 {sA}, s2, 2")
            e(f"s_add_u32 {sA}, {sA}, {sW}")
            e(f"s_lshl_b32 {sA}, {sA}, 7")
            e(f"s_add_u32 {sA}, {sA}, {WS_STAMP}")
            e("v_mov_b32 v20, s100")
            e(f"buffer_store_dword v20, {vL0}, {SRD['ws']}, {sA} offen")
            for nm, idx in self.names.items():
                e(f"v_mov_b32 v20, s{64 + 2 * idx}")
                e(f"buffer_store_dword v20, {vL0}, {SRD['ws']}, {sA} offen offset:{4 + 4 * self.allnames.index(nm)}")
        e("s_endpgm")
        return S

    allnames = ["a0", "a4", "p1end", "epi1", "p2end", "kvok", "epi2", "flagged", "actok", "ook", "gemm2", "end"]

    def build(self):
        pro = self.prologue()
        self.names = {}
        A = self.path_a()
        self.names = {}
        B = self.path_b()
        la, pka, na = finalize(pro + A)
        lb, pkb, nb = finalize(pro + B)
        npro = len(finalize(pro)[0])
        assert la[:npro] == lb[:npro]
        body = la + ["L_typeB:"] + lb[npro:] + self.slow + ["L_end:", "s_endpgm"]
        self.info = dict(peakA=pka, peakB=pkb, nopsA=na, nopsB=nb, nA=len(la), nB=len(lb))
        hdr = open("cdna_kernels/" + NAME + ".s.ref").read().split("; Override launch")[0]
        txt = hdr + "; Generated by a script: fused LayerNorm + linear attention + Mish FFN, one persistent launch.\n"
        txt += "; @launch grid=(256,1,1) block=(256,1,1) lds=163840\n"
        txt += f'.amdgcn_target "amdgcn-amd-amdhsa--gfx950"\n.text\n.globl {NAME}_kernel\n.p2align 8\n.type {NAME}_kernel,@function\n{NAME}_kernel:\n'
        txt += "\n".join(("" if l.endswith(":") else "    ") + l for l in body) + "\n"
        txt += f""".section .rodata,"a"
.p2align 6
.amdhsa_kernel {NAME}_kernel
  .amdhsa_next_free_vgpr 512
  .amdhsa_next_free_sgpr 102
  .amdhsa_accum_offset 256
  .amdhsa_group_segment_fixed_size 0
  .amdhsa_kernarg_size 80
  .amdhsa_user_sgpr_count 2
  .amdhsa_user_sgpr_kernarg_segment_ptr 1
  .amdhsa_system_sgpr_workgroup_id_x 1
  .amdhsa_float_denorm_mode_32 3
.end_amdhsa_kernel
"""
        return txt


def generate(**opt):
    g = Gen(opt)
    t = g.build()
    return t, g


if __name__ == "__main__":
    t, g = generate()
    out = sys.argv[1] if len(sys.argv) > 1 else "cdna_kernels/" + NAME + ".s"
    open(out, "w").write(t)
    print(g.info, len(t))
```

```python
import re


class I:
    __slots__ = ("t", "tag")

    def __init__(self, t, tag=None):
        self.t = t
        self.tag = tag

    def __repr__(self):
        return self.t


class W:
    __slots__ = ("kind", "tag")

    def __init__(self, kind, tag=None):
        self.kind = kind
        self.tag = tag


class Reset:
    __slots__ = ("kind",)

    def __init__(self, kind):
        self.kind = kind


def is_vm(t):
    return t.startswith("buffer_") or t.startswith("global_")


def is_ds(t):
    return t.startswith("ds_")


def is_smem(t):
    return t.startswith("s_load") or t.startswith("s_memrealtime") or t.startswith("s_memtime")


def resolve_waits(seq):
    out = []
    q = {"vm": [], "lg": []}
    smem_out = False
    mx = {"vm": 63, "lg": 15}
    peak = {"vm": 0, "lg": 0}
    for it in seq:
        if isinstance(it, Reset):
            q[it.kind] = []
            if it.kind == "lg":
                smem_out = False
            continue
        if isinstance(it, W):
            k = it.kind
            name = "vmcnt" if k == "vm" else "lgkmcnt"
            if it.tag is None:
                if q[k] or (k == "lg" and smem_out):
                    out.append(I(f"s_waitcnt {name}(0)"))
                q[k] = []
                if k == "lg":
                    smem_out = False
                continue
            idx = [n for n, tg in enumerate(q[k]) if tg == it.tag]
            if not idx:
                continue
            n = len(q[k]) - idx[-1] - 1
            if k == "lg" and smem_out:
                n = 0
            n = min(n, mx[k])
            out.append(I(f"s_waitcnt {name}({n})"))
            q[k] = q[k][len(q[k]) - n:] if n else []
            if k == "lg" and n == 0:
                smem_out = False
            continue
        t = it.t
        if is_vm(t):
            q["vm"].append(it.tag)
            peak["vm"] = max(peak["vm"], len(q["vm"]))
            assert len(q["vm"]) <= 63, "more than 63 VMEM ops outstanding at: " + t
        elif is_ds(t):
            q["lg"].append(it.tag)
            peak["lg"] = max(peak["lg"], len(q["lg"]))
        elif is_smem(t):
            smem_out = True
        m = re.match(r"s_waitcnt (.*)", t)
        if m:
            for nm, k in (("vmcnt", "vm"), ("lgkmcnt", "lg")):
                mm = re.search(nm + r"\((\d+)\)", m.group(1))
                if mm:
                    n = int(mm.group(1))
                    q[k] = q[k][len(q[k]) - n:] if n and n < len(q[k]) else ([] if n == 0 else q[k])
                    if k == "lg" and n == 0:
                        smem_out = False
        out.append(it)
    return out, peak


_REG = re.compile(r"^(-?)(?:abs\()?([vas])(?:(\d+)|\[(\d+):(\d+)\])\)?$")


def regs_of(tok):
    tok = tok.strip()
    if tok in ("vcc", "exec", "m0", "scc"):
        return {tok}
    m = _REG.match(tok)
    if not m:
        return set()
    f = m.group(2)
    if m.group(3) is not None:
        return {f + m.group(3)}
    return {f + str(n) for n in range(int(m.group(4)), int(m.group(5)) + 1)}


TRANS = ("v_exp_f32", "v_log_f32", "v_rcp_f32", "v_rsq_f32", "v_sqrt_f32", "v_sin_f32", "v_cos_f32")


class Info:
    __slots__ = ("op", "w", "r", "cls", "passes", "srcc", "ab", "dpp", "states", "stdata", "lds_dma", "trans")


def decode(t):
    inf = Info()
    parts = t.split(None, 1)
    op = parts[0]
    rest = parts[1] if len(parts) > 1 else ""
    ops = [x.strip() for x in rest.split(",")] if rest else []
    if ops:
        last = ops[-1].split()
        ops[-1] = last[0] if last else ""
        mods = " ".join(last[1:])
    else:
        mods = ""
    clean = []
    for o in ops:
        clean.append(o)
    ops = clean
    inf.op = op
    inf.w = set()
    inf.r = set()
    inf.cls = "other"
    inf.passes = 0
    inf.srcc = set()
    inf.ab = set()
    inf.dpp = "dpp" in op or "row_" in rest
    inf.states = 1
    inf.stdata = set()
    inf.lds_dma = False
    inf.trans = False
    R = [regs_of(o.split()[0]) if o else set() for o in ops]
    if op == "s_nop":
        inf.states = int(ops[0]) + 1
    elif op.startswith("v_mfma"):
        inf.cls = "mfma"
        inf.passes = 8 if "32x32" in op else 4
        inf.w = R[0]
        inf.ab = R[1] | R[2]
        inf.srcc = R[3]
        inf.r = inf.ab | inf.srcc
    elif op.startswith("v_"):
        inf.cls = "valu"
        base = op.replace("_e64", "").replace("_e32", "").replace("_dpp", "")
        inf.trans = base in TRANS
        if op.startswith("v_cmp"):
            inf.w = R[0]
            inf.r = set().union(*R[1:])
        elif op.startswith("v_permlane"):
            inf.w = R[0] | R[1]
            inf.r = R[0] | R[1]
        elif op.startswith(("v_add_co", "v_sub_co", "v_addc_co")):
            inf.w = R[0] | R[1]
            inf.r = set().union(*R[2:])
        else:
            inf.w = R[0]
            inf.r = set().union(*R[1:]) if len(R) > 1 else set()
            if base.startswith(("v_fmac", "v_dot2c")) or inf.dpp:
                inf.r |= R[0]
    elif op.startswith("ds_"):
        inf.cls = "ds"
        if "read" in op:
            inf.w = R[0]
            inf.r = set().union(*R[1:])
        else:
            inf.r = set().union(*R)
    elif op.startswith("buffer_"):
        inf.cls = "vm"
        if re.search(r"\blds\b", rest):
            inf.lds_dma = True
            inf.r = set().union(*R) | {"m0"}
        elif "load" in op:
            inf.w = R[0]
            inf.r = set().union(*R[1:])
        else:
            inf.r = set().union(*R)
            if op.endswith(("x3", "x4")):
                inf.stdata = R[0]
    elif op.startswith("s_"):
        inf.cls = "salu"
        if op.startswith(("s_cmp", "s_bitcmp", "s_cbranch", "s_branch", "s_waitcnt", "s_barrier", "s_endpgm", "s_sleep", "s_setprio")):
            inf.r = set().union(*R) if R else set()
        else:
            inf.w = R[0] if R else set()
            inf.r = set().union(*R[1:]) if len(R) > 1 else set()
    return inf


def need_states(p, c):
    n = 0
    vw = {x for x in p.w if x[0] in "va" and x != "vcc"}
    sw = {x for x in p.w if x[0] == "s" or x == "vcc"}
    if p.cls == "valu":
        if c.cls == "mfma" and vw & c.r:
            n = max(n, 2)
        if c.cls == "valu":
            if sw & c.r:
                n = max(n, 4 if c.op.startswith(("v_readlane", "v_writelane")) else 2)
            if vw & c.r:
                if c.op.startswith(("v_readlane", "v_readfirstlane")):
                    n = max(n, 1)
                if c.dpp or c.op.startswith("v_permlane"):
                    n = max(n, 2)
                if p.trans and not c.trans:
                    n = max(n, 1)
        if c.cls == "vm" and sw & c.r:
            n = max(n, 5)
        if c.cls == "salu" and sw & c.r and not c.op.startswith("s_cbranch"):
            n = max(n, 2)
    if p.cls == "mfma":
        far = 12 if p.passes == 8 else 8
        if c.cls == "mfma":
            if p.w & c.ab:
                n = max(n, far)
            if p.w & c.srcc:
                if not (p.w == c.srcc and p.passes == c.passes):
                    n = max(n, far - 2)
            elif p.w & c.w:
                n = max(n, far)
        elif c.cls in ("valu", "ds", "vm"):
            if p.w & (c.r | c.w):
                n = max(n, far)
            if c.cls == "valu" and p.srcc & c.w:
                n = max(n, 7 if p.passes == 8 else 3)
    if p.cls == "salu" and "m0" in p.w and c.lds_dma:
        n = max(n, 1)
    if p.cls == "vm" and p.stdata & c.w:
        n = max(n, 2 if c.cls == "valu" else 1)
    return n


def pad_hazards(seq):
    out = []
    hist = []
    pos = 0
    nops = 0
    for it in seq:
        t = it.t
        if t.endswith(":") or t.startswith((";", ".")):
            out.append(it)
            continue
        c = decode(t)
        need = 0
        for p, pp in hist:
            d = pos - pp - 1
            n = need_states(p, c)
            if n > d:
                need = max(need, n - d)
        while need > 0:
            k = min(need, 16)
            out.append(I(f"s_nop {k - 1}"))
            pos += k
            need -= k
            nops += 1
        out.append(it)
        hist.append((c, pos + c.states - 1))
        pos += c.states
        hist = [(p, pp) for p, pp in hist if pos - pp < 24]
    return out, nops


def interleave(main, fill, anchor=lambda it: isinstance(it, I) and it.t.startswith("v_mfma"), start=0):
    anchors = [n for n, it in enumerate(main) if anchor(it)][start:]
    if not fill:
        return list(main)
    if not anchors:
        return list(main) + [x for g in fill for x in g]
    place = {}
    for k, g in enumerate(fill):
        a = anchors[min(len(anchors) - 1, k * len(anchors) // len(fill))]
        place.setdefault(a, []).extend(g)
    out = []
    for n, it in enumerate(main):
        out.append(it)
        out.extend(place.get(n, []))
    return out


def finalize(seq):
    seq, peak = resolve_waits(seq)
    seq, nops = pad_hazards(seq)
    return [it.t for it in seq], peak, nops


class Rel:
    def __init__(self, groups, front=False):
        self.groups = groups
        self.front = front


class Flush:
    def __init__(self, n=None):
        self.n = n


class FlushTo:
    def __init__(self, tag):
        self.tag = tag


class Pace:
    def __init__(self, cyc):
        self.cyc = cyc


class Slot:
    def __init__(self, gap=0, small_only=False):
        self.gap = gap
        self.small_only = small_only


class Hold:
    def __init__(self, on):
        self.on = on


_SCC_USE = ("s_cselect", "s_cbranch_scc", "s_addc", "s_subb", "s_cmov")
_SCC_DEF = ("s_cmp", "s_bitcmp", "s_add_", "s_sub_", "s_and_", "s_or_", "s_xor_", "s_lshl", "s_lshr", "s_min", "s_max")


def _scc_live(seq, k):
    for it in seq[k:k + 40]:
        if isinstance(it, I):
            if it.t.startswith(_SCC_USE):
                return True
            if it.t.startswith(_SCC_DEF):
                return False
    return False


def schedule(seq, pace=72):
    out = []
    fifo = []
    t = 0
    pipe = 0
    last = -10000
    hold = False

    def cost(it):
        nonlocal t, pipe, last
        x = it.t
        if x.endswith(":"):
            return
        if x.startswith("v_mfma"):
            s = max(t, pipe)
            pipe = s + (32 if "32x32" in x else 16)
            t = s + 8
        elif x.startswith("v_pk_"):
            t = max(t, pipe) + 4
        elif x.startswith(TRANS):
            t += 8
        else:
            t += 4
        if is_vm(x) and "x4" in x.split()[0]:
            last = t

    def emit(g):
        for it in g:
            out.append(it)
            if isinstance(it, I):
                cost(it)
        if fifo and isinstance(fifo[0][-1], I) and fifo[0][-1].t.endswith(" lds"):
            g2 = fifo[0]
            k = 0
            while g2[k].t.startswith("s_"):
                out.append(g2[k])
                cost(g2[k])
                k += 1
            fifo[0] = g2[k:]

    def has(g, tag):
        return any(isinstance(it, I) and it.tag == tag for it in g)

    for k, it in enumerate(seq):
        if isinstance(it, Rel):
            if it.front:
                fifo[:0] = it.groups
            else:
                fifo.extend(it.groups)
            continue
        if isinstance(it, Pace):
            pace = it.cyc
            continue
        if isinstance(it, Hold):
            hold = it.on
            continue
        if isinstance(it, Slot):
            small = lambda g: not any(isinstance(y, I) and is_vm(y.t) and "x4" in y.t.split()[0] for y in g)
            if fifo and ((t - last >= it.gap and not it.small_only) or small(fifo[0])):
                emit(fifo.pop(0))
            continue
        if isinstance(it, FlushTo):
            idx = [n for n, g in enumerate(fifo) if has(g, it.tag)]
            for _ in range(idx[-1] + 1 if idx else 0):
                emit(fifo.pop(0))
            continue
        if isinstance(it, Flush):
            n = len(fifo) if it.n is None else min(it.n, len(fifo))
            for _ in range(n):
                emit(fifo.pop(0))
            continue
        if isinstance(it, W) and it.kind == "vm" and it.tag is not None:
            idx = [n for n, g in enumerate(fifo) if has(g, it.tag)]
            if idx:
                for _ in range(idx[-1] + 1):
                    emit(fifo.pop(0))
        out.append(it)
        if isinstance(it, I):
            cost(it)
            if fifo and not hold and it.t.startswith("v_") and t - last >= pace and not _scc_live(seq, k + 1):
                emit(fifo.pop(0))
    assert not fifo, "unissued groups left"
    return out, t


def finalize2(seq):
    seq, est = schedule(seq)
    seq, peak = resolve_waits(seq)
    seq, nops = pad_hazards(seq)
    return [it.t for it in seq], peak, nops, est
```

```python
import struct
import sys
sys.path.insert(0, "dev")
from asmfw import I, W, Rel, Flush, Pace, Hold, Slot, FlushTo, finalize2

NAME = "parallel_sum__linear_attn_block__dense_activation_mish__prompt"

WS_E = 0x0
WS_STAT = 0x1000
WS_ZF = 0x8000
WS_KVF = 0x9000
WS_AF = 0xA000
WS_BF = 0xB000
WS_OF = 0xC000
WS_DUAL = 0x3000
WS_KV = 0x10000
WS_ACT = 0x100000
WS_STAMP = 0x1800000
WS_BYTES = 0x2000000
TAGC = 0x5BD1E995
OOB = 0x7FFF0000
SPIN = 100000

SLOT0 = 8192
SLOT = [8192, 40960, 73728]
BBASE = 98304
SC_RS = 0
SC_CS = 1024
SC_KV = 4096
RED = 106496


def bpos(b):
    return 0 if b == 7 else b + 1


def _pc_first(n):
    if n < 6:
        return 73728 + n * 4096
    if n < 14:
        return 8192 + (n - 6) * 4096
    if n < 21:
        return 40960 + (n - 14) * 4096
    return 69632


P2BAR = {2: (0, [0]), 6: (1, [1, 2, 3, 4]), 10: (2, [5, 6, 7, 8]), 14: (3, [9, 10, 11, 12]), 18: (4, [13, 14, 15, 16]),
         22: (5, [17, 18, 19, 20]), 26: (6, []), 31: (7, [])}
PC = [_pc_first(n) for n in range(22)]
P2REL = {}
for _T, (_b, _st) in P2BAR.items():
    _new = [BBASE + 8192 * bpos(_b), BBASE + 8192 * bpos(_b) + 4096] + [_pc_first(n) for n in _st]
    P2REL[_T] = list(range(len(PC), len(PC) + len(_new)))
    PC += _new
assert len(PC) == 59


def pc_addr(n):
    return PC[n]


NREGW = 21
ORDER = [("f", 6 * p + 2 + q) for p in range(7) for q in range(4)] + [("f", 18), ("f", 19), ("f", 42)] \
    + [("f", 6 * p + q) for p in (0, 1, 2, 4, 5, 6) for q in range(2)] + [("o", hp) for hp in range(16)]
NB, NA = 31, 43
RING = 22

sT0, sT1 = "s0", "s1"
sW = "s3"
SRD = dict(x="s[4:7]", qkv="s[8:11]", w1="s[12:15]", wo="s[16:19]", w2="s[20:23]", b1="s[24:27]", out="s[28:31]", ws="s[32:35]", ws2="s[24:27]")
KARG = dict(x=(0, 2048 * 1024), qkv=(8, 512 * 3072), w1=(32, 512 * 2752), ws=(72, WS_BYTES), wo=(16, 512 * 1024),
            w2=(48, 1376 * 1024), b1=(40, 2752), out=(56, 2048 * 1024))
sI, sJ, sP, sRH, sCH, sT, sR2, sC2, sSig = "s36", "s37", "s38", "s39", "s40", "s41", "s42", "s43", "s44"
sSET0 = "s[46:47]"
sRHM = "s[48:49]"
sW8K, sW2K, sW1K = "s50", "s51", "s52"
sWO = "s54"
sA, sB, sC, sD = "s55", "s56", "s57", "s58"
sActB = "s59"
sCnt, sE, sM0, sM1 = "s60", "s61", "s62", "s63"
sFKV, sFAct, sFO, sPKV, sPB, sPA, sPO, sKV, sAct2, sG, sZF = [f"s{64 + k}" for k in range(11)]
sXk = ["s45"] + [f"s{76 + k}" for k in range(1, 8)]
sLB = ["s[84:85]", "s[86:87]", "s[88:89]"]
PFS = "s[92:95]"

vLane, vL16, vL4, vMH0, vL0 = "v1", "v2", "v3", "v4", "v5"
vW2s, vTag = "v6", "v7"
vXs = [8, 9, 10, 11]
vWs = [12, 13, 14, 15]
vBs = [16, 17]
vXrA = [18, 19, 20, 21]
vXrB = [22, 23, 24, 25]
vWrA = [26, 27]
vWrB = [28, 29]
vBr = [30, 31]
vSel = 32
vCs = [36, 40, 44]
vWf = [[48, 52], [56, 60]]
vAcc1 = lambda G, gg: 64 + 32 * G + 16 * gg
vAcc2 = lambda gg: 128 + 16 * gg
vSt = [160, 162]
vZf, vB2, vZero, vP32 = 164, 165, 166, 167
vXa = [168, 172]
vPFd, vPFa, vStA = "v176", "v177", "v178"
vRs = [180, 182]
vC12 = 184
vEL = 186
vNE = 188
vRsA = [190, 206]
vT = 222
vWa = [246, 250, 160]
vDs = [46, 47]
vCsW, vCsR = "v254", "v255"
vP2r = [[8, 9], [10, 11], [12, 13]]
vP16, vPoll, vPA16 = "v14", "v15", "v18"
vAo = [64, 80]
vXr = 246


def v(n, k=1):
    return f"v{n}" if k == 1 else f"v[{n}:{n + k - 1}]"


def a(n, k=1):
    return f"a{n}" if k == 1 else f"a[{n}:{n + k - 1}]"


def act_reg(n):
    return a(168 + 4 * (n % RING), 4)


def f2u(x):
    return "0x%08x" % struct.unpack("<I", struct.pack("<f", x))[0]


LOG2E = 1.4426950408889634
LN2 = 0.6931471805599453
_SCC_USE = ("s_cselect", "s_addc", "s_cbranch_scc")


class Extras:
    def __init__(self):
        self.q = []

    def add(self, items):
        self.q += [it for it in items if not isinstance(it, Hold)]

    def take(self, n):
        out = []
        while self.q:
            it = self.q[0]
            glue = not isinstance(it, I) or it.t.endswith(":") or it.t.startswith(_SCC_USE)
            if n <= 0 and not glue:
                break
            out.append(self.q.pop(0))
            if isinstance(it, I) and not it.t.endswith(":"):
                n -= 1
        return out


class Gen:
    allnames = ["a0", "p1end", "epi1", "p2end", "epi2", "actok", "s1", "apre", "aok", "opre", "ook", "gemm2", "end"]

    def __init__(self, opt):
        self.opt = opt
        if opt.get("stampset"):
            self.allnames = opt["stampset"].split(",")
        self.slow = []
        self.fs = 1 if opt.get("skip3", 0) else 0
        self.vact = v(vB2) if self.fs else vL16
        self.uid = 0

    def stamp(self, S, name):
        if not self.opt.get("stamps") or name not in self.allnames:
            return
        S.append(I(f"{'s_memtime' if self.opt.get('cyc') else 's_memrealtime'} s[98:99]"))
        S.append(W("lg"))
        S.append(I(f"v_writelane_b32 v179, s98, {1 + self.allnames.index(name)}"))
        if self.opt.get("both"):
            S.append(I("s_memtime s[98:99]"))
            S.append(W("lg"))
            S.append(I(f"v_writelane_b32 v179, s98, {17 + self.allnames.index(name)}"))

    def label(self, base):
        self.uid += 1
        return f"L_{base}_{self.uid}"

    def prologue(self):
        o = self.opt
        S = []
        e = lambda t, tag=None: S.append(I(t, tag))
        e(f"s_lshr_b32 {sA}, s2, 8")
        e("s_cbranch_scc1 L_end")
        if o.get("stamps"):
            e("s_memtime s[100:101]" if o.get("cyc") else "s_memrealtime s[100:101]")
        e("s_load_dwordx2 s[4:5], s[0:1], 0")
        e("s_load_dwordx16 s[64:79], s[0:1], 0")
        e("s_load_dwordx2 s[32:33], s[0:1], 72")
        e("v_lshrrev_b32 v6, 6, v0")
        e(f"v_and_b32 {vLane}, 63, v0")
        e(f"v_readfirstlane_b32 {sW}, v6")
        e("s_lshl_b32 s7, 1, 17")
        e("s_getpc_b64 s[92:93]")
        e("s_lshr_b32 s92, s92, 8")
        e("s_lshl_b32 s92, s92, 8")
        e(f"s_mov_b32 s94, L_codeend-{NAME}_kernel")
        e("s_mov_b32 s95, s7")
        e("v_lshrrev_b32 v238, 4, v0")
        e("v_lshlrev_b32 v238, 7, v238")
        e(f"s_lshr_b32 {sB}, s2, 3")
        e(f"s_lshl_b32 {sA}, {sB}, 11")
        e(f"buffer_load_dword {vPFd}, v238, {PFS}, {sA} offen")
        e("s_lshl_b32 s6, 1, 21")
        e(f"s_and_b32 {sA}, s2, 7")
        e(f"s_lshr_b32 {sC}, s2, 7")
        e(f"s_lshl1_add_u32 {sI}, {sA}, {sC}")
        if o.get("rot", "l0") == "l0":
            e(f"s_lshl2_add_u32 {sA}, {sC}, {sA}")
            e(f"s_and_b32 {sA}, {sA}, 7")
        e(f"s_lshl_b32 {sXk[0]}, {sA}, 7")
        e(f"v_lshrrev_b32 v240, 3, {vLane}")
        e(f"v_and_b32 v241, 7, {vLane}")
        e(f"s_lshl2_add_u32 {sC}, {sI}, {sW}")
        e(f"s_lshl_b32 {sC}, {sC}, 15")
        e(f"v_lshl_add_u32 v243, v240, 10, {sC}")
        e("v_lshrrev_b32 v244, 1, v240")
        e("v_xor_b32 v244, v244, v241")
        e(f"v_lshl_add_u32 {v(vXs[0])}, v244, 4, v243")
        e(f"v_xor_b32 {v(vXs[1])}, 64, {v(vXs[0])}")
        e(f"v_add_u32 {v(vXs[1])}, {7168}, {v(vXs[1])}")
        e(f"v_add_u32 {v(vXs[2])}, {2 * 7168}, {v(vXs[0])}")
        e(f"v_add_u32 {v(vXs[3])}, {2 * 7168}, {v(vXs[1])}")
        e(f"s_lshl_b32 {sW8K}, {sW}, 13")
        e(f"s_add_u32 m0, {sW8K}, {SLOT[0]}")
        S.append(W("lg"))
        for pp in range(4):
            off = f" offset:{1024 * pp}" if pp else ""
            e(f"buffer_load_dwordx4 {v(vXs[pp])}, {SRD['x']}, {sXk[0]} offen{off} lds", "a0")
        e(f"s_and_b32 {sJ}, {sB}, 15")
        e("L_first256:")
        e(f"v_lshlrev_b32 {vL16}, 4, {vLane}")
        e(f"s_lshl4_add_u32 {sM0}, {sI}, {sJ}")
        e(f"s_lshl2_add_u32 {sM0}, {sM0}, {sW}")
        e(f"s_lshl_b32 {sM1}, {sM0}, 11")
        if o.get("strow1", 1):
            e(f"buffer_load_dwordx4 v[224:227], {vL16}, {SRD['x']}, {sM1} offen", "strow")
            e(f"buffer_load_dwordx4 v[228:231], {vL16}, {SRD['x']}, {sM1} offen offset:1024", "strow")
        e(f"s_load_dword {sE}, s[32:33], {WS_E}")
        e(f"s_lshr_b32 {sP}, {sJ}, 1")
        e(f"v_lshl_add_u32 v239, v6, 4, v240")
        e("v_lshlrev_b32 v242, 1, v240")
        e("v_and_b32 v242, 4, v242")
        e("v_xor_b32 v242, v242, v241")
        e("v_lshlrev_b32 v242, 4, v242")
        e(f"s_mul_i32 {sT0}, {sP}, 6")
        e(f"s_add_u32 {sT0}, {sT0}, 2")
        e(f"s_add_u32 {sT1}, {sT0}, 2")
        e(f"s_cmp_eq_u32 {sP}, 7")
        e(f"s_cselect_b32 {sT0}, 18, {sT0}")
        e(f"s_cselect_b32 {sT1}, 42, {sT1}")
        e(f"s_lshl1_add_u32 {sA}, {sP}, 16")
        e(f"s_lshl1_add_u32 {sB}, {sP}, 32")
        e(f"s_movk_i32 {sC}, 3072")
        e(f"s_bitcmp1_b32 {sJ}, 0")
        e(f"s_cselect_b32 {sA}, {sT0}, {sA}")
        e(f"s_cselect_b32 {sB}, {sT1}, {sB}")
        e(f"s_cselect_b32 {sC}, 2752, {sC}")
        e("s_cselect_b64 s[80:81], s[72:73], s[66:67]")
        e(f"s_lshl_b32 s82, {sC}, 9")
        e("s_mov_b32 s83, s7")
        e(f"v_mul_u32_u24 v238, {sC}, v239")
        e(f"s_lshl_b32 {sA}, {sA}, 6")
        e(f"s_lshl_b32 {sB}, {sB}, 6")
        e(f"s_lshl_b32 {sD}, {sC}, 3")
        e(f"s_sub_u32 {sD}, {sD}, 1024")
        e(f"v_add3_u32 {v(vWs[0])}, v238, v242, {sA}")
        e(f"v_add3_u32 {v(vWs[2])}, v238, v242, {sB}")
        e(f"s_lshr_b32 {sC}, {sC}, 1")
        e(f"s_mul_i32 {sWO}, {sXk[0]}, {sC}")
        e(f"s_add_u32 m0, {sW8K}, {SLOT[0] + 4096}")
        e(f"v_add_u32 {v(vWs[1])}, {sD}, {v(vWs[0])}")
        e(f"v_add_u32 {v(vWs[3])}, {sD}, {v(vWs[2])}")
        e(f"buffer_load_dwordx4 {v(vWs[0])}, s[80:83], {sWO} offen lds", "a0")
        e(f"buffer_load_dwordx4 {v(vWs[1])}, s[80:83], {sWO} offen offset:1024 lds", "a0")
        e(f"s_add_u32 m0, {sW8K}, {SLOT[0] + 6144}")
        e(f"s_lshl_b32 {sM0}, {sM0}, 1")
        e(f"buffer_load_dwordx4 {v(vWs[2])}, s[80:83], {sWO} offen lds", "a0")
        e(f"buffer_load_dwordx4 {v(vWs[3])}, s[80:83], {sWO} offen offset:1024 lds", "a0")
        if not o.get("strow1", 1):
            e(f"buffer_load_dwordx4 v[224:227], {vL16}, {SRD['x']}, {sM1} offen", "strow")
            e(f"buffer_load_dwordx4 v[228:231], {vL16}, {SRD['x']}, {sM1} offen offset:1024", "strow")
        if o.get("stamps"):
            e("v_mov_b32 v179, 0")
            e("v_writelane_b32 v179, s100, 0")
        self.stamp(S, "karg")
        for nm, p in (("qkv", 66), ("wo", 68), ("w1", 72), ("b1", 74), ("w2", 76), ("out", 78)):
            b = int(SRD[nm][2:].split(":")[0])
            e(f"s_mov_b64 s[{b}:{b + 1}], s[{p}:{p + 1}]")
        for nm in ("qkv", "w1"):
            b = int(SRD[nm][2:].split(":")[0])
            e(f"s_mov_b32 s{b + 2}, {KARG[nm][1]}")
            e(f"s_mov_b32 s{b + 3}, 0x20000")
        S += self.setup_now()
        if o.get("pfpos", "a0") == "a0":
            st, ld = self.pf_w2("chip")
            S += st + ld
        if o.get("dual", 1) and o.get("touch", 1):
            S += [I(f"s_and_b32 {sA}, s2, 7"), I(f"s_lshl_b32 {sA}, {sA}, 2"), I(f"s_lshr_b32 {sB}, s2, 6"), I(f"s_add_u32 {sA}, {sA}, {sB}"),
                  I(f"s_lshl_b32 {sA}, {sA}, 7"), I(f"s_add_u32 {sA}, {sA}, {WS_AF + WS_DUAL}"), I(f"s_min_u32 {sB}, {sW}, 2"),
                  I(f"s_lshl_b32 {sB}, {sB}, 12"), I(f"s_add_u32 {sA}, {sA}, {sB}"), I(f"v_mov_b32 {vPFa}, 0"),
                  I(f"buffer_load_dword {vPFd}, {vPFa}, {SRD['ws']}, {sA} offen")]
        e(f"s_bitcmp1_b32 {sJ}, 0")
        e("s_cbranch_scc1 L_typeB")
        return S

    def dma_a(self, s, typ):
        srd, stride = (SRD["qkv"], 3072) if typ == "A" else (SRD["w1"], 2752)
        slot = SLOT[s % 3]
        tag = f"a{s}"
        G = []
        mul = I(f"s_mul_i32 {sWO}, {sXk[s]}, {stride // 2}")
        if s:
            for pp in range(4):
                off = f" offset:{1024 * pp}" if pp else ""
                ins = I(f"buffer_load_dwordx4 {v(vXs[pp])}, {SRD['x']}, {sXk[s]} offen{off} lds", tag)
                G.append(([I(f"s_add_u32 m0, {sW8K}, {slot}"), mul] if pp == 0 else []) + [ins])
        for g in range(2):
            G.append(([mul] if (s == 0 and g == 0) else []) + [I(f"s_add_u32 m0, {sW8K}, {slot + 4096 + 2048 * g}"),
                      I(f"buffer_load_dwordx4 {v(vWs[2 * g])}, {srd}, {sWO} offen lds", tag)])
            G.append([I(f"buffer_load_dwordx4 {v(vWs[2 * g + 1])}, {srd}, {sWO} offen offset:1024 lds", tag)])
        return G

    def dma_b(self, b, typ):
        srd, stride = (SRD["w1"], 2752) if typ == "A" else (SRD["qkv"], 3072)
        tag = f"b{b}s"
        if self.opt.get("bswap", 0):
            pre = [I(f"s_xor_b32 m0, s90, {8192 * bpos(b)}"), I(f"s_xor_b32 {sWO}, {sXk[b]}, s91"),
                   I(f"s_add_u32 m0, m0, {sW2K}"), I(f"s_mul_i32 {sWO}, {sWO}, {stride // 2}")]
        else:
            pre = [I(f"s_add_u32 m0, {sW2K}, {8192 * bpos(b)}"), I(f"s_mul_i32 {sWO}, {sXk[b]}, {stride // 2}")]
        return [pre + [I(f"buffer_load_dwordx4 {v(vBs[0])}, {srd}, {sWO} offen lds", tag)],
                [I(f"buffer_load_dwordx4 {v(vBs[1])}, {srd}, {sWO} offen offset:1024 lds", tag)]]

    def dma_w2(self, n):
        kind, T = ORDER[n]
        srd = SRD["w2"] if kind == "f" else SRD["wo"]
        return [I(f"s_add_u32 m0, {sW1K}, {pc_addr(n)}"), I(f"s_mov_b32 {sWO}, {T * 32768}"),
                I(f"buffer_load_dwordx4 {vW2s}, {srd}, {sWO} offen lds", f"c{n}")]

    def code_touch(self):
        lb = self.label("pc")
        S = [I("s_getpc_b64 s[84:85]"), I(f"{lb}:"), I(f"s_sub_u32 s84, s84, {lb}-{NAME}_kernel"), I("s_subb_u32 s85, s85, 0"),
             I(f"s_mov_b32 s86, L_codeend-{NAME}_kernel"), I("s_mov_b32 s87, 0x20000"),
             I(f"s_lshr_b32 {sA}, s2, 3"), I(f"s_lshl_b32 {sA}, {sA}, 2"), I(f"s_add_u32 {sA}, {sA}, {sW}"), I(f"s_lshl_b32 {sA}, {sA}, 9"),
             I(f"v_and_b32 v219, 3, {vLane}"), I(f"v_lshl_add_u32 v219, v219, 7, {sA}")]
        return S, [I(f"buffer_load_dword {vPFd}, v219, s[84:87], 0 offen")]

    def pf_w2(self, kind):
        again = kind == "chip2"
        if again:
            kind = "chip"
        sh = 7 if kind == "chip" else 10
        r0 = 84 if again else 92
        va = "v220" if kind == "chip" else vPFa
        S = []
        e = lambda t, tag=None: S.append(I(t, tag))
        idx = "s2" if (kind == "chip" and not again) else sA
        if again:
            e(f"s_add_u32 {sA}, s2, {self.opt.get('pf2d', 1)}")
            e(f"s_and_b32 {sA}, {sA}, 255")
        if kind == "col":
            e(f"s_lshr_b32 {sA}, s2, 3")
        e(f"s_mul_i32 {sB}, {idx}, 43")
        e(f"s_mul_i32 {sC}, {sW}, 22")
        e(f"s_add_u32 {sB}, {sB}, {sC}")
        e(f"s_lshl_b32 {sC}, {idx}, 4")
        e(f"s_cmp_ge_u32 {sW}, 2")
        e(f"s_cselect_b32 {sB}, {sC}, {sB}")
        e(f"s_cselect_b32 s{r0}, s16, s20")
        e(f"s_cselect_b32 s{r0 + 1}, s17, s21")
        e(f"s_lshl_b32 {sB}, {sB}, {sh}")
        if kind == "col":
            e(f"s_add_u32 {sB}, {sB}, 384")
        e(f"s_add_u32 s{r0}, s{r0}, {sB}")
        e(f"s_addc_u32 s{r0 + 1}, s{r0 + 1}, 0")
        e(f"s_lshl_b32 {sC}, {sW}, 3")
        e(f"s_lshr_b32 s{r0 + 2}, {0x00101516}, {sC}")
        e(f"s_and_b32 s{r0 + 2}, s{r0 + 2}, 0xff")
        e(f"s_lshl_b32 s{r0 + 2}, s{r0 + 2}, {sh}")
        if kind == "col":
            e(f"s_sub_u32 s{r0 + 2}, s{r0 + 2}, 512")
            e(f"s_max_i32 s{r0 + 2}, s{r0 + 2}, 0")
        e(f"s_mov_b32 s{r0 + 3}, 0x20000")
        e(f"v_lshlrev_b32 {va}, {sh}, {vLane}")
        return S, [I(f"buffer_load_dword {vPFd}, {va}, s[{r0}:{r0 + 3}], 0 offen")]

    def reads1(self, T):
        s, tau = divmod(T, 4)
        slot = s % 3
        xr = vXrA if slot < 2 else vXrB
        wr = vWrA if slot < 2 else vWrB
        so = 32768 if slot == 1 else 0
        buf = T & 1
        wrd = lambda g, u, tag: I(f"ds_read_b64_tr_b16 {v(vWf[buf][g] + 2 * u, 2)}, {v(wr[tau & 1])} offset:{so + (tau & 2) * 8192 + 2048 * g + 512 * u}", tag)
        xrd = lambda g, tag: I(f"ds_read_b128 {a(8 * T + 4 * g, 4)}, {v(xr[tau])} offset:{so + 8192 * g}", tag)
        return ([wrd(0, 0, f"r{T}a"), wrd(0, 1, f"r{T}a"), xrd(0, f"r{T}a")],
                [xrd(1, f"r{T}b"), wrd(1, 0, f"r{T}c"), wrd(1, 1, f"r{T}c")])

    def mfma1(self, T, typ):
        buf = T & 1
        big, sm = [], []
        for g in range(2):
            for gg in range(2):
                acc = v(vAcc1(g, gg), 16)
                xf, wf = a(8 * T + 4 * gg, 4), v(vWf[buf][g], 4)
                A_, B_ = (xf, wf) if typ == "A" else (wf, xf)
                big.append(I(f"v_mfma_f32_32x32x16_bf16 {acc}, {A_}, {B_}, {'0' if T == 0 else acc}"))
            if (T & 1) == 0:
                cs = v(vCs[g], 4)
                sm.append(I(f"v_mfma_f32_16x16x32_bf16 {cs}, {v(vSel, 4)}, {v(vWf[buf][g], 4)}, {'0' if T == 0 else cs}"))
        if self.opt.get("snake", 0):
            big[2], big[3] = big[3], big[2]
        return big, sm

    def reads2(self, T):
        b, tau = divmod(T, 4)
        return [I(f"ds_read_b64_tr_b16 {v(48 + 4 * (T & 3) + 2 * u, 2)}, {v(vBr[tau & 1])} offset:{8192 * bpos(b) + (tau & 2) * 2048 + 512 * u}", f"q{T}")
                for u in range(2)]

    def mfma2(self, T):
        wf = v(48 + 4 * (T & 3), 4)
        big = [I(f"v_mfma_f32_32x32x16_bf16 {v(vAcc2(gg), 16)}, {wf}, {a(8 * T + 4 * gg, 4)}, {'0' if T == 0 else v(vAcc2(gg), 16)}") for gg in range(2)]
        cs = v(vCs[2], 4)
        return big, I(f"v_mfma_f32_16x16x32_bf16 {cs}, {v(vSel, 4)}, {wf}, {'0' if T == 0 else cs}")

    def setup_now(self):
        S = []
        e = lambda t, tag=None: S.append(I(t, tag))
        for nm in ("ws", "w2", "wo"):
            b = int(SRD[nm][2:].split(":")[0])
            e(f"s_mov_b32 s{b + 2}, {KARG[nm][1]}")
            e(f"s_mov_b32 s{b + 3}, 0x20000")
        e(f"s_and_b32 {sRH}, {sW}, 1")
        e(f"s_lshr_b32 {sCH}, {sW}, 1")
        for k in range(1, 8):
            e(f"s_add_u32 {sXk[k]}, {sXk[k - 1]}, 128")
            e(f"s_and_b32 {sXk[k]}, {sXk[k]}, 0x380")
        e(f"v_and_b32 v232, 31, {vLane}")
        e(f"v_lshrrev_b32 v233, 5, {vLane}")
        e(f"v_lshlrev_b32 {v(vP32)}, 2, v232")
        e("v_bfe_u32 v234, v232, 1, 3")
        e("v_xor_b32 v234, v234, v233")
        e(f"s_lshl_b32 {sA}, {sRH}, 14")
        e(f"s_add_u32 {sA}, {sA}, {SLOT0}")
        e(f"v_lshl_add_u32 v235, v232, 7, {sA}")
        e(f"s_lshl_b32 {sB}, {sRH}, 1")
        e(f"v_xor_b32 v234, {sB}, v234")
        e(f"v_lshl_add_u32 {v(vXrA[0])}, v234, 4, v235")
        for tau in range(1, 4):
            e(f"v_xor_b32 {v(vXrA[tau])}, {32 * tau}, {v(vXrA[0])}")
        for tau in range(4):
            e(f"v_add_u32 {v(vXrB[tau])}, 65536, {v(vXrA[tau])}")
        e(f"v_bfe_u32 v234, {vLane}, 2, 2")
        e(f"v_bfe_u32 v238, {vLane}, 4, 1")
        e("v_lshlrev_b32 v238, 5, v238")
        e(f"v_and_b32 v236, 3, {vLane}")
        e("v_lshl_add_u32 v238, v236, 3, v238")
        e("v_lshrrev_b32 v236, 1, v234")
        e(f"v_xor_b32 v236, {sCH}, v236")
        e("v_lshl_add_u32 v236, v236, 6, v238")
        e("v_lshl_add_u32 v237, v233, 3, v234")
        e("v_lshl_add_u32 v237, v237, 7, v236")
        e(f"s_lshl_b32 {sA}, {sRH}, 13")
        e(f"s_add_u32 {sB}, {sA}, {SLOT0 + 4096}")
        e(f"s_sub_u32 {sC}, {SLOT0 + 4096 + 8192}, {sA}")
        e(f"v_add_u32 {v(vWrA[0])}, {sB}, v237")
        e(f"v_add_u32 {v(vWrA[1])}, {sC}, v237")
        e(f"v_add_u32 {v(vWrB[0])}, 65536, {v(vWrA[0])}")
        e(f"v_add_u32 {v(vWrB[1])}, 65536, {v(vWrA[1])}")
        e(f"v_lshrrev_b32 v234, 2, {vLane}")
        e(f"v_xor_b32 v234, v234, {vLane}")
        e("v_and_b32 v234, 4, v234")
        e("v_cmp_eq_u32 vcc, 0, v234")
        e(f"v_mov_b32 {v(vNE + 1)}, 0x3f803f80")
        for r in range(4):
            e(f"v_cndmask_b32 {v(vSel + r)}, 0, {v(vNE + 1)}, vcc")
        e(f"v_cmp_eq_u32 vcc, 63, {vLane}")
        e(f"v_mov_b32 v124, {OOB}")
        e(f"s_lshl_b32 {sM0}, {sM0}, 3")
        e(f"s_add_u32 {sM0}, {sM0}, {WS_STAT}")
        e("v_cndmask_b32 v124, v124, 0, vcc")
        return S

    def setup_later(self, typ):
        S = []
        e = lambda t, tag=None: S.append(I(t, tag))
        e(f"v_cmp_eq_u32 vcc, 0, {vLane}")
        e(f"v_mov_b32 v222, {OOB}")
        e(f"v_mov_b32 {v(vZero)}, 0")
        e(f"v_cndmask_b32 {vL0}, v222, 0, vcc")
        if typ == "A":
            e(f"s_sub_u32 {sB}, {sW}, 3")
            e(f"s_lshr_b32 {sC}, {sI}, 1")
            e(f"s_or_b32 {sB}, {sB}, {sC}")
            e(f"s_cmp_eq_u32 {sB}, 0")
            e(f"s_cselect_b32 {sB}, 0, {OOB}")
            e(f"s_lshl_b32 {sA}, {sP}, 1")
            e(f"s_add_u32 {sA}, {sA}, {sI}")
            e(f"s_lshl_b32 {sC}, {sA}, 12")
            e(f"s_add_u32 {sC}, {sC}, {sB}")
            e(f"v_add_u32 v194, {sC}, {vL16}")
            e(f"s_lshl_b32 {sC}, {sA}, 7")
            e(f"s_add_u32 {sC}, {sC}, {sB}")
            e(f"v_add_u32 v195, {sC}, {vL0}")
            e(f"v_min_u32 v195, {OOB}, v195")
            for r in range(4):
                e(f"v_mov_b32 v{196 + r}, 0")
            S.append(Rel([[I(f"s_mov_b32 {sG}, {WS_KV}")] +
                          [I(f"buffer_store_dwordx4 v[196:199], v194, {SRD['ws']}, {sG} offen offset:{1024 * k} sc1", "zst") for k in range(3)]]))
        e(f"s_mov_b32 s26, {KARG['b1'][1]}")
        e("s_mov_b32 s27, 0x20000")
        e(f"v_lshrrev_b32 v221, 1, {v(vP32)}")
        if typ == "A":
            e(f"s_mul_i32 {sT1}, {sP}, 6")
            e(f"s_lshr_b32 {sA}, {sP}, 1")
            e(f"s_add_u32 {sA}, {sA}, 43")
            e(f"s_and_b32 {sB}, {sP}, 3")
            e(f"s_cmp_eq_u32 {sB}, 3")
            e(f"s_cselect_b32 {sT0}, {sA}, {sT1}")
            dst = [(sT1, vB2)]
        else:
            dst = [(sT0, vWa[0] + 1), (sT1, vWa[1] + 1)]
        S.append(Rel([[I(f"s_add_u32 {sG}, {st}, {sCH}"), I(f"s_lshl_b32 {sG}, {sG}, 6"),
                       I(f"buffer_load_ushort {v(d)}, v221, {SRD['b1']}, {sG} offen", "b1")] for st, d in dst]))
        e(f"s_lshl_b32 {sW2K}, {sW}, 11")
        e(f"s_add_u32 {sW2K}, {sW2K}, {BBASE}")
        e(f"s_and_b32 s91, {sI}, 1")
        e("s_lshl_b32 s90, s91, 15")
        e("s_lshl_b32 s91, s91, 9")
        e(f"s_lshl_b32 {sW1K}, {sW}, 10")
        stride = 2752 if typ == "A" else 3072
        e(f"v_mul_u32_u24 v222, {stride}, v239")
        e(f"s_mul_i32 {sA}, {sP}, {384 if typ == 'A' else 128}")
        if typ == "A" and self.opt.get("zgarb", 1):
            e(f"s_and_b32 {sB}, {sP}, 3")
            e(f"s_cmp_eq_u32 {sB}, 3")
            e(f"s_cselect_b32 {sA}, {OOB >> 1}, {sA}")
        e(f"v_add3_u32 {v(vBs[0])}, v222, v242, {sA}")
        e(f"v_add_u32 {v(vBs[1])}, {8 * stride - 1024}, {v(vBs[0])}")
        e(f"s_lshl_b32 {sA}, {sRH}, 11")
        e(f"s_add_u32 {sB}, {sA}, {BBASE}")
        e(f"s_sub_u32 {sC}, {BBASE + 2048}, {sA}")
        e(f"v_add_u32 {v(vBr[0])}, {sB}, v237")
        e(f"v_add_u32 {v(vBr[1])}, {sC}, v237")
        e(f"s_lshl_b32 {sA}, {sP}, 1")
        e(f"s_add_u32 {sA}, {sA}, {sCH}")
        e(f"s_lshl_b32 {sB}, {sI}, 1")
        e(f"s_add_u32 {sB}, {sB}, {sRH}")
        e(f"s_lshl_b32 {sM0}, {sB}, 9")
        e(f"s_add_u32 {sM0}, {sM0}, {WS_STAT}")
        e(f"v_lshlrev_b32 {vStA}, 1, {v(vP32)}")
        e(f"s_lshl_b32 {sC}, {sA}, 7")
        e(f"s_add_u32 {sZF}, {sC}, {WS_ZF}")
        S.append("STATREADY")
        e(f"s_add_u32 {sPKV}, {sC}, {WS_KVF}")
        e(f"s_lshl_b32 {sKV}, {sA}, 12")
        e(f"s_add_u32 {sKV}, {sKV}, {WS_KV}")
        e(f"s_lshl_b32 {sC}, {sB}, 2")
        e(f"s_add_u32 {sFKV}, {sPKV}, {sC}")
        e(f"s_lshl_b32 {sActB}, {sB}, {18 + self.fs}")
        e(f"s_add_u32 {sActB}, {sActB}, {WS_ACT}")
        e(f"s_lshl_b32 {sB}, {sB}, 5")
        e(f"s_add_u32 {sB}, {sB}, {sA}")
        e(f"s_lshl_b32 {sB}, {sB}, 2")
        e(f"s_add_u32 {sFAct}, {sB}, {WS_AF if typ == 'A' else WS_BF}")
        e(f"s_add_u32 {sFO}, {sB}, {WS_OF}")
        e(f"s_and_b32 {sR2}, s2, 7")
        e(f"s_lshl_b32 {sR2}, {sR2}, 2")
        e(f"s_lshr_b32 {sA}, s2, 6")
        e(f"s_add_u32 {sR2}, {sR2}, {sA}")
        e(f"s_lshr_b32 {sC2}, s2, 3")
        e(f"s_and_b32 {sC2}, {sC2}, 7")
        if self.opt.get("c2x", 1):
            e(f"s_xor_b32 {sC2}, {sC2}, {self.opt.get('c2x', 1)}")
        e(f"s_lshl_b32 {sA}, {sW}, 3")
        e(f"v_add_lshl_u32 v222, {sA}, v240, 10")
        e(f"s_lshl_b32 {sA}, {sC2}, 7")
        e(f"v_add3_u32 {vW2s}, v222, v242, {sA}")
        e(f"v_cmp_gt_u32 vcc, 32, {vLane}")
        e(f"v_mov_b32 {v(vEL + 1)}, {f2u(LOG2E)}")
        e(f"v_lshlrev_b32 {vL4}, 2, {vLane}")
        e(f"v_cndmask_b32 {vMH0}, 0, -1, vcc")
        e(f"v_mov_b32 {v(vEL)}, {f2u(1e-6)}")
        e(f"v_mov_b32 {v(vNE)}, {f2u(-1e-6 * LOG2E)}")
        e(f"v_mov_b32 {v(vC12)}, {f2u(-2 * LN2)}")
        e(f"v_mov_b32 {v(vC12 + 1)}, {f2u(LN2)}")
        for r in (vXa[0] + 2, vXa[0] + 3, vXa[1] + 2, vXa[1] + 3, vWa[0] + 2, vWa[0] + 3, vWa[1] + 2, vWa[1] + 3):
            e(f"v_mov_b32 {v(r)}, 0")
        if typ == "A":
            e(f"v_mov_b32 {v(vWa[0] + 1)}, 0")
            e(f"v_mov_b32 {v(vWa[1] + 1)}, 0")
        e(f"v_and_b32 v222, 16, {vLane}")
        e(f"v_cmp_eq_u32 {sSET0}, 0, v222")
        e(f"s_lshl_b32 {sA}, {sW}, 9")
        e(f"v_add_u32 {vCsW}, {sA}, {vL4}")
        e(f"v_xor_b32 {vCsR}, 512, {vCsW}")
        if self.opt.get("colpos", "a7") == "a7":
            S += self.pf_w2("col")[0]
        return S

    def setup_p2a(self):
        S = []
        e = lambda t, tag=None: S.append(I(t, tag))
        e(f"v_bfe_u32 v224, {vLane}, 2, 2")
        e(f"v_lshrrev_b32 v226, 5, {vLane}")
        e("v_lshl_add_u32 v225, v226, 2, v224")
        e("v_lshlrev_b32 v225, 7, v225")
        e(f"v_bfe_u32 v226, {vLane}, 4, 1")
        e("v_lshl_add_u32 v225, v226, 5, v225")
        e(f"v_and_b32 v226, 3, {vLane}")
        e("v_lshl_add_u32 v225, v226, 3, v225")
        e(f"s_lshl_b32 {sA}, {sCH}, 11")
        e(f"s_add_u32 {sA}, {sA}, {SLOT0}")
        e("v_lshrrev_b32 v224, 1, v224")
        e(f"v_xor_b32 v224, {sCH}, v224")
        e("v_lshl_add_u32 v225, v224, 6, v225")
        e(f"v_add_u32 {v(vP2r[0][0])}, {sA}, v225")
        e(f"v_xor_b32 {v(vP2r[0][1])}, 64, {v(vP2r[0][0])}")
        for rg in (1, 2):
            for t in range(2):
                e(f"v_add_u32 {v(vP2r[rg][t])}, {65536 * rg}, {v(vP2r[0][t])}")
        if self.fs:
            assert self.opt.get("map", "r") == "r"
            e(f"s_and_b32 {sA}, {sI}, 7")
            e(f"s_cmp_eq_u32 {sA}, 3")
            e(f"s_cselect_b32 {sA}, 5, {sA}")
            e(f"s_lshl_b32 {sA}, {sA}, 7")
            e(f"s_add_u32 {sA}, {sA}, {1024 - 384}")
            e(f"v_lshrrev_b32 v224, 3, {vLane}")
            e("v_cmp_eq_u32 vcc, 3, v224")
            e(f"v_add_u32 v225, {sA}, {vL16}")
            e(f"v_cndmask_b32 {self.vact}, {vL16}, v225, vcc")
        return S

    def setup_p2b(self):
        S = []
        e = lambda t, tag=None: S.append(I(t, tag))
        e(f"v_lshrrev_b32 v20, 5, {vLane}")
        e(f"s_lshl_b32 {sA}, {sR2}, 7")
        e(f"s_add_u32 {sPB}, {sA}, {WS_BF}")
        e(f"s_add_u32 {sPA}, {sA}, {WS_AF}")
        e(f"s_add_u32 {sPO}, {sA}, {WS_OF}")
        e(f"s_lshl_b32 {sA}, {sR2}, 1")
        e(f"s_add_u32 {sA}, {sA}, {sRH}")
        e(f"s_lshl_b32 {sB}, {sA}, 7")
        e(f"s_add_u32 {sB}, {sB}, {sCH}")
        e(f"s_lshl_b32 {sB}, {sB}, {10 + self.fs}")
        e(f"s_add_u32 {sAct2}, {sB}, {WS_ACT}")
        e(f"s_lshl_b32 {sA}, {sA}, 15")
        e(f"s_lshl_b32 {sB}, {sC2}, 1")
        e(f"s_add_u32 {sB}, {sB}, {sCH}")
        e(f"s_lshl_b32 {sB}, {sB}, 6")
        e(f"s_add_u32 {sA}, {sA}, {sB}")
        e("v_lshlrev_b32 v20, 4, v20")
        e(f"v_lshl_add_u32 v20, {v(vP32)}, 8, v20")
        e(f"v_add_u32 v0, {sA}, v20")
        e(f"s_mov_b32 s30, {KARG['out'][1]}")
        e("s_mov_b32 s31, 0x20000")
        e(f"v_and_b32 {vP16}, 60, {v(vP32)}")
        e(f"v_lshrrev_b32 v19, 1, {vP16}")
        e(f"v_and_b32 v19, v19, {vP16}")
        e("v_and_b32 v19, 8, v19")
        e(f"v_xor_b32 {vPA16}, v19, {vP16}")
        e(f"s_lshl_b32 {sA}, {sW}, 12")
        e(f"s_add_u32 {sA}, {sA}, {RED}")
        e(f"v_add_u32 v19, {sA}, {vL16}")
        e(f"s_xor_b32 {sA}, {sW}, 2")
        e(f"s_lshl_b32 {sA}, {sA}, 12")
        e(f"s_add_u32 {sA}, {sA}, {RED}")
        e(f"v_add_u32 v20, {sA}, {vL16}")
        return S

    def stats_produce(self):
        S = []
        e = lambda t, tag=None: S.append(I(t, tag))
        base = [224, 228]
        acc = [112, 113, 114, 115]
        for k in range(2):
            e(f"v_dot2_f32_bf16 {v(acc[k])}, {v(base[k])}, {v(vNE + 1)}, 0")
            e(f"v_dot2_f32_bf16 {v(acc[2 + k])}, {v(base[k])}, {v(base[k])}, 0")
        for d in range(1, 4):
            for k in range(2):
                e(f"v_dot2_f32_bf16 {v(acc[k])}, {v(base[k] + d)}, {v(vNE + 1)}, {v(acc[k])}")
                e(f"v_dot2_f32_bf16 {v(acc[2 + k])}, {v(base[k] + d)}, {v(base[k] + d)}, {v(acc[2 + k])}")
        e("s_nop 2")
        for m in ("row_ror:8 row_mask:0xf", "row_ror:4 row_mask:0xf", "row_ror:2 row_mask:0xf", "row_ror:1 row_mask:0xf",
                  "row_bcast:15 row_mask:0xa", "row_bcast:31 row_mask:0xc"):
            for k in range(4):
                e(f"v_add_f32_dpp {v(acc[k])}, {v(acc[k])}, {v(acc[k])} {m} bank_mask:0xf")
        for k in range(4):
            e(f"v_mul_f32 {v(acc[k])}, {f2u(1.0 / 512)}, {v(acc[k])}")
        for k in range(2):
            e(f"v_fma_f32 {v(acc[2 + k])}, -{v(acc[k])}, {v(acc[k])}, {v(acc[2 + k])}")
        for k in range(2):
            e(f"v_max_f32 {v(acc[2 + k])}, 0, {v(acc[2 + k])}")
        e("v_cvt_pk_bf16_f32 v116, v114, v115")
        e("v_lshlrev_b32 v117, 16, v116")
        e("v_and_b32 v118, 0xffff0000, v116")
        e(f"v_add_f32 v117, {f2u(1e-5)}, v117")
        e(f"v_add_f32 v118, {f2u(1e-5)}, v118")
        e("v_cvt_pk_bf16_f32 v116, v117, v118")
        e("v_lshlrev_b32 v117, 16, v116")
        e("v_and_b32 v118, 0xffff0000, v116")
        e("v_sqrt_f32 v117, v117")
        e("v_sqrt_f32 v118, v118")
        S.append(W("lg"))
        e(f"s_add_u32 {sT}, {sE}, {TAGC}")
        e(f"v_mov_b32 {vTag}, {sT}")
        e(f"v_mov_b32 v121, {sT}")
        e(f"v_mov_b32 v123, {sT}")
        e("v_cvt_pk_bf16_f32 v120, v112, v117")
        e("v_cvt_pk_bf16_f32 v122, v113, v118")
        e(f"buffer_store_dwordx4 v[120:123], v124, {SRD['ws']}, {sM1} offen sc1")
        return S

    def head(self, typ):
        o = self.opt
        S = [Hold(True)]
        S += [Rel(self.dma_a(1, typ)), Flush(o.get("early1", 2))]
        later = [x for x in self.setup_later(typ) if x != "STATREADY"]
        late_groups = [g for x in later if isinstance(x, Rel) for g in x.groups]
        S += [I(f"s_mov_b32 {sM1}, {sM0}")] + [x for x in later if not isinstance(x, Rel)]
        self.stamp(S, "setup")
        S.append(W("vm", "strow"))
        self.stamp(S, "strow")
        S += [Hold(False), Pace(o.get("pace0", 40))] + self.stats_produce()
        self.stamp(S, "stats")
        S.append(Flush())
        self.stamp(S, "prea0")
        S.append(Rel(self.dma_a(2, typ) + late_groups))
        return S

    def stat_loads(self, typ):
        G = [I(f"buffer_load_dwordx2 {v(vSt[0], 2)}, {vStA}, {SRD['ws']}, {sM0} offen sc1", "stat"),
             I(f"buffer_load_dwordx2 {v(vSt[1], 2)}, {vStA}, {SRD['ws']}, {sM0} offen offset:256 sc1", "stat")]
        if typ == "A":
            G.append(I(f"buffer_load_dword {v(vZf)}, {v(vZero)}, {SRD['ws']}, {sZF} offen sc1", "stat"))
        return G

    def stat_check(self, typ):
        S = []
        e = lambda t, tag=None: S.append(I(t, tag))
        slow, back = self.label("slow"), self.label("back")
        cmp = [f"v_xor_b32 v222, {sT}, {v(vSt[0] + 1)}", f"v_xor_b32 v223, {sT}, {v(vSt[1] + 1)}", "v_or_b32 v222, v222, v223"]
        if typ == "A":
            cmp += [f"v_xor_b32 v223, {sT}, {v(vZf)}", "v_or_b32 v222, v222, v223"]
        cmp.append("v_cmp_ne_u32 vcc, 0, v222")
        S.append(W("vm", "stat"))
        for t in cmp:
            e(t)
        e(f"s_cbranch_vccnz {slow}")
        e(f"{back}:")
        self.slow += [f"{slow}:", f"s_mov_b32 {sCnt}, {SPIN}", f"{slow}_l:", f"s_sleep {self.opt.get('sleep', 2)}"] + \
            [it.t for it in self.stat_loads(typ)] + ["s_waitcnt vmcnt(0)"] + cmp + \
            [f"s_cbranch_vccz {back}", f"s_sub_u32 {sCnt}, {sCnt}, 1", f"s_cbranch_scc0 {slow}_l", f"s_branch {back}"]
        for gg in range(2):
            g = v(vSt[gg])
            e(f"v_and_b32 v222, 0xffff, {g}")
            e(f"v_and_b32 v223, 0xffff0000, {g}")
            e("v_xor_b32 v222, 0x8000, v222")
            e(f"v_rcp_f32 {v(vRs[gg])}, v223")
            e("v_lshl_or_b32 v222, v222, 16, v222")
            e(f"v_lshrrev_b32 v223, 16, {g}")
            e(f"v_and_b32 {v(vXa[gg])}, {vMH0}, v222")
            e(f"v_and_b32 {v(vXa[gg] + 1)}, {vMH0}, v223")
            e(f"v_mul_f32 {v(vRs[gg] + 1)}, {v(vEL + 1)}, {v(vRs[gg])}")
        if typ == "A":
            e(f"s_lshl_b32 {sA}, {sW}, 8")
            e(f"v_add_u32 v222, {sA}, {v(vP32)}")
            e(f"v_lshrrev_b32 v223, 5, {vLane}")
            e(f"ds_write_b32 v222, {v(vRs[0])} offset:{SC_RS}")
            e(f"ds_write_b32 v222, {v(vRs[1])} offset:{SC_RS + 128}")
            e(f"v_lshl_add_u32 v223, v223, 4, {sA}")
            for gg in range(2):
                for jj in range(4):
                    e(f"ds_read_b128 {v(vRsA[gg] + 4 * jj, 4)}, v223 offset:{SC_RS + 128 * gg + 32 * jj}", "rs")
        S.append(W("vm", "b1"))
        e(f"s_add_u32 s24, s32, {WS_DUAL}")
        e("s_addc_u32 s25, s33, 0")
        e(f"s_mov_b32 s26, {WS_BYTES - WS_DUAL}")
        e(f"v_mov_b32 {v(vWa[2] + 1)}, {v(vB2) if typ == 'A' else 0}")
        e(f"v_mov_b32 {v(vWa[2] + 2)}, 0")
        e(f"v_mov_b32 {v(vWa[2] + 3)}, 0")
        return S

    def poll_issue(self, line_s, vaddr, reg, tag, dual=False):
        off = f" offset:{0}" if not dual else ""
        if dual and self.opt.get("dual", 1):
            return I(f"buffer_load_dword {reg}, {vaddr}, {SRD['ws2']}, {line_s} offen sc1", tag)
        return I(f"buffer_load_dword {reg}, {vaddr}, {SRD['ws']}, {line_s} offen sc1", tag)

    def poll_check(self, line_s, vaddr, reg, tag, prelude=(), dual=False):
        slow, back = self.label("slow"), self.label("back")
        L = [f"{slow}:"] + list(prelude) + [f"s_mov_b32 {sCnt}, {SPIN}", f"{slow}_l:", f"s_sleep {self.opt.get('sleep', 2)}"]
        one = lambda srd: [f"buffer_load_dword {reg}, {vaddr}, {srd}, {line_s} offen sc1", "s_waitcnt vmcnt(0)",
                           f"v_cmp_ne_u32 vcc, {sT}, {reg}", f"s_cbranch_vccz {back}"]
        if dual and self.opt.get("dual", 1):
            L += one(SRD["ws2"]) + [f"s_sub_u32 {sCnt}, {sCnt}, 1", f"s_and_b32 {sM1}, {sCnt}, 7", f"s_cbranch_scc1 {slow}_l"]
        L += one(SRD["ws"]) + [f"s_sub_u32 {sCnt}, {sCnt}, 1", f"s_cbranch_scc0 {slow}_l", f"s_branch {back}"]
        self.slow += L
        return [W("vm", tag), I(f"v_cmp_ne_u32 vcc, {sT}, {reg}"), I(f"s_cbranch_vccnz {slow}"), I(f"{back}:")]

    def flag(self, tag, sreg, dual=False):
        S = [W("vm", tag)]
        if dual and self.opt.get("dual", 1):
            S.append(I(f"buffer_store_dword {vTag}, {vL0}, {SRD['ws2']}, {sreg} offen"))
        return S + [I(f"buffer_store_dword {vTag}, {vL0}, {SRD['ws']}, {sreg} offen sc1")]

    def cs_write(self, regs):
        return [I(f"ds_write_b32 {vCsW}, {v(r)} offset:{SC_CS + 256 * k}") for k, r in enumerate(regs)]

    def cs_read(self, regs):
        return [I(f"ds_read_b32 {v(r + 1)}, {vCsR} offset:{SC_CS + 256 * k}", "cs") for k, r in enumerate(regs)]

    def aug_v(self, cs, wa):
        return [I(f"v_add_f32 {v(cs)}, {v(cs)}, {v(cs + 1)}"), I(f"v_cvt_pk_bf16_f32 {v(cs + 1)}, {v(cs)}, {v(cs)}"),
                I(f"v_and_b32 {v(cs + 1)}, 0xffff0000, {v(cs + 1)}"), I(f"v_sub_f32 {v(cs + 2)}, {v(cs)}, {v(cs + 1)}"),
                I(f"v_cvt_pk_bf16_f32 {v(wa)}, {v(cs + 1)}, {v(cs + 2)}")]

    def aug_m(self, wa, accs, normal):
        S = []
        for gg, acc in enumerate(accs):
            A_, B_ = (v(vXa[gg], 4), v(wa, 4)) if normal else (v(wa, 4), v(vXa[gg], 4))
            S.append(I(f"v_mfma_f32_32x32x16_bf16 {v(acc, 16)}, {A_}, {B_}, {v(acc, 16)}"))
        return S

    def mish(self, acc, gg, st):
        S = []
        e = lambda t, tag=None: S.append(I(t, tag))
        E, U, P = vT, vT + 8, vT + 16
        e(f"s_add_u32 {sD}, {st}, {sCH}")
        e(f"s_lshl_b32 {sD}, {sD}, {11 + self.fs}")
        e(f"s_add_u32 {sD}, {sD}, {sActB}")
        if gg:
            e(f"s_add_u32 {sD}, {sD}, {131072 << self.fs}")
        for half in range(2):
            b = acc + 8 * half
            po = P + 4 * half
            Q = (0, 2, 4, 6)
            for r in Q:
                e(f"v_pk_mul_f32 {v(E + r, 2)}, {v(b + r, 2)}, {v(vRs[gg], 2)} op_sel:[0,1] op_sel_hi:[1,1]")
            for r in range(8):
                e(f"v_exp_f32 {v(U + r)}, {v(E + r)}")
            for r in Q:
                e(f"v_pk_add_f32 {v(U + r, 2)}, {v(U + r, 2)}, 1.0 op_sel_hi:[1,0]")
            for r in Q:
                e(f"v_pk_fma_f32 {v(U + r, 2)}, {v(U + r, 2)}, {v(U + r, 2)}, 1.0 op_sel_hi:[1,1,0]")
            for r in range(8):
                e(f"v_rcp_f32 {v(U + r)}, {v(U + r)}")
            for r in Q:
                e(f"v_pk_fma_f32 {v(U + r, 2)}, {v(U + r, 2)}, {v(vC12, 2)}, {v(vC12, 2)} op_sel:[0,0,1] op_sel_hi:[1,0,1]")
            for r in Q:
                e(f"v_pk_mul_f32 {v(E + r, 2)}, {v(E + r, 2)}, {v(U + r, 2)}")
            for r in Q:
                e(f"v_cvt_pk_bf16_f32 {v(po + r // 2)}, {v(E + r)}, {v(E + r + 1)}")
            off = f" offset:{1024 << self.fs}" if half else ""
            vv = vL0 if self.opt.get("x_nost") else self.vact
            e(f"buffer_store_dwordx4 {v(po, 4)}, {vv}, {SRD['ws']}, {sD} offen{off} {self.opt.get('staux', 'sc1')}", "actst")
        return S

    def phi(self, acc, dst, rs_fn):
        S = []
        e = lambda t, tag=None: S.append(I(t, tag))
        Tt, U = vT, vT + 8
        Q = (0, 2, 4, 6)
        for q in (0, 8):
            for r in Q:
                op, sel, selh = rs_fn(q + r)
                e(f"v_pk_fma_f32 {v(Tt + r, 2)}, {v(acc + q + r, 2)}, {op}, {v(vEL, 2)} op_sel:[0,{sel},0] op_sel_hi:[1,{selh},0]")
            for r in Q:
                e(f"v_pk_fma_f32 {v(U + r, 2)}, {v(Tt + r, 2)}, {v(vEL, 2)}, {v(vNE, 2)} op_sel:[0,1,0] op_sel_hi:[1,1,0]")
            for r in range(8):
                e(f"v_exp_f32_e64 {v(U + r)}, {v(U + r)} clamp")
            for r in range(8):
                e(f"v_max_f32 {v(Tt + r)}, {v(Tt + r)}, {v(vEL)}")
            for r in Q:
                e(f"v_pk_add_f32 {v(Tt + r, 2)}, {v(Tt + r, 2)}, {v(U + r, 2)}")
            for r in Q:
                e(f"v_cvt_pk_bf16_f32 {v(dst + (q + r) // 2)}, {v(Tt + r)}, {v(Tt + r + 1)}")
        return S

    def p2_reads(self, n, dst_fn, tag):
        rg, off = divmod(pc_addr(n) - SLOT0, 65536)
        return [I(f"ds_read_b64_tr_b16 {dst_fn(t, u)}, {v(vP2r[rg][t])} offset:{off + 1024 * u}", tag)
                for t in range(2) for u in range(2)]

    def xres_loads(self):
        return [[I(f"buffer_load_dwordx4 {v(vXr, 4)}, v0, {SRD['x']}, 0 offen", "xres")],
                [I(f"buffer_load_dwordx4 {v(vXr + 4, 4)}, v0, {SRD['x']}, 0 offen offset:32", "xres")]]

    def xres_unpack(self):
        S = [W("vm", "xres")]
        e = lambda t, tag=None: S.append(I(t, tag))
        for k in range(2):
            e(f"v_permlane32_swap_b32 {v(vXr + 4 * k)}, {v(vXr + 4 * k + 2)}")
            e(f"v_permlane32_swap_b32 {v(vXr + 4 * k + 1)}, {v(vXr + 4 * k + 3)}")
        for d in range(8):
            e(f"v_lshlrev_b32 {v(vAo[0] + 2 * d)}, 16, {v(vXr + d)}")
            e(f"v_and_b32 {v(vAo[0] + 2 * d + 1)}, 0xffff0000, {v(vXr + d)}")
        return S

    def pass1(self, typ):
        o = self.opt
        S = [W("vm", "a0"), I("s_barrier")]
        self.stamp(S, "a0")
        S.append(Hold(True))
        r0, r1 = self.reads1(0)
        S += r0 + r1
        ex = Extras()
        for T in range(32):
            if T == 31:
                S += [W("lg"), I("s_barrier")]
                self.stamp(S, "p1end")
                G = []
                if o.get("bk") is None:
                    for b in range(o.get("bearly", 8), 8):
                        G += self.dma_b(b, typ)
                S.append(Rel(G + [self.dma_w2(n) for n in range(0 if o.get("bk") is None else 14, 22)]))
            elif T % 4 == 3:
                k = (T + 1) // 4
                S += [W("lg")]
                self.stamp(S, f"pre{k}")
                S += [W("vm", f"a{k}"), I("s_barrier")]
                self.stamp(S, f"a{k}")
                G = []
                if k <= 5 and not o.get("x_nodma"):
                    G += self.dma_a(k + 2, typ)
                if o.get("x_halfdma"):
                    G = G[:4]
                if typ == "A" and k == 2:
                    G = [[W("vm", "zst"), I(f"s_mov_b32 {sG}, {WS_ZF}"),
                          I(f"buffer_store_dword {vTag}, v195, {SRD['ws']}, {sG} offen sc1")]] + G
                if k == o.get("statk", 4):
                    G = [self.stat_loads(typ)] + G
                bk = o.get("bk")
                if bk is None:
                    if k == 5:
                        for b in range(min(3, o.get("bearly", 8))):
                            G += self.dma_b(b, typ)
                    if k == 6:
                        for b in range(3, o.get("bearly", 8)):
                            G += self.dma_b(b, typ)
                else:
                    for b in range(8):
                        if bk[b] == k:
                            G += self.dma_b(b, typ)
                    if k == 6:
                        G += [self.dma_w2(n) for n in range(0, 6)]
                    if k == 7:
                        G += [self.dma_w2(n) for n in range(6, 14)]
                if k == o.get("statk", 4) + 1:
                    ex.add(self.stat_check(typ))
                if k == 6:
                    ex.add(self.setup_p2a())
                if k == 7 and o.get("colpos", "a7") == "a7":
                    G.append(self.pf_w2("col")[1])
                S.append(Rel(G))
            big, sm = self.mfma1(T, typ)
            if o.get("x_nom16") and T != 30:
                sm = []
            dT = o.get("dotT", 32)
            dots = []
            if sm and T < dT:
                for d in range(4):
                    for g in range(2):
                        acc = v(vDs[g])
                        dots.append(I(f"v_dot2_f32_bf16 {acc}, {v(vWf[0][g] + d)}, {v(vNE + 1)}, {'0' if (T == 0 and d == 0) else acc}"))
                sm = []
            elif sm and T == dT + (dT & 1) and dT:
                sm = [I(m.t.rsplit(",", 1)[0] + ", 0") for m in sm]
            if T == 31:
                S += [big[0]] + self.cs_read(vCs[:2]) + [Slot(0), big[1], W("lg", "cs")] + self.aug_v(vCs[0], vWa[0]) + \
                    [big[2]] + self.aug_v(vCs[1], vWa[1]) + [big[3], Slot(0)]
                S += self.aug_m(vWa[0], [vAcc1(0, 0), vAcc1(0, 1)], typ == "A") + self.aug_m(vWa[1], [vAcc1(1, 0), vAcc1(1, 1)], typ == "A")
                continue
            r0, r1 = self.reads1(T + 1)
            if T == 30:
                fin = []
                if dT:
                    for g in range(2):
                        fin += [I(f"v_mov_b32 {v(vCs[g] + 1)}, {v(vDs[g])}")]
                    for g in range(2):
                        fin += [I(f"v_permlane32_swap_b32 {v(vCs[g] + 1)}, {v(vDs[g])}")]
                    for g in range(2):
                        if dots:
                            fin += [I(f"v_add_f32 {v(vCs[g])}, {v(vCs[g] + 1)}, {v(vDs[g])}")]
                        else:
                            fin += [I(f"v_add_f32 {v(vDs[g])}, {v(vCs[g] + 1)}, {v(vDs[g])}"), I(f"v_add_f32 {v(vCs[g])}, {v(vCs[g])}, {v(vDs[g])}")]
                S += [W("lg", f"r{T}c")] + sm + dots + [big[0]] + r0 + ex.take(2) + [big[1]] + r1 + [I("s_nop 0")] * bool(dots) + fin + \
                    [big[2]] + self.cs_write(vCs[:2]) + ex.take(3) + [big[3]] + ex.take(1000)
                continue
            busy = T < 27
            if o.get("x_pad") and T in range(*o.get("x_padr", (0, 32))):
                S += [I("s_nop 7")] * o["x_pad"]
            S += [W("lg", f"r{T}a"), big[0]] + r0 + ([Slot(0)] if T < 3 else [])
            S += [W("lg", f"r{T}b"), big[1], Slot(0)] + ex.take(3 if busy else 5)
            S += sm[:1] + [W("lg", f"r{T}c"), big[2]] + r1 + ([Slot(0, True)] if (T >= 3 and not ((T & 1) == 0 and T in range(*o.get("s3", (0, 0))))) else [Slot(0)])
            S += [big[3], Slot(0)] + ex.take(3 if busy else 5) + sm[1:] + dots
        S += [Hold(False), Pace(o.get("pace2" + typ, o.get("pace2", 80)))]
        return S

    def pass2(self, typ, mid=None, extra=None):
        o = self.opt
        bw = 4 if o.get("bswap", 0) else 0
        S = [W("vm", f"b{bw}s"), W("vm", "c0"), I("s_barrier"), Hold(True)]
        self.stamp(S, "w0")
        S += self.reads2(0) + self.reads2(1)
        wr = {k + 1: k for k in range(21)}
        ex = Extras()
        ex.add(extra or [])
        ex.add(self.setup_p2b())
        gap = o.get("gap2", 40)
        for T in range(32):
            if T in P2BAR and T < 31:
                S += [W("lg")]
                self.stamp(S, f"u{T}")
                S += [W("vm", f"b{min(7, (T + 2) // 4 + bw)}s"), W("vm", f"c{min(T + 2, 20)}"), I("s_barrier")]
                self.stamp(S, f"w{T}")
                S.append(Rel([self.dma_w2(n) for n in P2REL[T]]))
            if mid and T in mid:
                S.append(Rel([mid[T]], front=True))
            big, sm = self.mfma2(T)
            if T == 31:
                S += [W("lg"), I("s_barrier")]
                self.stamp(S, "p2end")
                S += [big[0]] + self.cs_read(vCs[2:]) + [Slot(0), big[1], W("lg", "cs")] + self.aug_v(vCs[2], vWa[2])
                S += self.aug_m(vWa[2], [vAcc2(0), vAcc2(1)], False)
                continue
            rd = self.reads2(T + 2) if T < 30 else self.cs_write(vCs[2:])
            wq = self.p2_reads(wr[T], lambda t, u: a(8 * wr[T] + 4 * t + 2 * u, 2), "wreg") if T in wr else []
            S += [W("lg", f"q{T}"), big[0]] + rd + (wq[:1] if wq else ex.take(2)) + [big[1], Slot(gap)] + (wq[1:] if wq else ex.take(3))
            if T == 29:
                S += [W("lg", "q30"), self.mfma2(30)[1]]
            elif T == 30:
                S += ex.take(1000)
            elif (T & 1) == 0:
                S += [sm] + ([Slot(0)] if (o.get("p2s2", 4) and T % o.get("p2s2", 4) == 0) else ex.take(1))
        S += [Hold(False), Pace(o.get("pace4" + typ, o.get("pace4", 80)))]
        return S

    def tail_groups(self):
        return ([] if self.opt.get("xfront", 1) else self.xres_loads()) + [self.dma_w2(n) for n in P2REL[31]]

    def act_ld(self, n):
        kind, T = ORDER[n]
        T = T if kind == "f" else 48 + T
        return [I(f"s_add_u32 {sG}, {sAct2}, {(T * 2048) << self.fs}"),
                I(f"buffer_load_dwordx4 {act_reg(n)}, {self.vact}, {SRD['ws']}, {sG} offen sc1", f"x{n}")]

    def early_act(self):
        S = [Hold(True)] + self.poll_check(sPB, vP16, vPoll, "bpoll", dual=True) + [Hold(False)]
        self.stamp(S, "actok")
        xf = self.opt.get("xfront", 1)
        S.append(Rel((self.xres_loads() if xf else []) + [self.act_ld(n) for n in range(self.opt.get("R", 12))], front=bool(xf)))
        return S

    def path_a(self):
        o = self.opt
        S = []
        e = lambda t, tag=None: S.append(I(t, tag))
        S += self.head("A")
        S += self.pass1("A")
        PK, PV = 128, 144
        C0, C1 = 64, 80
        for k in range(3):
            e(f"v_and_b32 v222, {1 << k}, {vLane}")
            e(f"v_cmp_ne_u32 {sLB[k]}, 0, v222")
        e(f"v_bfe_u32 v222, {vLane}, 4, 1")
        e(f"v_lshrrev_b32 v223, 5, {vLane}")
        e("v_lshl_add_u32 v222, v222, 1, v223")
        e(f"v_and_b32 v223, 7, {vLane}")
        e("v_lshl_add_u32 v222, v222, 3, v223")
        e("v_lshlrev_b32 v222, 2, v222")
        e(f"v_lshrrev_b32 v223, 1, {vLane}")
        e(f"s_lshl_b32 {sA}, {sRH}, 3")
        e(f"v_xor_b32 v223, {sA}, v223")
        e(f"v_or_b32 v223, v223, {vLane}")
        e("v_and_b32 v223, 8, v223")
        e(f"v_mul_u32_u24 v223, {OOB >> 11}, v223")
        e(f"v_lshl_add_u32 {v(vZf)}, v223, 8, v222")
        e(f"s_cmp_eq_u32 {sRH}, 1")
        e(f"s_cselect_b64 {sRHM}, -1, 0")
        e(f"s_lshl_b32 {sA}, {sW}, 10")
        e(f"v_add_u32 v21, {sA}, {vL16}")
        e("v_xor_b32 v22, 1024, v21")
        e(f"s_lshl_b32 {sA}, {sW}, 8")
        e(f"v_add_u32 v23, {sA}, {vL4}")
        e("v_xor_b32 v24, 256, v23")
        e(f"s_lshl_b32 {sB}, {sRH}, 10")
        e(f"s_add_u32 {sM1}, {sB}, {sKV}")
        S.append(W("lg"))
        for gg in range(2):
            S += self.phi(vAcc1(0, gg), PK + 8 * gg, lambda r, gg=gg: (v(vRsA[gg] + r, 2), 0, 1))
        for gg in range(2):
            acc = vAcc1(1, gg)
            for r in range(0, 16, 2):
                e(f"v_pk_mul_f32 {v(acc + r, 2)}, {v(acc + r, 2)}, {v(vRsA[gg] + r, 2)}")
            for r in range(0, 16, 2):
                e(f"v_cvt_pk_bf16_f32 {v(PV + 8 * gg + r // 2)}, {v(acc + r)}, {v(acc + r + 1)}")
        ONE = 96
        for r in range(4):
            e(f"v_mov_b32 {v(ONE + r)}, {v(vNE + 1)}")
        for f in range(4):
            e(f"v_mfma_f32_32x32x16_bf16 {v(C1, 16)}, {v(PK + 4 * f, 4)}, {v(ONE, 4)}, {'0' if f == 0 else v(C1, 16)}")
        for f in range(4):
            e(f"v_mfma_f32_32x32x16_bf16 {v(C0, 16)}, {v(PK + 4 * f, 4)}, {v(PV + 4 * f, 4)}, {'0' if f == 0 else v(C0, 16)}")
        M, Z = 100, 108
        for r in range(8):
            e(f"v_cndmask_b32 {v(Z + r)}, {v(C1 + 8 + r)}, {v(C1 + r)}, {sSET0}")
        for k in range(3):
            for r in range(4 >> k):
                e(f"v_cndmask_b32 {v(Z + r)}, {v(Z + 2 * r)}, {v(Z + 2 * r + 1)}, {sLB[k]}")
        e(f"ds_write_b32 v23, {v(Z)} offset:3072")
        SD, KP = 116, 120
        for r in range(8):
            e(f"v_cndmask_b32 {v(M + r)}, {v(C0 + 8 + r)}, {v(C0 + r)}, {sSET0}")
        for r in range(4):
            e(f"v_cndmask_b32 {v(SD + r)}, {v(M + 4 + r)}, {v(M + r)}, {sRHM}")
        e(f"ds_write_b128 v21, {v(SD, 4)} offset:{SC_KV}")
        for r in range(4):
            e(f"v_cndmask_b32 {v(KP + r)}, {v(M + r)}, {v(M + 4 + r)}, {sRHM}")
        S += [W("lg"), I("s_barrier"), Hold(True)]
        e(f"ds_read_b128 {v(124, 4)}, v22 offset:{SC_KV}")
        e(f"ds_read_b32 {v(Z + 1)}, v24 offset:3072")
        S += [Slot(0), W("lg")]
        for r in range(4):
            e(f"v_add_f32 {v(KP + r)}, {v(KP + r)}, {v(124 + r)}")
            e(f"buffer_atomic_add_f32 {v(KP + r)}, {vL4}, {SRD['ws']}, {sM1} offen offset:{256 * r}", "kvat")
        e(f"v_add_f32 {v(Z)}, {v(Z)}, {v(Z + 1)}")
        e(f"buffer_atomic_add_f32 {v(Z)}, {v(vZf)}, {SRD['ws']}, {sKV} offen offset:2048", "kvat")
        S.append(Hold(False))
        self.stamp(S, "epi1")
        S += self.pass2("A", mid={o.get("kvflagT", 10): self.flag("kvat", sFKV)})
        S.append(Rel(self.tail_groups()))
        S += [self.poll_issue(sPB, vP16, vPoll, "bpoll", dual=True)] + self.mish(vAcc2(0), 0, sT0) + self.early_act() + self.mish(vAcc2(1), 1, sT0)
        self.stamp(S, "epi2")
        S += self.phase2("actst", sFAct)
        return S

    def path_b(self):
        o = self.opt
        S = []
        e = lambda t, tag=None: S.append(I(t, tag))
        S += self.head("B")
        S += self.pass1("B")
        for g in range(2):
            for gg in range(2):
                S += self.mish(vAcc1(g, gg), gg, (sT0, sT1)[g])
        self.stamp(S, "epi1")
        KV, ZZ, PQ = 96, 104, 112
        kT = o.get("kvpollT", 24)
        za = [I(f"v_bfe_u32 v64, {vLane}, 4, 1"), I("v_xor_b32 v64, 1, v64"), I(f"v_lshrrev_b32 v66, 5, {vLane}"),
              I("v_lshlrev_b32 v64, 6, v64"), I("v_lshl_add_u32 v64, v66, 5, v64")]
        ld = [I(f"buffer_load_dword {v(KV + r)}, {vL4}, {SRD['ws']}, {sKV} offen offset:{256 * r} sc1", "kvld") for r in range(8)] + \
             [I(f"buffer_load_dwordx4 {v(ZZ + 4 * k, 4)}, v64, {SRD['ws']}, {sKV} offen offset:{2048 + 16 * k} sc1", "kvld") for k in range(2)]
        chk = self.poll_check(sPKV, v(vP32), "v65", "kvpoll")
        self.stamp(chk, "kvok")
        post = o.get("kvpost", 1)
        mid = {o.get("actflagT", 12): self.flag("actst", sFAct, True),
               (28 if post else kT): [self.poll_issue(sPKV, v(vP32), "v65", "kvpoll")]}
        if not post:
            mid[o.get("kvchkT", 29)] = chk + ld
        S += self.pass2("B", mid=mid, extra=za)
        if post:
            S += [Hold(True)] + chk + ld + [Hold(False)]
        S.append(Rel(self.tail_groups()))
        KP_, ZP, F0, F1 = 64, 68, 72, 76
        fb = [W("vm", "kvld")]
        for r in range(4):
            fb.append(I(f"v_cvt_pk_bf16_f32 {v(KP_ + r)}, {v(KV + 2 * r)}, {v(KV + 2 * r + 1)}"))
            fb.append(I(f"v_cvt_pk_bf16_f32 {v(ZP + r)}, {v(ZZ + 2 * r)}, {v(ZZ + 2 * r + 1)}"))
        for r in range(4):
            fb.append(I(f"v_cndmask_b32 {v(F0 + r)}, {v(ZP + r)}, {v(KP_ + r)}, {sSET0}"))
            fb.append(I(f"v_cndmask_b32 {v(F1 + r)}, {v(KP_ + r)}, {v(ZP + r)}, {sSET0}"))
        if not post:
            S += fb
        e(f"s_lshl_b32 {sD}, {sP}, 1")
        e(f"s_add_u32 {sD}, {sD}, {sCH}")
        e(f"s_lshl_b32 {sD}, {sD}, {11 + self.fs}")
        e(f"s_add_u32 {sD}, {sD}, {sActB}")
        e(f"s_add_u32 {sD}, {sD}, {(96 * 1024) << self.fs}")
        D = [190, 206, 128, 144]

        def omf(gg):
            return [I(f"v_mfma_f32_32x32x16_bf16 {v(D[2 * gg + hd], 16)}, {v((F0, F1)[hd], 4)}, {v(PQ + 8 * gg + 4 * hd, 4)}, 0") for hd in range(2)]

        def ofin(gg):
            for hd in range(2):
                d = D[2 * gg + hd]
                num, den = (d, d + 8) if hd == 0 else (d + 8, d)
                po = 80 + 4 * (2 * gg + hd)
                e(f"v_add_f32 {v(den)}, {v(vEL)}, {v(den)}")
                e(f"v_rcp_f32 {v(den)}, {v(den)}")
                for r in range(0, 8, 2):
                    e(f"v_pk_mul_f32 {v(num + r, 2)}, {v(num + r, 2)}, {v(den, 2)} op_sel_hi:[1,0]")
                for r in range(0, 8, 2):
                    e(f"v_cvt_pk_bf16_f32 {v(po + r // 2)}, {v(num + r)}, {v(num + r + 1)}")
                off = f" offset:{1024 << self.fs}" if hd else ""
                e(f"buffer_store_dwordx4 {v(po, 4)}, {self.vact}, {SRD['ws']}, {sD} offen{off} {self.opt.get('staux', 'sc1')}", "ost")
        S += [self.poll_issue(sPB, vP16, vPoll, "bpoll", dual=True)] + self.phi(vAcc2(0), PQ, lambda r: (v(vRs[0], 2), 0, 0))
        if post:
            S += self.early_act() + self.phi(vAcc2(1), PQ + 8, lambda r: (v(vRs[1], 2), 0, 0)) + fb + omf(0) + omf(1)
        else:
            S += omf(0) + self.early_act() + self.phi(vAcc2(1), PQ + 8, lambda r: (v(vRs[1], 2), 0, 0)) + omf(1)
        ofin(0)
        e(f"s_add_u32 {sD}, {sD}, {131072 << self.fs}")
        ofin(1)
        self.stamp(S, "epi2")
        S += self.phase2("ost", sFO)
        return S

    def phase2(self, sttag, sflag):
        o = self.opt
        S = []
        e = lambda t, tag=None: S.append(I(t, tag))
        R = o.get("R", 12)
        S += [FlushTo(f"x{R - 1}") if o.get("xfront", 1) else Flush(), Hold(True)]
        ld = self.act_ld
        S += ld(R)[:1]
        S += self.xres_unpack()
        frag = lambda n: (lambda t, u: v(32 + 8 * (n & 3) + 4 * t + 2 * u, 2))
        back = o.get("pollback", 8)
        for n in range(59):
            m = n + R
            if n == NREGW - 2 or n == 44:
                S += [W("vm", "c46" if n < 44 else "c58"), I("s_barrier")]
            if m == NB - back:
                S.append(self.poll_issue(sPA, vPA16, vPoll, "apoll", dual=True))
            if m == NA - back:
                S.append(self.poll_issue(sPO, vP16, vPoll, "opoll", dual=True))
            self.stamp(S, f"s{n}")
            if m == NB:
                self.stamp(S, "apre")
                S += self.poll_check(sPA, vPA16, vPoll, "apoll", dual=True)
                self.stamp(S, "aok")
            if m == NA:
                self.stamp(S, "opre")
                S += self.poll_check(sPO, vP16, vPoll, "opoll", dual=True)
                self.stamp(S, "ook")
            S.append(W("vm", f"x{n}"))
            if n == o.get("flagstep", 2):
                S += self.flag(sttag, sflag, True)
            if n >= NREGW:
                S.append(W("lg", f"w{n}"))
            for t in range(2):
                wf = a(8 * n + 4 * t, 4) if n < NREGW else v(32 + 8 * (n & 3) + 4 * t, 4)
                tt = 1 - t
                wf = a(8 * n + 4 * tt, 4) if n < NREGW else v(32 + 8 * (n & 3) + 4 * tt, 4)
                acc = v(vAo[tt], 16)
                e(f"v_mfma_f32_32x32x16_bf16 {acc}, {wf}, {act_reg(n)}, {'0' if (n == 0 and tt == 1) else acc}")
                if t == 0 and m < 59:
                    S += ld(m)[1:] + (ld(m + 1)[:1] if m < 58 else [])
                if t == 1:
                    S.append(Slot(0))
                if NREGW - 2 <= n < 57:
                    S += self.p2_reads(n + 2, frag(n + 2), f"w{n + 2}")[2 * t:2 * t + 2]
            if m == 59:
                e(f"s_or_b32 {sA}, s2, {sW}")
                e(f"s_cmp_eq_u32 {sA}, 0")
                e(f"s_cselect_b32 {sA}, 0, {OOB}")
                e(f"v_or_b32 v16, {sA}, {vL0}")
                e(f"buffer_store_dword {vTag}, v16, {SRD['ws']}, 0 offen offset:{WS_E}")
        self.stamp(S, "gemm2")
        for q in range(4):
            e(f"ds_write_b128 v19, {v(vAo[1] + 4 * q, 4)} offset:{1024 * q}")
        S += [W("lg"), I("s_barrier")]
        for q in range(4):
            e(f"ds_read_b128 {v(96 + 4 * q, 4)}, v20 offset:{1024 * q}", f"f{q}")
        for q in range(4):
            S.append(W("lg", f"f{q}"))
            for r in (0, 2):
                e(f"v_pk_add_f32 {v(vAo[0] + 4 * q + r, 2)}, {v(vAo[0] + 4 * q + r, 2)}, {v(96 + 4 * q + r, 2)}")
            for r in (0, 2):
                e(f"v_cvt_pk_bf16_f32 {v(112 + 2 * q + r // 2)}, {v(vAo[0] + 4 * q + r)}, {v(vAo[0] + 4 * q + r + 1)}")
            if q & 1:
                k = q >> 1
                e(f"v_permlane32_swap_b32 {v(112 + 4 * k)}, {v(112 + 4 * k + 2)}")
                e(f"v_permlane32_swap_b32 {v(112 + 4 * k + 1)}, {v(112 + 4 * k + 3)}")
                off = " offset:32" if k else ""
                e(f"buffer_store_dwordx4 {v(112 + 4 * k, 4)}, v0, {SRD['out']}, 0 offen{off}")
        if o.get("stamps"):
            S.append(W("vm"))
            self.stamp(S, "end")
            pr = o.get("probe")
            if o.get("xprobe"):
                lp = self.label("probe")
                e(f"s_getreg_b32 {sA}, hwreg(HW_REG_XCC_ID, 0, 4)")
                e(f"s_sub_u32 {sA}, {sA}, s2")
                e(f"s_and_b32 {sA}, {sA}, 7")
                if o["xprobe"] == 2:
                    e(f"s_sub_u32 {sA}, 7, {sA}")
                e(f"s_mul_i32 {sA}, {sA}, 500")
                e(f"v_readlane_b32 {sC}, v179, {1 + self.allnames.index('end')}")
                e(f"{lp}:")
                e("s_memrealtime s[98:99]")
                e("s_waitcnt lgkmcnt(0)")
                e(f"s_sub_u32 {sB}, s98, {sC}")
                e(f"s_cmp_lt_u32 {sB}, {sA}")
                e(f"s_cbranch_scc1 {lp}")
            if pr:
                lp = self.label("probe")
                e(f"v_readlane_b32 {sA}, v179, {1 + self.allnames.index(pr)}")
                e(f"v_readlane_b32 {sC}, v179, {1 + self.allnames.index('end')}")
                e(f"s_sub_u32 {sA}, {sA}, s100")
                e(f"s_mul_i32 {sA}, {sA}, {o.get('mult', 4)}")
                e(f"{lp}:")
                e("s_memrealtime s[98:99]")
                e("s_waitcnt lgkmcnt(0)")
                e(f"s_sub_u32 {sB}, s98, {sC}")
                e(f"s_cmp_lt_u32 {sB}, {sA}")
                e(f"s_cbranch_scc1 {lp}")
            e(f"s_lshl_b32 {sA}, s2, 2")
            e(f"s_add_u32 {sA}, {sA}, {sW}")
            e(f"s_lshl_b32 {sA}, {sA}, 7")
            e(f"s_add_u32 {sA}, {sA}, {WS_STAMP}")
            e(f"v_cmp_gt_u32 vcc, 32, {vLane}")
            e(f"v_mov_b32 v21, {OOB}")
            e(f"v_cndmask_b32 v21, v21, {vL4}, vcc")
            e(f"buffer_store_dword v179, v21, {SRD['ws']}, {sA} offen")
        e("s_endpgm")
        return S

    def build(self):
        pro = self.prologue()
        A = self.path_a()
        B = self.path_b()
        la, pka, na, ea = finalize2(pro + A)
        lb, pkb, nb, eb = finalize2(pro + B)
        npro = len(finalize2(pro)[0])
        assert la[:npro] == lb[:npro]
        body = la + ["L_typeB:"] + lb[npro:] + self.slow + ["L_end:", "s_endpgm", "L_codeend:"]
        self.info = dict(peakA=pka, peakB=pkb, nopsA=na, nopsB=nb, nA=len(la), nB=len(lb), est=(ea, eb))
        hdr = open("cdna_kernels/" + NAME + ".s.ref").read().split("; Override launch")[0]
        txt = hdr + "; Generated by a script: fused LayerNorm + linear attention + Mish FFN, one persistent launch.\n"
        txt += "; @launch grid=(256,1,1) block=(256,1,1) lds=163840\n"
        txt += f'.amdgcn_target "amdgcn-amd-amdhsa--gfx950"\n.text\n.globl {NAME}_kernel\n.p2align 8\n.type {NAME}_kernel,@function\n{NAME}_kernel:\n'
        txt += "\n".join(("" if l.endswith(":") else "    ") + l for l in body) + "\n"
        txt += f""".section .rodata,"a"
.p2align 6
.amdhsa_kernel {NAME}_kernel
  .amdhsa_next_free_vgpr 512
  .amdhsa_next_free_sgpr 102
  .amdhsa_accum_offset 256
  .amdhsa_group_segment_fixed_size 0
  .amdhsa_kernarg_size 80
  .amdhsa_user_sgpr_count 2
  .amdhsa_user_sgpr_kernarg_segment_ptr 1
  .amdhsa_system_sgpr_workgroup_id_x 1
  .amdhsa_float_denorm_mode_32 3
.end_amdhsa_kernel
"""
        return txt


def generate(**opt):
    global WS_ACT, WS_BYTES
    WS_ACT = opt.get("actoff", 0x100000)
    WS_BYTES = max(0x2000000, WS_ACT + 0x1100000)
    KARG["ws"] = (72, WS_BYTES)
    g = Gen(opt)
    t = g.build()
    return t, g


if __name__ == "__main__":
    t, g = generate()
    out = sys.argv[1] if len(sys.argv) > 1 else "cdna_kernels/" + NAME + ".s"
    open(out, "w").write(t)
    print(g.info, len(t))
```

```python
import struct
import sys
sys.path.insert(0, "dev")
from asmfw import I, W, Rel, Flush, Pace, Hold, Slot, FlushTo, finalize2

NAME = "parallel_sum__linear_attn_block__dense_activation_mish__prompt"

WS_E = 0x0
WS_STAT = 0x1000
WS_ZF = 0x8000
WS_KVF = 0x9000
WS_AF = 0xA000
WS_BF = 0xB000
WS_OF = 0xC000
WS_DUAL = 0x3000
WS_KV = 0x10000
WS_ACT = 0x100000
WS_STAMP = 0x1800000
WS_BYTES = 0x2000000
TAGC = 0x5BD1E995
OOB = 0x7FFF0000
SPIN = 100000

SLOT0 = 8192
SLOT = [8192, 40960, 73728]
BBASE = 98304
SC_RS = 0
SC_CS = 1024
SC_KV = 4096
RED = 106496


def bpos(b):
    return 0 if b == 7 else b + 1


def _pc_first(n):
    if n < 6:
        return 73728 + n * 4096
    if n < 14:
        return 8192 + (n - 6) * 4096
    if n < 21:
        return 40960 + (n - 14) * 4096
    return 69632


P2BAR = {2: (0, [0]), 6: (1, [1, 2, 3, 4]), 10: (2, [5, 6, 7, 8]), 14: (3, [9, 10, 11, 12]), 18: (4, [13, 14, 15, 16]),
         22: (5, [17, 18, 19, 20]), 26: (6, []), 31: (7, [])}
PC = [_pc_first(n) for n in range(22)]
P2REL = {}
for _T, (_b, _st) in P2BAR.items():
    _new = [BBASE + 8192 * bpos(_b), BBASE + 8192 * bpos(_b) + 4096] + [_pc_first(n) for n in _st]
    P2REL[_T] = list(range(len(PC), len(PC) + len(_new)))
    PC += _new
assert len(PC) == 59


def pc_addr(n):
    return PC[n]


NREGW = 21
ORDER = [("f", 6 * p + 2 + q) for p in range(7) for q in range(4)] + [("f", 18), ("f", 19), ("f", 42)] \
    + [("f", 6 * p + q) for p in (0, 1, 2, 4, 5, 6) for q in range(2)] + [("o", hp) for hp in range(16)]
NB, NA = 31, 43
RING = 22

sT0, sT1 = "s0", "s1"
sW = "s3"
SRD = dict(x="s[4:7]", qkv="s[8:11]", w1="s[12:15]", wo="s[16:19]", w2="s[20:23]", b1="s[24:27]", out="s[28:31]", ws="s[32:35]", ws2="s[24:27]")
KARG = dict(x=(0, 2048 * 1024), qkv=(8, 512 * 3072), w1=(32, 512 * 2752), ws=(72, WS_BYTES), wo=(16, 512 * 1024),
            w2=(48, 1376 * 1024), b1=(40, 2752), out=(56, 2048 * 1024))
sI, sJ, sP, sRH, sCH, sT, sR2, sC2, sSig = "s36", "s37", "s38", "s39", "s40", "s41", "s42", "s43", "s44"
sSET0 = "s[46:47]"
sRHM = "s[48:49]"
sW8K, sW2K, sW1K = "s50", "s51", "s52"
sWO = "s54"
sA, sB, sC, sD = "s55", "s56", "s57", "s58"
sActB = "s59"
sCnt, sE, sM0, sM1 = "s60", "s61", "s62", "s63"
sFKV, sFAct, sFO, sPKV, sPB, sPA, sPO, sKV, sAct2, sG, sZF = [f"s{64 + k}" for k in range(11)]
sXk = ["s45"] + [f"s{76 + k}" for k in range(1, 8)]
sLB = ["s[84:85]", "s[86:87]", "s[88:89]"]
PFS = "s[92:95]"

vLane, vL16, vL4, vMH0, vL0 = "v1", "v2", "v3", "v4", "v5"
vW2s, vTag = "v6", "v7"
vXs = [8, 9, 10, 11]
vWs = [12, 13, 14, 15]
vBs = [16, 17]
vXrA = [18, 19, 20, 21]
vXrB = [22, 23, 24, 25]
vWrA = [26, 27]
vWrB = [28, 29]
vBr = [30, 31]
vSel = 32
vCs = [36, 40, 44]
vWf = [[48, 52], [56, 60]]
vAcc1 = lambda G, gg: 64 + 32 * G + 16 * gg
vAcc2 = lambda gg: 128 + 16 * gg
vSt = [160, 162]
vZf, vB2, vZero, vP32 = 164, 165, 166, 167
vXa = [168, 172]
vPFd, vPFa, vStA = "v176", "v177", "v178"
vRs = [180, 182]
vC12 = 184
vEL = 186
vNE = 188
vRsA = [190, 206]
vT = 222
vWa = [246, 250, 160]
vDs = [46, 47]
vCsW, vCsR = "v254", "v255"
vP2r = [[8, 9], [10, 11], [12, 13]]
vP16, vPoll, vPA16 = "v14", "v15", "v18"
vAo = [64, 80]
vXr = 246


def v(n, k=1):
    return f"v{n}" if k == 1 else f"v[{n}:{n + k - 1}]"


def a(n, k=1):
    return f"a{n}" if k == 1 else f"a[{n}:{n + k - 1}]"


def act_reg(n):
    return a(168 + 4 * (n % RING), 4)


def f2u(x):
    return "0x%08x" % struct.unpack("<I", struct.pack("<f", x))[0]


LOG2E = 1.4426950408889634
LN2 = 0.6931471805599453
_SCC_USE = ("s_cselect", "s_addc", "s_cbranch_scc")


class Extras:
    def __init__(self):
        self.q = []

    def add(self, items):
        self.q += [it for it in items if not isinstance(it, Hold)]

    def take(self, n):
        out = []
        while self.q:
            it = self.q[0]
            glue = not isinstance(it, I) or it.t.endswith(":") or it.t.startswith(_SCC_USE)
            if n <= 0 and not glue:
                break
            out.append(self.q.pop(0))
            if isinstance(it, I) and not it.t.endswith(":"):
                n -= 1
        return out


class Gen:
    allnames = ["a0", "p1end", "epi1", "p2end", "epi2", "actok", "s1", "apre", "aok", "opre", "ook", "gemm2", "end"]

    def __init__(self, opt):
        self.opt = opt
        if opt.get("stampset"):
            self.allnames = opt["stampset"].split(",")
        self.slow = []
        self.fs = 1 if opt.get("skip3", 0) else 0
        self.vact = v(vB2) if self.fs else vL16
        self.uid = 0

    def stamp(self, S, name):
        if not self.opt.get("stamps") or name not in self.allnames:
            return
        S.append(I(f"{'s_memtime' if self.opt.get('cyc') else 's_memrealtime'} s[98:99]"))
        S.append(W("lg"))
        S.append(I(f"v_writelane_b32 v179, s98, {1 + self.allnames.index(name)}"))
        if self.opt.get("both"):
            S.append(I("s_memtime s[98:99]"))
            S.append(W("lg"))
            S.append(I(f"v_writelane_b32 v179, s98, {17 + self.allnames.index(name)}"))

    def label(self, base):
        self.uid += 1
        return f"L_{base}_{self.uid}"

    def prologue(self):
        o = self.opt
        S = []
        e = lambda t, tag=None: S.append(I(t, tag))
        e(f"s_lshr_b32 {sA}, s2, 8")
        e("s_cbranch_scc1 L_end")
        if o.get("stamps"):
            e("s_memtime s[100:101]" if o.get("cyc") else "s_memrealtime s[100:101]")
        e("s_load_dwordx2 s[4:5], s[0:1], 0")
        e("s_load_dwordx16 s[64:79], s[0:1], 0")
        e("s_load_dwordx2 s[32:33], s[0:1], 72")
        e("v_lshrrev_b32 v6, 6, v0")
        e(f"v_and_b32 {vLane}, 63, v0")
        e(f"v_readfirstlane_b32 {sW}, v6")
        e("s_lshl_b32 s7, 1, 17")
        e("s_getpc_b64 s[92:93]")
        e("s_lshr_b32 s92, s92, 8")
        e("s_lshl_b32 s92, s92, 8")
        e(f"s_mov_b32 s94, L_codeend-{NAME}_kernel")
        e("s_mov_b32 s95, s7")
        e("v_lshrrev_b32 v238, 4, v0")
        e("v_lshlrev_b32 v238, 7, v238")
        e(f"s_lshr_b32 {sB}, s2, 3")
        e(f"s_lshl_b32 {sA}, {sB}, 11")
        e(f"buffer_load_dword {vPFd}, v238, {PFS}, {sA} offen")
        e("s_lshl_b32 s6, 1, 21")
        e(f"s_and_b32 {sA}, s2, 7")
        e(f"s_lshr_b32 {sC}, s2, 7")
        e(f"s_lshl1_add_u32 {sI}, {sA}, {sC}")
        if o.get("rot", "x") == "l0":
            e(f"s_lshl2_add_u32 {sA}, {sC}, {sA}")
            e(f"s_and_b32 {sA}, {sA}, 7")
        e(f"s_lshl_b32 {sXk[0]}, {sA}, 7")
        e(f"v_lshrrev_b32 v240, 3, {vLane}")
        e(f"v_and_b32 v241, 7, {vLane}")
        e(f"s_lshl2_add_u32 {sC}, {sI}, {sW}")
        e(f"s_lshl_b32 {sC}, {sC}, 15")
        e(f"v_lshl_add_u32 v243, v240, 10, {sC}")
        e("v_lshrrev_b32 v244, 1, v240")
        e("v_xor_b32 v244, v244, v241")
        e(f"v_lshl_add_u32 {v(vXs[0])}, v244, 4, v243")
        e(f"v_xor_b32 {v(vXs[1])}, 64, {v(vXs[0])}")
        e(f"v_add_u32 {v(vXs[1])}, {7168}, {v(vXs[1])}")
        e(f"v_add_u32 {v(vXs[2])}, {2 * 7168}, {v(vXs[0])}")
        e(f"v_add_u32 {v(vXs[3])}, {2 * 7168}, {v(vXs[1])}")
        e(f"s_lshl_b32 {sW8K}, {sW}, 13")
        e(f"s_add_u32 m0, {sW8K}, {SLOT[0]}")
        S.append(W("lg"))
        for pp in range(4):
            off = f" offset:{1024 * pp}" if pp else ""
            e(f"buffer_load_dwordx4 {v(vXs[pp])}, {SRD['x']}, {sXk[0]} offen{off} lds", "a0")
        e(f"s_and_b32 {sJ}, {sB}, 15")
        e("L_first256:")
        e(f"v_lshlrev_b32 {vL16}, 4, {vLane}")
        e(f"s_lshl4_add_u32 {sM0}, {sI}, {sJ}")
        e(f"s_lshl2_add_u32 {sM0}, {sM0}, {sW}")
        e(f"s_lshl_b32 {sM1}, {sM0}, 11")
        if o.get("strow1", 1):
            e(f"buffer_load_dwordx4 v[224:227], {vL16}, {SRD['x']}, {sM1} offen", "strow")
            e(f"buffer_load_dwordx4 v[228:231], {vL16}, {SRD['x']}, {sM1} offen offset:1024", "strow")
        e(f"s_load_dword {sE}, s[32:33], {WS_E}")
        e(f"s_lshr_b32 {sP}, {sJ}, 1")
        e(f"v_lshl_add_u32 v239, v6, 4, v240")
        e("v_lshlrev_b32 v242, 1, v240")
        e("v_and_b32 v242, 4, v242")
        e("v_xor_b32 v242, v242, v241")
        e("v_lshlrev_b32 v242, 4, v242")
        e(f"s_mul_i32 {sT0}, {sP}, 6")
        e(f"s_add_u32 {sT0}, {sT0}, 2")
        e(f"s_add_u32 {sT1}, {sT0}, 2")
        e(f"s_cmp_eq_u32 {sP}, 7")
        e(f"s_cselect_b32 {sT0}, 18, {sT0}")
        e(f"s_cselect_b32 {sT1}, 42, {sT1}")
        e(f"s_lshl1_add_u32 {sA}, {sP}, 16")
        e(f"s_lshl1_add_u32 {sB}, {sP}, 32")
        e(f"s_movk_i32 {sC}, 3072")
        e(f"s_bitcmp1_b32 {sJ}, 0")
        e(f"s_cselect_b32 {sA}, {sT0}, {sA}")
        e(f"s_cselect_b32 {sB}, {sT1}, {sB}")
        e(f"s_cselect_b32 {sC}, 2752, {sC}")
        e("s_cselect_b64 s[80:81], s[72:73], s[66:67]")
        e(f"s_lshl_b32 s82, {sC}, 9")
        e("s_mov_b32 s83, s7")
        e(f"v_mul_u32_u24 v238, {sC}, v239")
        e(f"s_lshl_b32 {sA}, {sA}, 6")
        e(f"s_lshl_b32 {sB}, {sB}, 6")
        e(f"s_lshl_b32 {sD}, {sC}, 3")
        e(f"s_sub_u32 {sD}, {sD}, 1024")
        e(f"v_add3_u32 {v(vWs[0])}, v238, v242, {sA}")
        e(f"v_add3_u32 {v(vWs[2])}, v238, v242, {sB}")
        e(f"s_lshr_b32 {sC}, {sC}, 1")
        e(f"s_mul_i32 {sWO}, {sXk[0]}, {sC}")
        e(f"s_add_u32 m0, {sW8K}, {SLOT[0] + 4096}")
        e(f"v_add_u32 {v(vWs[1])}, {sD}, {v(vWs[0])}")
        e(f"v_add_u32 {v(vWs[3])}, {sD}, {v(vWs[2])}")
        e(f"buffer_load_dwordx4 {v(vWs[0])}, s[80:83], {sWO} offen lds", "a0")
        e(f"buffer_load_dwordx4 {v(vWs[1])}, s[80:83], {sWO} offen offset:1024 lds", "a0")
        e(f"s_add_u32 m0, {sW8K}, {SLOT[0] + 6144}")
        e(f"s_lshl_b32 {sM0}, {sM0}, 1")
        e(f"buffer_load_dwordx4 {v(vWs[2])}, s[80:83], {sWO} offen lds", "a0")
        e(f"buffer_load_dwordx4 {v(vWs[3])}, s[80:83], {sWO} offen offset:1024 lds", "a0")
        if not o.get("strow1", 1):
            e(f"buffer_load_dwordx4 v[224:227], {vL16}, {SRD['x']}, {sM1} offen", "strow")
            e(f"buffer_load_dwordx4 v[228:231], {vL16}, {SRD['x']}, {sM1} offen offset:1024", "strow")
        if o.get("stamps"):
            e("v_mov_b32 v179, 0")
            e("v_writelane_b32 v179, s100, 0")
        self.stamp(S, "karg")
        for nm, p in (("qkv", 66), ("wo", 68), ("w1", 72), ("b1", 74), ("w2", 76), ("out", 78)):
            b = int(SRD[nm][2:].split(":")[0])
            e(f"s_mov_b64 s[{b}:{b + 1}], s[{p}:{p + 1}]")
        for nm in ("qkv", "w1"):
            b = int(SRD[nm][2:].split(":")[0])
            e(f"s_mov_b32 s{b + 2}, {KARG[nm][1]}")
            e(f"s_mov_b32 s{b + 3}, 0x20000")
        S += self.setup_now()
        if o.get("pfpos", "a0") == "a0":
            st, ld = self.pf_w2("chip")
            S += st + ld
        if o.get("dual", 1) and o.get("touch", 1):
            S += [I(f"s_and_b32 {sA}, s2, 7"), I(f"s_lshl_b32 {sA}, {sA}, 2"), I(f"s_lshr_b32 {sB}, s2, 6"), I(f"s_add_u32 {sA}, {sA}, {sB}"),
                  I(f"s_lshl_b32 {sA}, {sA}, 7"), I(f"s_add_u32 {sA}, {sA}, {WS_AF + WS_DUAL}"), I(f"s_min_u32 {sB}, {sW}, 2"),
                  I(f"s_lshl_b32 {sB}, {sB}, 12"), I(f"s_add_u32 {sA}, {sA}, {sB}"), I(f"v_mov_b32 {vPFa}, 0"),
                  I(f"buffer_load_dword {vPFd}, {vPFa}, {SRD['ws']}, {sA} offen")]
        e(f"s_bitcmp1_b32 {sJ}, 0")
        e("s_cbranch_scc1 L_typeB")
        return S

    def dma_a(self, s, typ):
        srd, stride = (SRD["qkv"], 3072) if typ == "A" else (SRD["w1"], 2752)
        slot = SLOT[s % 3]
        tag = f"a{s}"
        G = []
        mul = I(f"s_mul_i32 {sWO}, {sXk[s]}, {stride // 2}")
        if s:
            for pp in range(4):
                off = f" offset:{1024 * pp}" if pp else ""
                ins = I(f"buffer_load_dwordx4 {v(vXs[pp])}, {SRD['x']}, {sXk[s]} offen{off} lds", tag)
                G.append(([I(f"s_add_u32 m0, {sW8K}, {slot}"), mul] if pp == 0 else []) + [ins])
        for g in range(2):
            G.append(([mul] if (s == 0 and g == 0) else []) + [I(f"s_add_u32 m0, {sW8K}, {slot + 4096 + 2048 * g}"),
                      I(f"buffer_load_dwordx4 {v(vWs[2 * g])}, {srd}, {sWO} offen lds", tag)])
            G.append([I(f"buffer_load_dwordx4 {v(vWs[2 * g + 1])}, {srd}, {sWO} offen offset:1024 lds", tag)])
        return G

    def dma_b(self, b, typ):
        srd, stride = (SRD["w1"], 2752) if typ == "A" else (SRD["qkv"], 3072)
        tag = f"b{b}s"
        if self.opt.get("bswap", 0):
            pre = [I(f"s_xor_b32 m0, s90, {8192 * bpos(b)}"), I(f"s_xor_b32 {sWO}, {sXk[b]}, s91"),
                   I(f"s_add_u32 m0, m0, {sW2K}"), I(f"s_mul_i32 {sWO}, {sWO}, {stride // 2}")]
        else:
            pre = [I(f"s_add_u32 m0, {sW2K}, {8192 * bpos(b)}"), I(f"s_mul_i32 {sWO}, {sXk[b]}, {stride // 2}")]
        return [pre + [I(f"buffer_load_dwordx4 {v(vBs[0])}, {srd}, {sWO} offen lds", tag)],
                [I(f"buffer_load_dwordx4 {v(vBs[1])}, {srd}, {sWO} offen offset:1024 lds", tag)]]

    def dma_w2(self, n):
        kind, T = ORDER[n]
        srd = SRD["w2"] if kind == "f" else SRD["wo"]
        return [I(f"s_add_u32 m0, {sW1K}, {pc_addr(n)}"), I(f"s_mov_b32 {sWO}, {T * 32768}"),
                I(f"buffer_load_dwordx4 {vW2s}, {srd}, {sWO} offen lds", f"c{n}")]

    def code_touch(self):
        lb = self.label("pc")
        S = [I("s_getpc_b64 s[84:85]"), I(f"{lb}:"), I(f"s_sub_u32 s84, s84, {lb}-{NAME}_kernel"), I("s_subb_u32 s85, s85, 0"),
             I(f"s_mov_b32 s86, L_codeend-{NAME}_kernel"), I("s_mov_b32 s87, 0x20000"),
             I(f"s_lshr_b32 {sA}, s2, 3"), I(f"s_lshl_b32 {sA}, {sA}, 2"), I(f"s_add_u32 {sA}, {sA}, {sW}"), I(f"s_lshl_b32 {sA}, {sA}, 9"),
             I(f"v_and_b32 v219, 3, {vLane}"), I(f"v_lshl_add_u32 v219, v219, 7, {sA}")]
        return S, [I(f"buffer_load_dword {vPFd}, v219, s[84:87], 0 offen")]

    def pf_w2(self, kind):
        again = kind == "chip2"
        if again:
            kind = "chip"
        sh = 7 if kind == "chip" else 10
        r0 = 84 if again else 92
        va = "v220" if kind == "chip" else vPFa
        S = []
        e = lambda t, tag=None: S.append(I(t, tag))
        idx = "s2" if (kind == "chip" and not again) else sA
        if again:
            e(f"s_add_u32 {sA}, s2, {self.opt.get('pf2d', 1)}")
            e(f"s_and_b32 {sA}, {sA}, 255")
        if kind == "col":
            e(f"s_lshr_b32 {sA}, s2, 3")
        e(f"s_mul_i32 {sB}, {idx}, 43")
        e(f"s_mul_i32 {sC}, {sW}, 22")
        e(f"s_add_u32 {sB}, {sB}, {sC}")
        e(f"s_lshl_b32 {sC}, {idx}, 4")
        e(f"s_cmp_ge_u32 {sW}, 2")
        e(f"s_cselect_b32 {sB}, {sC}, {sB}")
        e(f"s_cselect_b32 s{r0}, s16, s20")
        e(f"s_cselect_b32 s{r0 + 1}, s17, s21")
        e(f"s_lshl_b32 {sB}, {sB}, {sh}")
        if kind == "col":
            e(f"s_add_u32 {sB}, {sB}, 384")
        e(f"s_add_u32 s{r0}, s{r0}, {sB}")
        e(f"s_addc_u32 s{r0 + 1}, s{r0 + 1}, 0")
        e(f"s_lshl_b32 {sC}, {sW}, 3")
        e(f"s_lshr_b32 s{r0 + 2}, {0x00101516}, {sC}")
        e(f"s_and_b32 s{r0 + 2}, s{r0 + 2}, 0xff")
        e(f"s_lshl_b32 s{r0 + 2}, s{r0 + 2}, {sh}")
        if kind == "col":
            e(f"s_sub_u32 s{r0 + 2}, s{r0 + 2}, 512")
            e(f"s_max_i32 s{r0 + 2}, s{r0 + 2}, 0")
        e(f"s_mov_b32 s{r0 + 3}, 0x20000")
        e(f"v_lshlrev_b32 {va}, {sh}, {vLane}")
        return S, [I(f"buffer_load_dword {vPFd}, {va}, s[{r0}:{r0 + 3}], 0 offen")]

    def reads1(self, T):
        s, tau = divmod(T, 4)
        slot = s % 3
        xr = vXrA if slot < 2 else vXrB
        wr = vWrA if slot < 2 else vWrB
        so = 32768 if slot == 1 else 0
        buf = T & 1
        wrd = lambda g, u, tag: I(f"ds_read_b64_tr_b16 {v(vWf[buf][g] + 2 * u, 2)}, {v(wr[tau & 1])} offset:{so + (tau & 2) * 8192 + 2048 * g + 512 * u}", tag)
        xrd = lambda g, tag: I(f"ds_read_b128 {a(8 * T + 4 * g, 4)}, {v(xr[tau])} offset:{so + 8192 * g}", tag)
        return ([wrd(0, 0, f"r{T}a"), wrd(0, 1, f"r{T}a"), xrd(0, f"r{T}a")],
                [xrd(1, f"r{T}b"), wrd(1, 0, f"r{T}c"), wrd(1, 1, f"r{T}c")])

    def mfma1(self, T, typ):
        buf = T & 1
        big, sm = [], []
        for g in range(2):
            for gg in range(2):
                acc = v(vAcc1(g, gg), 16)
                xf, wf = a(8 * T + 4 * gg, 4), v(vWf[buf][g], 4)
                A_, B_ = (xf, wf) if typ == "A" else (wf, xf)
                big.append(I(f"v_mfma_f32_32x32x16_bf16 {acc}, {A_}, {B_}, {'0' if T == 0 else acc}"))
            if (T & 1) == 0:
                cs = v(vCs[g], 4)
                sm.append(I(f"v_mfma_f32_16x16x32_bf16 {cs}, {v(vSel, 4)}, {v(vWf[buf][g], 4)}, {'0' if T == 0 else cs}"))
        if self.opt.get("snake", 0):
            big[2], big[3] = big[3], big[2]
        return big, sm

    def reads2(self, T):
        b, tau = divmod(T, 4)
        return [I(f"ds_read_b64_tr_b16 {v(48 + 4 * (T & 3) + 2 * u, 2)}, {v(vBr[tau & 1])} offset:{8192 * bpos(b) + (tau & 2) * 2048 + 512 * u}", f"q{T}")
                for u in range(2)]

    def mfma2(self, T):
        wf = v(48 + 4 * (T & 3), 4)
        big = [I(f"v_mfma_f32_32x32x16_bf16 {v(vAcc2(gg), 16)}, {wf}, {a(8 * T + 4 * gg, 4)}, {'0' if T == 0 else v(vAcc2(gg), 16)}") for gg in range(2)]
        cs = v(vCs[2], 4)
        return big, I(f"v_mfma_f32_16x16x32_bf16 {cs}, {v(vSel, 4)}, {wf}, {'0' if T == 0 else cs}")

    def setup_now(self):
        S = []
        e = lambda t, tag=None: S.append(I(t, tag))
        for nm in ("ws", "w2", "wo"):
            b = int(SRD[nm][2:].split(":")[0])
            e(f"s_mov_b32 s{b + 2}, {KARG[nm][1]}")
            e(f"s_mov_b32 s{b + 3}, 0x20000")
        e(f"s_and_b32 {sRH}, {sW}, 1")
        e(f"s_lshr_b32 {sCH}, {sW}, 1")
        for k in range(1, 8):
            e(f"s_add_u32 {sXk[k]}, {sXk[k - 1]}, 128")
            e(f"s_and_b32 {sXk[k]}, {sXk[k]}, 0x380")
        e(f"v_and_b32 v232, 31, {vLane}")
        e(f"v_lshrrev_b32 v233, 5, {vLane}")
        e(f"v_lshlrev_b32 {v(vP32)}, 2, v232")
        e("v_bfe_u32 v234, v232, 1, 3")
        e("v_xor_b32 v234, v234, v233")
        e(f"s_lshl_b32 {sA}, {sRH}, 14")
        e(f"s_add_u32 {sA}, {sA}, {SLOT0}")
        e(f"v_lshl_add_u32 v235, v232, 7, {sA}")
        e(f"s_lshl_b32 {sB}, {sRH}, 1")
        e(f"v_xor_b32 v234, {sB}, v234")
        e(f"v_lshl_add_u32 {v(vXrA[0])}, v234, 4, v235")
        for tau in range(1, 4):
            e(f"v_xor_b32 {v(vXrA[tau])}, {32 * tau}, {v(vXrA[0])}")
        for tau in range(4):
            e(f"v_add_u32 {v(vXrB[tau])}, 65536, {v(vXrA[tau])}")
        e(f"v_bfe_u32 v234, {vLane}, 2, 2")
        e(f"v_bfe_u32 v238, {vLane}, 4, 1")
        e("v_lshlrev_b32 v238, 5, v238")
        e(f"v_and_b32 v236, 3, {vLane}")
        e("v_lshl_add_u32 v238, v236, 3, v238")
        e("v_lshrrev_b32 v236, 1, v234")
        e(f"v_xor_b32 v236, {sCH}, v236")
        e("v_lshl_add_u32 v236, v236, 6, v238")
        e("v_lshl_add_u32 v237, v233, 3, v234")
        e("v_lshl_add_u32 v237, v237, 7, v236")
        e(f"s_lshl_b32 {sA}, {sRH}, 13")
        e(f"s_add_u32 {sB}, {sA}, {SLOT0 + 4096}")
        e(f"s_sub_u32 {sC}, {SLOT0 + 4096 + 8192}, {sA}")
        e(f"v_add_u32 {v(vWrA[0])}, {sB}, v237")
        e(f"v_add_u32 {v(vWrA[1])}, {sC}, v237")
        e(f"v_add_u32 {v(vWrB[0])}, 65536, {v(vWrA[0])}")
        e(f"v_add_u32 {v(vWrB[1])}, 65536, {v(vWrA[1])}")
        e(f"v_lshrrev_b32 v234, 2, {vLane}")
        e(f"v_xor_b32 v234, v234, {vLane}")
        e("v_and_b32 v234, 4, v234")
        e("v_cmp_eq_u32 vcc, 0, v234")
        e(f"v_mov_b32 {v(vNE + 1)}, 0x3f803f80")
        for r in range(4):
            e(f"v_cndmask_b32 {v(vSel + r)}, 0, {v(vNE + 1)}, vcc")
        e(f"v_cmp_eq_u32 vcc, 63, {vLane}")
        e(f"v_mov_b32 v212, {OOB}")
        e(f"s_lshl_b32 {sM0}, {sM0}, 3")
        e(f"s_add_u32 {sM0}, {sM0}, {WS_STAT}")
        e("v_cndmask_b32 v212, v212, 0, vcc")
        return S

    def setup_later(self, typ):
        S = []
        e = lambda t, tag=None: S.append(I(t, tag))
        e(f"v_cmp_eq_u32 vcc, 0, {vLane}")
        e(f"v_mov_b32 v222, {OOB}")
        e(f"v_mov_b32 {v(vZero)}, 0")
        e(f"v_cndmask_b32 {vL0}, v222, 0, vcc")
        if typ == "A":
            e(f"s_sub_u32 {sB}, {sW}, 3")
            e(f"s_lshr_b32 {sC}, {sI}, 1")
            e(f"s_or_b32 {sB}, {sB}, {sC}")
            e(f"s_cmp_eq_u32 {sB}, 0")
            e(f"s_cselect_b32 {sB}, 0, {OOB}")
            e(f"s_lshl_b32 {sA}, {sP}, 1")
            e(f"s_add_u32 {sA}, {sA}, {sI}")
            e(f"s_lshl_b32 {sC}, {sA}, 12")
            e(f"s_add_u32 {sC}, {sC}, {sB}")
            e(f"v_add_u32 v194, {sC}, {vL16}")
            e(f"s_lshl_b32 {sC}, {sA}, 7")
            e(f"s_add_u32 {sC}, {sC}, {sB}")
            e(f"v_add_u32 v195, {sC}, {vL0}")
            e(f"v_min_u32 v195, {OOB}, v195")
            for r in range(4):
                e(f"v_mov_b32 v{196 + r}, 0")
            S.append(Rel([[I(f"s_mov_b32 {sG}, {WS_KV}")] +
                          [I(f"buffer_store_dwordx4 v[196:199], v194, {SRD['ws']}, {sG} offen offset:{1024 * k} sc1", "zst") for k in range(3)]]))
        e(f"s_mov_b32 s26, {KARG['b1'][1]}")
        e("s_mov_b32 s27, 0x20000")
        e(f"v_lshrrev_b32 v221, 1, {v(vP32)}")
        if typ == "A":
            e(f"s_mul_i32 {sT1}, {sP}, 6")
            e(f"s_lshr_b32 {sA}, {sP}, 1")
            e(f"s_add_u32 {sA}, {sA}, 43")
            e(f"s_and_b32 {sB}, {sP}, 3")
            e(f"s_cmp_eq_u32 {sB}, 3")
            e(f"s_cselect_b32 {sT0}, {sA}, {sT1}")
            dst = [(sT1, vB2)]
        else:
            dst = [(sT0, vWa[0] + 1), (sT1, vWa[1] + 1)]
        S.append(Rel([[I(f"s_add_u32 {sG}, {st}, {sCH}"), I(f"s_lshl_b32 {sG}, {sG}, 6"),
                       I(f"buffer_load_ushort {v(d)}, v221, {SRD['b1']}, {sG} offen", "b1")] for st, d in dst]))
        e(f"s_lshl_b32 {sW2K}, {sW}, 11")
        e(f"s_add_u32 {sW2K}, {sW2K}, {BBASE}")
        e(f"s_and_b32 s91, {sI}, 1")
        e("s_lshl_b32 s90, s91, 15")
        e("s_lshl_b32 s91, s91, 9")
        e(f"s_lshl_b32 {sW1K}, {sW}, 10")
        stride = 2752 if typ == "A" else 3072
        e(f"v_mul_u32_u24 v222, {stride}, v239")
        e(f"s_mul_i32 {sA}, {sP}, {384 if typ == 'A' else 128}")
        if typ == "A" and self.opt.get("zgarb", 1):
            e(f"s_and_b32 {sB}, {sP}, 3")
            e(f"s_cmp_eq_u32 {sB}, 3")
            e(f"s_cselect_b32 {sA}, {OOB >> 1}, {sA}")
        e(f"v_add3_u32 {v(vBs[0])}, v222, v242, {sA}")
        e(f"v_add_u32 {v(vBs[1])}, {8 * stride - 1024}, {v(vBs[0])}")
        e(f"s_lshl_b32 {sA}, {sRH}, 11")
        e(f"s_add_u32 {sB}, {sA}, {BBASE}")
        e(f"s_sub_u32 {sC}, {BBASE + 2048}, {sA}")
        e(f"v_add_u32 {v(vBr[0])}, {sB}, v237")
        e(f"v_add_u32 {v(vBr[1])}, {sC}, v237")
        e(f"s_lshl_b32 {sA}, {sP}, 1")
        e(f"s_add_u32 {sA}, {sA}, {sCH}")
        e(f"s_lshl_b32 {sB}, {sI}, 1")
        e(f"s_add_u32 {sB}, {sB}, {sRH}")
        e(f"s_lshl_b32 {sM0}, {sB}, 9")
        e(f"s_add_u32 {sM0}, {sM0}, {WS_STAT}")
        e(f"v_lshlrev_b32 {vStA}, 1, {v(vP32)}")
        e(f"s_lshl_b32 {sC}, {sA}, 7")
        e(f"s_add_u32 {sZF}, {sC}, {WS_ZF}")
        S.append("STATREADY")
        e(f"s_add_u32 {sPKV}, {sC}, {WS_KVF}")
        e(f"s_lshl_b32 {sKV}, {sA}, 12")
        e(f"s_add_u32 {sKV}, {sKV}, {WS_KV}")
        e(f"s_lshl_b32 {sC}, {sB}, 2")
        e(f"s_add_u32 {sFKV}, {sPKV}, {sC}")
        e(f"s_lshl_b32 {sActB}, {sB}, {18 + self.fs}")
        e(f"s_add_u32 {sActB}, {sActB}, {WS_ACT}")
        e(f"s_lshl_b32 {sB}, {sB}, 5")
        e(f"s_add_u32 {sB}, {sB}, {sA}")
        e(f"s_lshl_b32 {sB}, {sB}, 2")
        e(f"s_add_u32 {sFAct}, {sB}, {WS_AF if typ == 'A' else WS_BF}")
        e(f"s_add_u32 {sFO}, {sB}, {WS_OF}")
        e(f"s_and_b32 {sR2}, s2, 7")
        e(f"s_lshl_b32 {sR2}, {sR2}, 2")
        e(f"s_lshr_b32 {sA}, s2, 6")
        e(f"s_add_u32 {sR2}, {sR2}, {sA}")
        e(f"s_lshr_b32 {sC2}, s2, 3")
        e(f"s_and_b32 {sC2}, {sC2}, 7")
        if self.opt.get("c2x", 1):
            e(f"s_xor_b32 {sC2}, {sC2}, {self.opt.get('c2x', 1)}")
        e(f"s_lshl_b32 {sA}, {sW}, 3")
        e(f"v_add_lshl_u32 v222, {sA}, v240, 10")
        e(f"s_lshl_b32 {sA}, {sC2}, 7")
        e(f"v_add3_u32 {vW2s}, v222, v242, {sA}")
        e(f"v_cmp_gt_u32 vcc, 32, {vLane}")
        e(f"v_mov_b32 {v(vEL + 1)}, {f2u(LOG2E)}")
        e(f"v_lshlrev_b32 {vL4}, 2, {vLane}")
        e(f"v_cndmask_b32 {vMH0}, 0, -1, vcc")
        e(f"v_mov_b32 {v(vEL)}, {f2u(1e-6)}")
        e(f"v_mov_b32 {v(vNE)}, {f2u(-1e-6 * LOG2E)}")
        e(f"v_mov_b32 {v(vC12)}, {f2u(-2 * LN2)}")
        e(f"v_mov_b32 {v(vC12 + 1)}, {f2u(LN2)}")
        for r in (vXa[0] + 2, vXa[0] + 3, vXa[1] + 2, vXa[1] + 3, vWa[0] + 2, vWa[0] + 3, vWa[1] + 2, vWa[1] + 3):
            e(f"v_mov_b32 {v(r)}, 0")
        if typ == "A":
            e(f"v_mov_b32 {v(vWa[0] + 1)}, 0")
            e(f"v_mov_b32 {v(vWa[1] + 1)}, 0")
        e(f"v_and_b32 v222, 16, {vLane}")
        e(f"v_cmp_eq_u32 {sSET0}, 0, v222")
        e(f"s_lshl_b32 {sA}, {sW}, 9")
        e(f"v_add_u32 {vCsW}, {sA}, {vL4}")
        e(f"v_xor_b32 {vCsR}, 512, {vCsW}")
        if self.opt.get("colpos", "a7") == "a7":
            S += self.pf_w2("col")[0]
        return S

    def setup_p2a(self):
        S = []
        e = lambda t, tag=None: S.append(I(t, tag))
        e(f"v_bfe_u32 v224, {vLane}, 2, 2")
        e(f"v_lshrrev_b32 v226, 5, {vLane}")
        e("v_lshl_add_u32 v225, v226, 2, v224")
        e("v_lshlrev_b32 v225, 7, v225")
        e(f"v_bfe_u32 v226, {vLane}, 4, 1")
        e("v_lshl_add_u32 v225, v226, 5, v225")
        e(f"v_and_b32 v226, 3, {vLane}")
        e("v_lshl_add_u32 v225, v226, 3, v225")
        e(f"s_lshl_b32 {sA}, {sCH}, 11")
        e(f"s_add_u32 {sA}, {sA}, {SLOT0}")
        e("v_lshrrev_b32 v224, 1, v224")
        e(f"v_xor_b32 v224, {sCH}, v224")
        e("v_lshl_add_u32 v225, v224, 6, v225")
        e(f"v_add_u32 {v(vP2r[0][0])}, {sA}, v225")
        e(f"v_xor_b32 {v(vP2r[0][1])}, 64, {v(vP2r[0][0])}")
        for rg in (1, 2):
            for t in range(2):
                e(f"v_add_u32 {v(vP2r[rg][t])}, {65536 * rg}, {v(vP2r[0][t])}")
        if self.fs:
            assert self.opt.get("map", "r") == "r"
            e(f"s_and_b32 {sA}, {sI}, 7")
            e(f"s_cmp_eq_u32 {sA}, 3")
            e(f"s_cselect_b32 {sA}, 5, {sA}")
            e(f"s_lshl_b32 {sA}, {sA}, 7")
            e(f"s_add_u32 {sA}, {sA}, {1024 - 384}")
            e(f"v_lshrrev_b32 v224, 3, {vLane}")
            e("v_cmp_eq_u32 vcc, 3, v224")
            e(f"v_add_u32 v225, {sA}, {vL16}")
            e(f"v_cndmask_b32 {self.vact}, {vL16}, v225, vcc")
        return S

    def setup_p2b(self):
        S = []
        e = lambda t, tag=None: S.append(I(t, tag))
        e(f"v_lshrrev_b32 v20, 5, {vLane}")
        e(f"s_lshl_b32 {sA}, {sR2}, 7")
        e(f"s_add_u32 {sPB}, {sA}, {WS_BF}")
        e(f"s_add_u32 {sPA}, {sA}, {WS_AF}")
        e(f"s_add_u32 {sPO}, {sA}, {WS_OF}")
        e(f"s_lshl_b32 {sA}, {sR2}, 1")
        e(f"s_add_u32 {sA}, {sA}, {sRH}")
        e(f"s_lshl_b32 {sB}, {sA}, 7")
        e(f"s_add_u32 {sB}, {sB}, {sCH}")
        e(f"s_lshl_b32 {sB}, {sB}, {10 + self.fs}")
        e(f"s_add_u32 {sAct2}, {sB}, {WS_ACT}")
        e(f"s_lshl_b32 {sA}, {sA}, 15")
        e(f"s_lshl_b32 {sB}, {sC2}, 1")
        e(f"s_add_u32 {sB}, {sB}, {sCH}")
        e(f"s_lshl_b32 {sB}, {sB}, 6")
        e(f"s_add_u32 {sA}, {sA}, {sB}")
        e("v_lshlrev_b32 v20, 4, v20")
        e(f"v_lshl_add_u32 v20, {v(vP32)}, 8, v20")
        e(f"v_add_u32 v0, {sA}, v20")
        e(f"s_mov_b32 s30, {KARG['out'][1]}")
        e("s_mov_b32 s31, 0x20000")
        e(f"v_and_b32 {vP16}, 60, {v(vP32)}")
        e(f"v_lshrrev_b32 v19, 1, {vP16}")
        e(f"v_and_b32 v19, v19, {vP16}")
        e("v_and_b32 v19, 8, v19")
        e(f"v_xor_b32 {vPA16}, v19, {vP16}")
        e(f"s_lshl_b32 {sA}, {sW}, 12")
        e(f"s_add_u32 {sA}, {sA}, {RED}")
        e(f"v_add_u32 v19, {sA}, {vL16}")
        e(f"s_xor_b32 {sA}, {sW}, 2")
        e(f"s_lshl_b32 {sA}, {sA}, 12")
        e(f"s_add_u32 {sA}, {sA}, {RED}")
        e(f"v_add_u32 v20, {sA}, {vL16}")
        return S

    def stats_produce(self):
        S = []
        e = lambda t, tag=None: S.append(I(t, tag))
        base = [224, 228]
        acc = [200, 201, 202, 203]
        for k in range(2):
            e(f"v_dot2_f32_bf16 {v(acc[k])}, {v(base[k])}, {v(vNE + 1)}, 0")
            e(f"v_dot2_f32_bf16 {v(acc[2 + k])}, {v(base[k])}, {v(base[k])}, 0")
        for d in range(1, 4):
            for k in range(2):
                e(f"v_dot2_f32_bf16 {v(acc[k])}, {v(base[k] + d)}, {v(vNE + 1)}, {v(acc[k])}")
                e(f"v_dot2_f32_bf16 {v(acc[2 + k])}, {v(base[k] + d)}, {v(base[k] + d)}, {v(acc[2 + k])}")
        e("s_nop 2")
        for m in ("row_ror:8 row_mask:0xf", "row_ror:4 row_mask:0xf", "row_ror:2 row_mask:0xf", "row_ror:1 row_mask:0xf",
                  "row_bcast:15 row_mask:0xa", "row_bcast:31 row_mask:0xc"):
            for k in range(4):
                e(f"v_add_f32_dpp {v(acc[k])}, {v(acc[k])}, {v(acc[k])} {m} bank_mask:0xf")
        for k in range(4):
            e(f"v_mul_f32 {v(acc[k])}, {f2u(1.0 / 512)}, {v(acc[k])}")
        for k in range(2):
            e(f"v_fma_f32 {v(acc[2 + k])}, -{v(acc[k])}, {v(acc[k])}, {v(acc[2 + k])}")
        for k in range(2):
            e(f"v_max_f32 {v(acc[2 + k])}, 0, {v(acc[2 + k])}")
        e("v_cvt_pk_bf16_f32 v204, v202, v203")
        e("v_lshlrev_b32 v205, 16, v204")
        e("v_and_b32 v206, 0xffff0000, v204")
        e(f"v_add_f32 v205, {f2u(1e-5)}, v205")
        e(f"v_add_f32 v206, {f2u(1e-5)}, v206")
        e("v_cvt_pk_bf16_f32 v204, v205, v206")
        e("v_lshlrev_b32 v205, 16, v204")
        e("v_and_b32 v206, 0xffff0000, v204")
        e("v_sqrt_f32 v205, v205")
        e("v_sqrt_f32 v206, v206")
        S.append(W("lg"))
        e(f"s_add_u32 {sT}, {sE}, {TAGC}")
        e(f"v_mov_b32 {vTag}, {sT}")
        e(f"v_mov_b32 v209, {sT}")
        e(f"v_mov_b32 v211, {sT}")
        e("v_cvt_pk_bf16_f32 v208, v200, v205")
        e("v_cvt_pk_bf16_f32 v210, v201, v206")
        e(f"buffer_store_dwordx4 v[208:211], v212, {SRD['ws']}, {sM1} offen sc1")
        return S

    def head(self, typ):
        o = self.opt
        S = [Hold(True)]
        S += [Rel(self.dma_a(1, typ)), Flush(o.get("early1", 2))]
        later = [x for x in self.setup_later(typ) if x != "STATREADY"]
        S += [I(f"s_mov_b32 {sM1}, {sM0}")]
        self.early_ex = []
        if o.get("spread", 1):
            self.early_ex = [W("vm", "strow")] + [x for x in self.stats_produce() if not isinstance(x, W)] + later
            S += [W("lg"), Flush(), Rel(self.dma_a(2, typ))]
            return S
        late_groups = [g for x in later if isinstance(x, Rel) for g in x.groups]
        S += [x for x in later if not isinstance(x, Rel)]
        self.stamp(S, "setup")
        S.append(W("vm", "strow"))
        self.stamp(S, "strow")
        S += [Hold(False), Pace(o.get("pace0", 40))] + self.stats_produce()
        self.stamp(S, "stats")
        S.append(Flush())
        self.stamp(S, "prea0")
        S.append(Rel(self.dma_a(2, typ) + late_groups))
        return S

    def stat_loads(self, typ):
        G = [I(f"buffer_load_dwordx2 {v(vSt[0], 2)}, {vStA}, {SRD['ws']}, {sM0} offen sc1", "stat"),
             I(f"buffer_load_dwordx2 {v(vSt[1], 2)}, {vStA}, {SRD['ws']}, {sM0} offen offset:256 sc1", "stat")]
        if typ == "A":
            G.append(I(f"buffer_load_dword {v(vZf)}, {v(vZero)}, {SRD['ws']}, {sZF} offen sc1", "stat"))
        return G

    def stat_check(self, typ):
        S = []
        e = lambda t, tag=None: S.append(I(t, tag))
        slow, back = self.label("slow"), self.label("back")
        cmp = [f"v_xor_b32 v222, {sT}, {v(vSt[0] + 1)}", f"v_xor_b32 v223, {sT}, {v(vSt[1] + 1)}", "v_or_b32 v222, v222, v223"]
        if typ == "A":
            cmp += [f"v_xor_b32 v223, {sT}, {v(vZf)}", "v_or_b32 v222, v222, v223"]
        cmp.append("v_cmp_ne_u32 vcc, 0, v222")
        S.append(W("vm", "stat"))
        for t in cmp:
            e(t)
        e(f"s_cbranch_vccnz {slow}")
        e(f"{back}:")
        self.slow += [f"{slow}:", f"s_mov_b32 {sCnt}, {SPIN}", f"{slow}_l:", f"s_sleep {self.opt.get('sleep', 2)}"] + \
            [it.t for it in self.stat_loads(typ)] + ["s_waitcnt vmcnt(0)"] + cmp + \
            [f"s_cbranch_vccz {back}", f"s_sub_u32 {sCnt}, {sCnt}, 1", f"s_cbranch_scc0 {slow}_l", f"s_branch {back}"]
        for gg in range(2):
            g = v(vSt[gg])
            e(f"v_and_b32 v222, 0xffff, {g}")
            e(f"v_and_b32 v223, 0xffff0000, {g}")
            e("v_xor_b32 v222, 0x8000, v222")
            e(f"v_rcp_f32 {v(vRs[gg])}, v223")
            e("v_lshl_or_b32 v222, v222, 16, v222")
            e(f"v_lshrrev_b32 v223, 16, {g}")
            e(f"v_and_b32 {v(vXa[gg])}, {vMH0}, v222")
            e(f"v_and_b32 {v(vXa[gg] + 1)}, {vMH0}, v223")
            e(f"v_mul_f32 {v(vRs[gg] + 1)}, {v(vEL + 1)}, {v(vRs[gg])}")
        if typ == "A":
            e(f"s_lshl_b32 {sA}, {sW}, 8")
            e(f"v_add_u32 v222, {sA}, {v(vP32)}")
            e(f"v_lshrrev_b32 v223, 5, {vLane}")
            e(f"ds_write_b32 v222, {v(vRs[0])} offset:{SC_RS}")
            e(f"ds_write_b32 v222, {v(vRs[1])} offset:{SC_RS + 128}")
            e(f"v_lshl_add_u32 v223, v223, 4, {sA}")
            for gg in range(2):
                for jj in range(4):
                    e(f"ds_read_b128 {v(vRsA[gg] + 4 * jj, 4)}, v223 offset:{SC_RS + 128 * gg + 32 * jj}", "rs")
        S.append(W("vm", "b1"))
        e(f"s_add_u32 s24, s32, {WS_DUAL}")
        e("s_addc_u32 s25, s33, 0")
        e(f"s_mov_b32 s26, {WS_BYTES - WS_DUAL}")
        e(f"v_mov_b32 {v(vWa[2] + 1)}, {v(vB2) if typ == 'A' else 0}")
        e(f"v_mov_b32 {v(vWa[2] + 2)}, 0")
        e(f"v_mov_b32 {v(vWa[2] + 3)}, 0")
        return S

    def poll_issue(self, line_s, vaddr, reg, tag, dual=False):
        off = f" offset:{0}" if not dual else ""
        if dual and self.opt.get("dual", 1):
            return I(f"buffer_load_dword {reg}, {vaddr}, {SRD['ws2']}, {line_s} offen sc1", tag)
        return I(f"buffer_load_dword {reg}, {vaddr}, {SRD['ws']}, {line_s} offen sc1", tag)

    def poll_check(self, line_s, vaddr, reg, tag, prelude=(), dual=False):
        slow, back = self.label("slow"), self.label("back")
        L = [f"{slow}:"] + list(prelude) + [f"s_mov_b32 {sCnt}, {SPIN}", f"{slow}_l:", f"s_sleep {self.opt.get('sleep', 2)}"]
        one = lambda srd: [f"buffer_load_dword {reg}, {vaddr}, {srd}, {line_s} offen sc1", "s_waitcnt vmcnt(0)",
                           f"v_cmp_ne_u32 vcc, {sT}, {reg}", f"s_cbranch_vccz {back}"]
        if dual and self.opt.get("dual", 1):
            L += one(SRD["ws2"]) + [f"s_sub_u32 {sCnt}, {sCnt}, 1", f"s_and_b32 {sM1}, {sCnt}, 7", f"s_cbranch_scc1 {slow}_l"]
        L += one(SRD["ws"]) + [f"s_sub_u32 {sCnt}, {sCnt}, 1", f"s_cbranch_scc0 {slow}_l", f"s_branch {back}"]
        self.slow += L
        return [W("vm", tag), I(f"v_cmp_ne_u32 vcc, {sT}, {reg}"), I(f"s_cbranch_vccnz {slow}"), I(f"{back}:")]

    def flag(self, tag, sreg, dual=False):
        S = [W("vm", tag)]
        if dual and self.opt.get("dual", 1):
            S.append(I(f"buffer_store_dword {vTag}, {vL0}, {SRD['ws2']}, {sreg} offen"))
        return S + [I(f"buffer_store_dword {vTag}, {vL0}, {SRD['ws']}, {sreg} offen sc1")]

    def cs_write(self, regs):
        return [I(f"ds_write_b32 {vCsW}, {v(r)} offset:{SC_CS + 256 * k}") for k, r in enumerate(regs)]

    def cs_read(self, regs):
        return [I(f"ds_read_b32 {v(r + 1)}, {vCsR} offset:{SC_CS + 256 * k}", "cs") for k, r in enumerate(regs)]

    def aug_v(self, cs, wa):
        return [I(f"v_add_f32 {v(cs)}, {v(cs)}, {v(cs + 1)}"), I(f"v_cvt_pk_bf16_f32 {v(cs + 1)}, {v(cs)}, {v(cs)}"),
                I(f"v_and_b32 {v(cs + 1)}, 0xffff0000, {v(cs + 1)}"), I(f"v_sub_f32 {v(cs + 2)}, {v(cs)}, {v(cs + 1)}"),
                I(f"v_cvt_pk_bf16_f32 {v(wa)}, {v(cs + 1)}, {v(cs + 2)}")]

    def aug_m(self, wa, accs, normal):
        S = []
        for gg, acc in enumerate(accs):
            A_, B_ = (v(vXa[gg], 4), v(wa, 4)) if normal else (v(wa, 4), v(vXa[gg], 4))
            S.append(I(f"v_mfma_f32_32x32x16_bf16 {v(acc, 16)}, {A_}, {B_}, {v(acc, 16)}"))
        return S

    def mish(self, acc, gg, st):
        S = []
        e = lambda t, tag=None: S.append(I(t, tag))
        E, U, P = vT, vT + 8, vT + 16
        e(f"s_add_u32 {sD}, {st}, {sCH}")
        e(f"s_lshl_b32 {sD}, {sD}, {11 + self.fs}")
        e(f"s_add_u32 {sD}, {sD}, {sActB}")
        if gg:
            e(f"s_add_u32 {sD}, {sD}, {131072 << self.fs}")
        for half in range(2):
            b = acc + 8 * half
            po = P + 4 * half
            Q = (0, 2, 4, 6)
            for r in Q:
                e(f"v_pk_mul_f32 {v(E + r, 2)}, {v(b + r, 2)}, {v(vRs[gg], 2)} op_sel:[0,1] op_sel_hi:[1,1]")
            for r in range(8):
                e(f"v_exp_f32 {v(U + r)}, {v(E + r)}")
            for r in Q:
                e(f"v_pk_add_f32 {v(U + r, 2)}, {v(U + r, 2)}, 1.0 op_sel_hi:[1,0]")
            for r in Q:
                e(f"v_pk_fma_f32 {v(U + r, 2)}, {v(U + r, 2)}, {v(U + r, 2)}, 1.0 op_sel_hi:[1,1,0]")
            for r in range(8):
                e(f"v_rcp_f32 {v(U + r)}, {v(U + r)}")
            for r in Q:
                e(f"v_pk_fma_f32 {v(U + r, 2)}, {v(U + r, 2)}, {v(vC12, 2)}, {v(vC12, 2)} op_sel:[0,0,1] op_sel_hi:[1,0,1]")
            for r in Q:
                e(f"v_pk_mul_f32 {v(E + r, 2)}, {v(E + r, 2)}, {v(U + r, 2)}")
            for r in Q:
                e(f"v_cvt_pk_bf16_f32 {v(po + r // 2)}, {v(E + r)}, {v(E + r + 1)}")
            off = f" offset:{1024 << self.fs}" if half else ""
            vv = vL0 if self.opt.get("x_nost") else self.vact
            e(f"buffer_store_dwordx4 {v(po, 4)}, {vv}, {SRD['ws']}, {sD} offen{off} {self.opt.get('staux', 'sc1')}", "actst")
        return S

    def phi(self, acc, dst, rs_fn):
        S = []
        e = lambda t, tag=None: S.append(I(t, tag))
        Tt, U = vT, vT + 8
        Q = (0, 2, 4, 6)
        for q in (0, 8):
            for r in Q:
                op, sel, selh = rs_fn(q + r)
                e(f"v_pk_fma_f32 {v(Tt + r, 2)}, {v(acc + q + r, 2)}, {op}, {v(vEL, 2)} op_sel:[0,{sel},0] op_sel_hi:[1,{selh},0]")
            for r in Q:
                e(f"v_pk_fma_f32 {v(U + r, 2)}, {v(Tt + r, 2)}, {v(vEL, 2)}, {v(vNE, 2)} op_sel:[0,1,0] op_sel_hi:[1,1,0]")
            for r in range(8):
                e(f"v_exp_f32_e64 {v(U + r)}, {v(U + r)} clamp")
            for r in range(8):
                e(f"v_max_f32 {v(Tt + r)}, {v(Tt + r)}, {v(vEL)}")
            for r in Q:
                e(f"v_pk_add_f32 {v(Tt + r, 2)}, {v(Tt + r, 2)}, {v(U + r, 2)}")
            for r in Q:
                e(f"v_cvt_pk_bf16_f32 {v(dst + (q + r) // 2)}, {v(Tt + r)}, {v(Tt + r + 1)}")
        return S

    def p2_reads(self, n, dst_fn, tag):
        rg, off = divmod(pc_addr(n) - SLOT0, 65536)
        return [I(f"ds_read_b64_tr_b16 {dst_fn(t, u)}, {v(vP2r[rg][t])} offset:{off + 1024 * u}", tag)
                for t in range(2) for u in range(2)]

    def xres_loads(self):
        return [[I(f"buffer_load_dwordx4 {v(vXr, 4)}, v0, {SRD['x']}, 0 offen", "xres")],
                [I(f"buffer_load_dwordx4 {v(vXr + 4, 4)}, v0, {SRD['x']}, 0 offen offset:32", "xres")]]

    def xres_unpack(self):
        S = [W("vm", "xres")]
        e = lambda t, tag=None: S.append(I(t, tag))
        for k in range(2):
            e(f"v_permlane32_swap_b32 {v(vXr + 4 * k)}, {v(vXr + 4 * k + 2)}")
            e(f"v_permlane32_swap_b32 {v(vXr + 4 * k + 1)}, {v(vXr + 4 * k + 3)}")
        for d in range(8):
            e(f"v_lshlrev_b32 {v(vAo[0] + 2 * d)}, 16, {v(vXr + d)}")
            e(f"v_and_b32 {v(vAo[0] + 2 * d + 1)}, 0xffff0000, {v(vXr + d)}")
        return S

    def pass1(self, typ):
        o = self.opt
        S = [W("vm", "a0"), I("s_barrier")]
        self.stamp(S, "a0")
        S.append(Hold(True))
        r0, r1 = self.reads1(0)
        S += r0 + r1
        ex = Extras()
        ex.add(self.early_ex)
        spread = o.get("spread", 1)
        for T in range(32):
            if T == 31:
                S += [W("lg"), I("s_barrier")]
                self.stamp(S, "p1end")
                G = []
                if o.get("bk") is None:
                    for b in range(o.get("bearly", 8), 8):
                        G += self.dma_b(b, typ)
                S.append(Rel(G + [self.dma_w2(n) for n in range(0 if o.get("bk") is None else 14, 22)]))
            elif T % 4 == 3:
                k = (T + 1) // 4
                S += [W("lg")]
                self.stamp(S, f"pre{k}")
                S += [W("vm", f"a{k}"), I("s_barrier")]
                self.stamp(S, f"a{k}")
                G = []
                if k <= 5 and not o.get("x_nodma"):
                    G += self.dma_a(k + 2, typ)
                if o.get("x_halfdma"):
                    G = G[:4]
                if k == o.get("statk", 5 if spread else 4):
                    assert not ex.q
                if typ == "A" and k == (4 if spread else 2):
                    G = [[W("vm", "zst"), I(f"s_mov_b32 {sG}, {WS_ZF}"),
                          I(f"buffer_store_dword {vTag}, v195, {SRD['ws']}, {sG} offen sc1")]] + G
                if k == o.get("statk", 5 if spread else 4):
                    G = [self.stat_loads(typ)] + G
                bk = o.get("bk")
                if bk is None:
                    if k == 5:
                        for b in range(min(3, o.get("bearly", 8))):
                            G += self.dma_b(b, typ)
                    if k == 6:
                        for b in range(3, o.get("bearly", 8)):
                            G += self.dma_b(b, typ)
                else:
                    for b in range(8):
                        if bk[b] == k:
                            G += self.dma_b(b, typ)
                    if k == 6:
                        G += [self.dma_w2(n) for n in range(0, 6)]
                    if k == 7:
                        G += [self.dma_w2(n) for n in range(6, 14)]
                if k == o.get("statk", 5 if spread else 4) + 1:
                    ex.add(self.stat_check(typ))
                if k == 6:
                    ex.add(self.setup_p2a())
                if k == 7 and o.get("colpos", "a7") == "a7":
                    G.append(self.pf_w2("col")[1])
                S.append(Rel(G))
            big, sm = self.mfma1(T, typ)
            if o.get("x_nom16") and T != 30:
                sm = []
            dT = o.get("dotT", 32)
            dots = []
            if sm and T < dT:
                for d in range(4):
                    for g in range(2):
                        acc = v(vDs[g])
                        dots.append(I(f"v_dot2_f32_bf16 {acc}, {v(vWf[0][g] + d)}, {v(vNE + 1)}, {'0' if (T == 0 and d == 0) else acc}"))
                sm = []
            elif sm and T == dT + (dT & 1) and dT:
                sm = [I(m.t.rsplit(",", 1)[0] + ", 0") for m in sm]
            if T == 31:
                S += [big[0]] + self.cs_read(vCs[:2]) + [Slot(0), big[1], W("lg", "cs")] + self.aug_v(vCs[0], vWa[0]) + \
                    [big[2]] + self.aug_v(vCs[1], vWa[1]) + [big[3], Slot(0)]
                S += self.aug_m(vWa[0], [vAcc1(0, 0), vAcc1(0, 1)], typ == "A") + self.aug_m(vWa[1], [vAcc1(1, 0), vAcc1(1, 1)], typ == "A")
                continue
            r0, r1 = self.reads1(T + 1)
            if T == 30:
                fin = []
                if dT:
                    for g in range(2):
                        fin += [I(f"v_mov_b32 {v(vCs[g] + 1)}, {v(vDs[g])}")]
                    for g in range(2):
                        fin += [I(f"v_permlane32_swap_b32 {v(vCs[g] + 1)}, {v(vDs[g])}")]
                    for g in range(2):
                        if dots:
                            fin += [I(f"v_add_f32 {v(vCs[g])}, {v(vCs[g] + 1)}, {v(vDs[g])}")]
                        else:
                            fin += [I(f"v_add_f32 {v(vDs[g])}, {v(vCs[g] + 1)}, {v(vDs[g])}"), I(f"v_add_f32 {v(vCs[g])}, {v(vCs[g])}, {v(vDs[g])}")]
                S += [W("lg", f"r{T}c")] + sm + dots + [big[0]] + r0 + ex.take(2) + [big[1]] + r1 + [I("s_nop 0")] * bool(dots) + fin + \
                    [big[2]] + self.cs_write(vCs[:2]) + ex.take(3) + [big[3]] + ex.take(1000)
                continue
            busy = T < 27
            if o.get("x_pad") and T in range(*o.get("x_padr", (0, 32))):
                S += [I("s_nop 7")] * o["x_pad"]
            S += [W("lg", f"r{T}a"), big[0]] + r0 + ([Slot(0)] if T < 3 else [])
            n1, n3 = o.get("exn", (8, 10)) if (spread and T < 19) else ((3, 3) if busy else (5, 5))
            S += [W("lg", f"r{T}b"), big[1], Slot(0)] + ex.take(n1)
            S += sm[:1] + [W("lg", f"r{T}c"), big[2]] + r1 + ([Slot(0, True)] if (T >= 3 and not ((T & 1) == 0 and T in range(*o.get("s3", (0, 0))))) else [Slot(0)])
            S += [big[3], Slot(0)] + ex.take(n3) + sm[1:] + dots
        S += [Hold(False), Pace(o.get("pace2" + typ, o.get("pace2", 80)))]
        return S

    def pass2(self, typ, mid=None, extra=None):
        o = self.opt
        bw = 4 if o.get("bswap", 0) else 0
        S = [W("vm", f"b{bw}s"), W("vm", "c0"), I("s_barrier"), Hold(True)]
        self.stamp(S, "w0")
        S += self.reads2(0) + self.reads2(1)
        wr = {k + 1: k for k in range(21)}
        ex = Extras()
        ex.add(extra or [])
        ex.add(self.setup_p2b())
        gap = o.get("gap2", 40)
        for T in range(32):
            if T in P2BAR and T < 31:
                S += [W("lg")]
                self.stamp(S, f"u{T}")
                S += [W("vm", f"b{min(7, (T + 2) // 4 + bw)}s"), W("vm", f"c{min(T + 2, 20)}"), I("s_barrier")]
                self.stamp(S, f"w{T}")
                S.append(Rel([self.dma_w2(n) for n in P2REL[T]]))
            if mid and T in mid:
                S.append(Rel([mid[T]], front=True))
            big, sm = self.mfma2(T)
            if T == 31:
                S += [W("lg"), I("s_barrier")]
                self.stamp(S, "p2end")
                S += [big[0]] + self.cs_read(vCs[2:]) + [Slot(0), big[1], W("lg", "cs")] + self.aug_v(vCs[2], vWa[2])
                S += self.aug_m(vWa[2], [vAcc2(0), vAcc2(1)], False)
                continue
            rd = self.reads2(T + 2) if T < 30 else self.cs_write(vCs[2:])
            wq = self.p2_reads(wr[T], lambda t, u: a(8 * wr[T] + 4 * t + 2 * u, 2), "wreg") if T in wr else []
            S += [W("lg", f"q{T}"), big[0]] + rd + (wq[:1] if wq else ex.take(2)) + [big[1], Slot(gap)] + (wq[1:] if wq else ex.take(3))
            if T == 29:
                S += [W("lg", "q30"), self.mfma2(30)[1]]
            elif T == 30:
                S += ex.take(1000)
            elif (T & 1) == 0:
                S += [sm] + ([Slot(0)] if (o.get("p2s2", 4) and T % o.get("p2s2", 4) == 0) else ex.take(1))
        S += [Hold(False), Pace(o.get("pace4" + typ, o.get("pace4", 80)))]
        return S

    def tail_groups(self):
        return ([] if self.opt.get("xfront", 1) else self.xres_loads()) + [self.dma_w2(n) for n in P2REL[31]]

    def act_ld(self, n):
        kind, T = ORDER[n]
        T = T if kind == "f" else 48 + T
        return [I(f"s_add_u32 {sG}, {sAct2}, {(T * 2048) << self.fs}"),
                I(f"buffer_load_dwordx4 {act_reg(n)}, {self.vact}, {SRD['ws']}, {sG} offen sc1", f"x{n}")]

    def early_act(self):
        S = [Hold(True)] + self.poll_check(sPB, vP16, vPoll, "bpoll", dual=True) + [Hold(False)]
        self.stamp(S, "actok")
        xf = self.opt.get("xfront", 1)
        S.append(Rel((self.xres_loads() if xf else []) + [self.act_ld(n) for n in range(self.opt.get("R", 12))], front=bool(xf)))
        return S

    def path_a(self):
        o = self.opt
        S = []
        e = lambda t, tag=None: S.append(I(t, tag))
        S += self.head("A")
        S += self.pass1("A")
        PK, PV = 128, 144
        C0, C1 = 64, 80
        for k in range(3):
            e(f"v_and_b32 v222, {1 << k}, {vLane}")
            e(f"v_cmp_ne_u32 {sLB[k]}, 0, v222")
        e(f"v_bfe_u32 v222, {vLane}, 4, 1")
        e(f"v_lshrrev_b32 v223, 5, {vLane}")
        e("v_lshl_add_u32 v222, v222, 1, v223")
        e(f"v_and_b32 v223, 7, {vLane}")
        e("v_lshl_add_u32 v222, v222, 3, v223")
        e("v_lshlrev_b32 v222, 2, v222")
        e(f"v_lshrrev_b32 v223, 1, {vLane}")
        e(f"s_lshl_b32 {sA}, {sRH}, 3")
        e(f"v_xor_b32 v223, {sA}, v223")
        e(f"v_or_b32 v223, v223, {vLane}")
        e("v_and_b32 v223, 8, v223")
        e(f"v_mul_u32_u24 v223, {OOB >> 11}, v223")
        e(f"v_lshl_add_u32 {v(vZf)}, v223, 8, v222")
        e(f"s_cmp_eq_u32 {sRH}, 1")
        e(f"s_cselect_b64 {sRHM}, -1, 0")
        e(f"s_lshl_b32 {sA}, {sW}, 10")
        e(f"v_add_u32 v21, {sA}, {vL16}")
        e("v_xor_b32 v22, 1024, v21")
        e(f"s_lshl_b32 {sA}, {sW}, 8")
        e(f"v_add_u32 v23, {sA}, {vL4}")
        e("v_xor_b32 v24, 256, v23")
        e(f"s_lshl_b32 {sB}, {sRH}, 10")
        e(f"s_add_u32 {sM1}, {sB}, {sKV}")
        S.append(W("lg"))
        for gg in range(2):
            S += self.phi(vAcc1(0, gg), PK + 8 * gg, lambda r, gg=gg: (v(vRsA[gg] + r, 2), 0, 1))
        for gg in range(2):
            acc = vAcc1(1, gg)
            for r in range(0, 16, 2):
                e(f"v_pk_mul_f32 {v(acc + r, 2)}, {v(acc + r, 2)}, {v(vRsA[gg] + r, 2)}")
            for r in range(0, 16, 2):
                e(f"v_cvt_pk_bf16_f32 {v(PV + 8 * gg + r // 2)}, {v(acc + r)}, {v(acc + r + 1)}")
        ONE = 96
        for r in range(4):
            e(f"v_mov_b32 {v(ONE + r)}, {v(vNE + 1)}")
        for f in range(4):
            e(f"v_mfma_f32_32x32x16_bf16 {v(C1, 16)}, {v(PK + 4 * f, 4)}, {v(ONE, 4)}, {'0' if f == 0 else v(C1, 16)}")
        for f in range(4):
            e(f"v_mfma_f32_32x32x16_bf16 {v(C0, 16)}, {v(PK + 4 * f, 4)}, {v(PV + 4 * f, 4)}, {'0' if f == 0 else v(C0, 16)}")
        M, Z = 100, 108
        for r in range(8):
            e(f"v_cndmask_b32 {v(Z + r)}, {v(C1 + 8 + r)}, {v(C1 + r)}, {sSET0}")
        for k in range(3):
            for r in range(4 >> k):
                e(f"v_cndmask_b32 {v(Z + r)}, {v(Z + 2 * r)}, {v(Z + 2 * r + 1)}, {sLB[k]}")
        e(f"ds_write_b32 v23, {v(Z)} offset:3072")
        SD, KP = 116, 120
        for r in range(8):
            e(f"v_cndmask_b32 {v(M + r)}, {v(C0 + 8 + r)}, {v(C0 + r)}, {sSET0}")
        for r in range(4):
            e(f"v_cndmask_b32 {v(SD + r)}, {v(M + 4 + r)}, {v(M + r)}, {sRHM}")
        e(f"ds_write_b128 v21, {v(SD, 4)} offset:{SC_KV}")
        for r in range(4):
            e(f"v_cndmask_b32 {v(KP + r)}, {v(M + r)}, {v(M + 4 + r)}, {sRHM}")
        S += [W("lg"), I("s_barrier"), Hold(True)]
        e(f"ds_read_b128 {v(124, 4)}, v22 offset:{SC_KV}")
        e(f"ds_read_b32 {v(Z + 1)}, v24 offset:3072")
        S += [Slot(0), W("lg")]
        for r in range(4):
            e(f"v_add_f32 {v(KP + r)}, {v(KP + r)}, {v(124 + r)}")
            e(f"buffer_atomic_add_f32 {v(KP + r)}, {vL4}, {SRD['ws']}, {sM1} offen offset:{256 * r}", "kvat")
        e(f"v_add_f32 {v(Z)}, {v(Z)}, {v(Z + 1)}")
        e(f"buffer_atomic_add_f32 {v(Z)}, {v(vZf)}, {SRD['ws']}, {sKV} offen offset:2048", "kvat")
        S.append(Hold(False))
        self.stamp(S, "epi1")
        S += self.pass2("A", mid={o.get("kvflagT", 10): self.flag("kvat", sFKV)})
        S.append(Rel(self.tail_groups()))
        S += [self.poll_issue(sPB, vP16, vPoll, "bpoll", dual=True)] + self.mish(vAcc2(0), 0, sT0) + self.early_act() + self.mish(vAcc2(1), 1, sT0)
        self.stamp(S, "epi2")
        S += self.phase2("actst", sFAct)
        return S

    def path_b(self):
        o = self.opt
        S = []
        e = lambda t, tag=None: S.append(I(t, tag))
        S += self.head("B")
        S += self.pass1("B")
        for g in range(2):
            for gg in range(2):
                S += self.mish(vAcc1(g, gg), gg, (sT0, sT1)[g])
        self.stamp(S, "epi1")
        KV, ZZ, PQ = 96, 104, 112
        kT = o.get("kvpollT", 24)
        za = [I(f"v_bfe_u32 v64, {vLane}, 4, 1"), I("v_xor_b32 v64, 1, v64"), I(f"v_lshrrev_b32 v66, 5, {vLane}"),
              I("v_lshlrev_b32 v64, 6, v64"), I("v_lshl_add_u32 v64, v66, 5, v64")]
        ld = [I(f"buffer_load_dword {v(KV + r)}, {vL4}, {SRD['ws']}, {sKV} offen offset:{256 * r} sc1", "kvld") for r in range(8)] + \
             [I(f"buffer_load_dwordx4 {v(ZZ + 4 * k, 4)}, v64, {SRD['ws']}, {sKV} offen offset:{2048 + 16 * k} sc1", "kvld") for k in range(2)]
        chk = self.poll_check(sPKV, v(vP32), "v65", "kvpoll")
        self.stamp(chk, "kvok")
        post = o.get("kvpost", 1)
        mid = {o.get("actflagT", 12): self.flag("actst", sFAct, True),
               (28 if post else kT): [self.poll_issue(sPKV, v(vP32), "v65", "kvpoll")]}
        if not post:
            mid[o.get("kvchkT", 29)] = chk + ld
        S += self.pass2("B", mid=mid, extra=za)
        if post:
            S += [Hold(True)] + chk + ld + [Hold(False)]
        S.append(Rel(self.tail_groups()))
        KP_, ZP, F0, F1 = 64, 68, 72, 76
        fb = [W("vm", "kvld")]
        for r in range(4):
            fb.append(I(f"v_cvt_pk_bf16_f32 {v(KP_ + r)}, {v(KV + 2 * r)}, {v(KV + 2 * r + 1)}"))
            fb.append(I(f"v_cvt_pk_bf16_f32 {v(ZP + r)}, {v(ZZ + 2 * r)}, {v(ZZ + 2 * r + 1)}"))
        for r in range(4):
            fb.append(I(f"v_cndmask_b32 {v(F0 + r)}, {v(ZP + r)}, {v(KP_ + r)}, {sSET0}"))
            fb.append(I(f"v_cndmask_b32 {v(F1 + r)}, {v(KP_ + r)}, {v(ZP + r)}, {sSET0}"))
        if not post:
            S += fb
        e(f"s_lshl_b32 {sD}, {sP}, 1")
        e(f"s_add_u32 {sD}, {sD}, {sCH}")
        e(f"s_lshl_b32 {sD}, {sD}, {11 + self.fs}")
        e(f"s_add_u32 {sD}, {sD}, {sActB}")
        e(f"s_add_u32 {sD}, {sD}, {(96 * 1024) << self.fs}")
        D = [190, 206, 128, 144]

        def omf(gg):
            return [I(f"v_mfma_f32_32x32x16_bf16 {v(D[2 * gg + hd], 16)}, {v((F0, F1)[hd], 4)}, {v(PQ + 8 * gg + 4 * hd, 4)}, 0") for hd in range(2)]

        def ofin(gg):
            for hd in range(2):
                d = D[2 * gg + hd]
                num, den = (d, d + 8) if hd == 0 else (d + 8, d)
                po = 80 + 4 * (2 * gg + hd)
                e(f"v_add_f32 {v(den)}, {v(vEL)}, {v(den)}")
                e(f"v_rcp_f32 {v(den)}, {v(den)}")
                for r in range(0, 8, 2):
                    e(f"v_pk_mul_f32 {v(num + r, 2)}, {v(num + r, 2)}, {v(den, 2)} op_sel_hi:[1,0]")
                for r in range(0, 8, 2):
                    e(f"v_cvt_pk_bf16_f32 {v(po + r // 2)}, {v(num + r)}, {v(num + r + 1)}")
                off = f" offset:{1024 << self.fs}" if hd else ""
                e(f"buffer_store_dwordx4 {v(po, 4)}, {self.vact}, {SRD['ws']}, {sD} offen{off} {self.opt.get('staux', 'sc1')}", "ost")
        S += [self.poll_issue(sPB, vP16, vPoll, "bpoll", dual=True)] + self.phi(vAcc2(0), PQ, lambda r: (v(vRs[0], 2), 0, 0))
        if post:
            S += self.early_act() + self.phi(vAcc2(1), PQ + 8, lambda r: (v(vRs[1], 2), 0, 0)) + fb + omf(0) + omf(1)
        else:
            S += omf(0) + self.early_act() + self.phi(vAcc2(1), PQ + 8, lambda r: (v(vRs[1], 2), 0, 0)) + omf(1)
        ofin(0)
        e(f"s_add_u32 {sD}, {sD}, {131072 << self.fs}")
        ofin(1)
        self.stamp(S, "epi2")
        S += self.phase2("ost", sFO)
        return S

    def phase2(self, sttag, sflag):
        o = self.opt
        S = []
        e = lambda t, tag=None: S.append(I(t, tag))
        R = o.get("R", 12)
        S += [FlushTo(f"x{R - 1}") if o.get("xfront", 1) else Flush(), Hold(True)]
        ld = self.act_ld
        S += ld(R)[:1]
        S += self.xres_unpack()
        frag = lambda n: (lambda t, u: v(32 + 8 * (n & 3) + 4 * t + 2 * u, 2))
        back = o.get("pollback", 8)
        for n in range(59):
            m = n + R
            if n == NREGW - 2 or n == 44:
                S += [W("vm", "c46" if n < 44 else "c58"), I("s_barrier")]
            if m == NB - back:
                S.append(self.poll_issue(sPA, vPA16, vPoll, "apoll", dual=True))
            if m == NA - back:
                S.append(self.poll_issue(sPO, vP16, vPoll, "opoll", dual=True))
            self.stamp(S, f"s{n}")
            if m == NB:
                self.stamp(S, "apre")
                S += self.poll_check(sPA, vPA16, vPoll, "apoll", dual=True)
                self.stamp(S, "aok")
            if m == NA:
                self.stamp(S, "opre")
                S += self.poll_check(sPO, vP16, vPoll, "opoll", dual=True)
                self.stamp(S, "ook")
            S.append(W("vm", f"x{n}"))
            if n == o.get("flagstep", 2):
                S += self.flag(sttag, sflag, True)
            if n >= NREGW:
                S.append(W("lg", f"w{n}"))
            for t in range(2):
                wf = a(8 * n + 4 * t, 4) if n < NREGW else v(32 + 8 * (n & 3) + 4 * t, 4)
                tt = 1 - t
                wf = a(8 * n + 4 * tt, 4) if n < NREGW else v(32 + 8 * (n & 3) + 4 * tt, 4)
                acc = v(vAo[tt], 16)
                e(f"v_mfma_f32_32x32x16_bf16 {acc}, {wf}, {act_reg(n)}, {'0' if (n == 0 and tt == 1) else acc}")
                if t == 0 and m < 59:
                    S += ld(m)[1:] + (ld(m + 1)[:1] if m < 58 else [])
                if t == 1:
                    S.append(Slot(0))
                if NREGW - 2 <= n < 57:
                    S += self.p2_reads(n + 2, frag(n + 2), f"w{n + 2}")[2 * t:2 * t + 2]
            if m == 59:
                e(f"s_or_b32 {sA}, s2, {sW}")
                e(f"s_cmp_eq_u32 {sA}, 0")
                e(f"s_cselect_b32 {sA}, 0, {OOB}")
                e(f"v_or_b32 v16, {sA}, {vL0}")
                e(f"buffer_store_dword {vTag}, v16, {SRD['ws']}, 0 offen offset:{WS_E}")
        self.stamp(S, "gemm2")
        for q in range(4):
            e(f"ds_write_b128 v19, {v(vAo[1] + 4 * q, 4)} offset:{1024 * q}")
        S += [W("lg"), I("s_barrier")]
        for q in range(4):
            e(f"ds_read_b128 {v(96 + 4 * q, 4)}, v20 offset:{1024 * q}", f"f{q}")
        for q in range(4):
            S.append(W("lg", f"f{q}"))
            for r in (0, 2):
                e(f"v_pk_add_f32 {v(vAo[0] + 4 * q + r, 2)}, {v(vAo[0] + 4 * q + r, 2)}, {v(96 + 4 * q + r, 2)}")
            for r in (0, 2):
                e(f"v_cvt_pk_bf16_f32 {v(112 + 2 * q + r // 2)}, {v(vAo[0] + 4 * q + r)}, {v(vAo[0] + 4 * q + r + 1)}")
            if q & 1:
                k = q >> 1
                e(f"v_permlane32_swap_b32 {v(112 + 4 * k)}, {v(112 + 4 * k + 2)}")
                e(f"v_permlane32_swap_b32 {v(112 + 4 * k + 1)}, {v(112 + 4 * k + 3)}")
                off = " offset:32" if k else ""
                e(f"buffer_store_dwordx4 {v(112 + 4 * k, 4)}, v0, {SRD['out']}, 0 offen{off}")
        if o.get("stamps"):
            S.append(W("vm"))
            self.stamp(S, "end")
            pr = o.get("probe")
            if o.get("xprobe"):
                lp = self.label("probe")
                e(f"s_getreg_b32 {sA}, hwreg(HW_REG_XCC_ID, 0, 4)")
                e(f"s_sub_u32 {sA}, {sA}, s2")
                e(f"s_and_b32 {sA}, {sA}, 7")
                if o["xprobe"] == 2:
                    e(f"s_sub_u32 {sA}, 7, {sA}")
                e(f"s_mul_i32 {sA}, {sA}, 500")
                e(f"v_readlane_b32 {sC}, v179, {1 + self.allnames.index('end')}")
                e(f"{lp}:")
                e("s_memrealtime s[98:99]")
                e("s_waitcnt lgkmcnt(0)")
                e(f"s_sub_u32 {sB}, s98, {sC}")
                e(f"s_cmp_lt_u32 {sB}, {sA}")
                e(f"s_cbranch_scc1 {lp}")
            if pr:
                lp = self.label("probe")
                e(f"v_readlane_b32 {sA}, v179, {1 + self.allnames.index(pr)}")
                e(f"v_readlane_b32 {sC}, v179, {1 + self.allnames.index('end')}")
                e(f"s_sub_u32 {sA}, {sA}, s100")
                e(f"s_mul_i32 {sA}, {sA}, {o.get('mult', 4)}")
                e(f"{lp}:")
                e("s_memrealtime s[98:99]")
                e("s_waitcnt lgkmcnt(0)")
                e(f"s_sub_u32 {sB}, s98, {sC}")
                e(f"s_cmp_lt_u32 {sB}, {sA}")
                e(f"s_cbranch_scc1 {lp}")
            e(f"s_lshl_b32 {sA}, s2, 2")
            e(f"s_add_u32 {sA}, {sA}, {sW}")
            e(f"s_lshl_b32 {sA}, {sA}, 7")
            e(f"s_add_u32 {sA}, {sA}, {WS_STAMP}")
            e(f"v_cmp_gt_u32 vcc, 32, {vLane}")
            e(f"v_mov_b32 v21, {OOB}")
            e(f"v_cndmask_b32 v21, v21, {vL4}, vcc")
            e(f"buffer_store_dword v179, v21, {SRD['ws']}, {sA} offen")
        e("s_endpgm")
        return S

    def build(self):
        pro = self.prologue()
        A = self.path_a()
        B = self.path_b()
        la, pka, na, ea = finalize2(pro + A)
        lb, pkb, nb, eb = finalize2(pro + B)
        npro = len(finalize2(pro)[0])
        assert la[:npro] == lb[:npro]
        body = la + ["L_typeB:"] + lb[npro:] + self.slow + ["L_end:", "s_endpgm", "L_codeend:"]
        self.info = dict(peakA=pka, peakB=pkb, nopsA=na, nopsB=nb, nA=len(la), nB=len(lb), est=(ea, eb))
        hdr = open("cdna_kernels/" + NAME + ".s.ref").read().split("; Override launch")[0]
        txt = hdr + "; Generated by a script: fused LayerNorm + linear attention + Mish FFN, one persistent launch.\n"
        txt += "; @launch grid=(256,1,1) block=(256,1,1) lds=163840\n"
        txt += f'.amdgcn_target "amdgcn-amd-amdhsa--gfx950"\n.text\n.globl {NAME}_kernel\n.p2align 8\n.type {NAME}_kernel,@function\n{NAME}_kernel:\n'
        txt += "\n".join(("" if l.endswith(":") else "    ") + l for l in body) + "\n"
        txt += f""".section .rodata,"a"
.p2align 6
.amdhsa_kernel {NAME}_kernel
  .amdhsa_next_free_vgpr 512
  .amdhsa_next_free_sgpr 102
  .amdhsa_accum_offset 256
  .amdhsa_group_segment_fixed_size 0
  .amdhsa_kernarg_size 80
  .amdhsa_user_sgpr_count 2
  .amdhsa_user_sgpr_kernarg_segment_ptr 1
  .amdhsa_system_sgpr_workgroup_id_x 1
  .amdhsa_float_denorm_mode_32 3
.end_amdhsa_kernel
"""
        return txt


def generate(**opt):
    global WS_ACT, WS_BYTES
    WS_ACT = opt.get("actoff", 0x100000)
    WS_BYTES = max(0x2000000, WS_ACT + 0x1100000)
    KARG["ws"] = (72, WS_BYTES)
    g = Gen(opt)
    t = g.build()
    return t, g


if __name__ == "__main__":
    t, g = generate()
    out = sys.argv[1] if len(sys.argv) > 1 else "cdna_kernels/" + NAME + ".s"
    open(out, "w").write(t)
    print(g.info, len(t))
```

```python
import sys, json; sys.path.insert(0, "dev")
import gen as G
for name, o in json.loads(sys.argv[1]).items():
    t, g = G.generate(stamps=True, stampset="end", probe="end", mult=9, **o); open(f"var/{name}.s", "w").write(t)
```

```python
import struct
import sys
sys.path.insert(0, "dev")
from asmfw import I, W, Rel, Flush, Pace, Hold, Slot, FlushTo, finalize2, schedule

NAME = "parallel_sum__linear_attn_block__dense_activation_mish__prompt"

WS_E = 0x0
WS_STAT = 0x1000
WS_ZF = 0x8000
WS_KVF = 0x9000
WS_AF = 0xA000
WS_BF = 0xB000
WS_OF = 0xC000
WS_DUAL = 0x3000
WS_KV = 0x10000
WS_ACT = 0x100000
WS_STAMP = 0x1800000
WS_BYTES = 0x2000000
TAGC = 0x5BD1E995
OOB = 0x7FFF0000
SPIN = 100000

SLOT0 = 8192
SLOT = [8192, 40960, 73728]
BBASE = 98304
SC_RS = 0
SC_CS = 1024
SC_KV = 4096
RED = 106496


def bpos(b):
    return 0 if b == 7 else b + 1


def _pc_first(n):
    if n < 6:
        return 73728 + n * 4096
    if n < 14:
        return 8192 + (n - 6) * 4096
    if n < 21:
        return 40960 + (n - 14) * 4096
    return 69632


P2BAR = {2: (0, [0]), 6: (1, [1, 2, 3, 4]), 10: (2, [5, 6, 7, 8]), 14: (3, [9, 10, 11, 12]), 18: (4, [13, 14, 15, 16]),
         22: (5, [17, 18, 19, 20]), 26: (6, []), 31: (7, [])}
PC = [_pc_first(n) for n in range(22)]
P2REL = {}
for _T, (_b, _st) in P2BAR.items():
    _new = [BBASE + 8192 * bpos(_b), BBASE + 8192 * bpos(_b) + 4096] + [_pc_first(n) for n in _st]
    P2REL[_T] = list(range(len(PC), len(PC) + len(_new)))
    PC += _new
assert len(PC) == 59


def pc_addr(n):
    return PC[n]


NREGW = 21
ORDER = [("f", 6 * p + q) for p in range(7) for q in range(4)] + [("f", 42)] \
    + [("f", 6 * p + 4 + q) for p in range(7) for q in range(2)] + [("o", hp) for hp in range(16)]
NB, NA = 29, 43
RING = 22

sT0, sT1 = "s0", "s1"
sW = "s3"
SRD = dict(x="s[4:7]", qkv="s[8:11]", w1="s[12:15]", wo="s[16:19]", w2="s[20:23]", b1="s[24:27]", out="s[28:31]", ws="s[32:35]", ws2="s[24:27]")
KARG = dict(x=(0, 2048 * 1024), qkv=(8, 512 * 3072), w1=(32, 512 * 2752), ws=(72, WS_BYTES), wo=(16, 512 * 1024),
            w2=(48, 1376 * 1024), b1=(40, 2752), out=(56, 2048 * 1024))
sI, sJ, sP, sRH, sCH, sT, sR2, sC2, sSig = "s36", "s37", "s38", "s39", "s40", "s41", "s42", "s43", "s44"
sSET0 = "s[46:47]"
sRHM = "s[48:49]"
sW8K, sW2K, sW1K = "s50", "s51", "s52"
sT2, sWO = "s53", "s54"
sA, sB, sC, sD = "s55", "s56", "s57", "s58"
sActB = "s59"
sCnt, sE, sM0, sM1 = "s60", "s61", "s62", "s63"
sFKV, sFAct, sFO, sPKV, sPB, sPA, sPO, sKV, sAct2, sG, sZF, sFAct2 = [f"s{64 + k}" for k in range(12)]
sXk = ["s45"] + [f"s{76 + k}" for k in range(1, 8)]
sLB = ["s[84:85]", "s[86:87]", "s[88:89]"]
PFS = "s[92:95]"

vLane, vL16, vL4, vMH0, vL0 = "v1", "v2", "v3", "v4", "v5"
vW2s, vTag = "v6", "v7"
vXs = [8, 9, 10, 11]
vWs = [12, 13, 14, 15]
vBs = [16, 17]
vXrA = [18, 19, 20, 21]
vXrB = [22, 23, 24, 25]
vWrA = [26, 27]
vWrB = [28, 29]
vBr = [30, 31]
vSel = 32
vCs = [36, 40, 44]
vWf = [[48, 52], [56, 60]]
vAcc1 = lambda G, gg: 64 + 32 * G + 16 * gg
vAcc2 = lambda gg: 128 + 16 * gg
vSt = [160, 162]
vZf, vB2, vZero, vP32 = 164, 165, 166, 167
vXa = [168, 172]
vPFd, vPFa, vStA = "v176", "v177", "v178"
vRs = [180, 182]
vC12 = 184
vEL = 186
vNE = 188
vRsA = [190, 206]
vT = 222
vWa = [246, 250, 160]
vDs = [46, 47]
vCsW, vCsR = "v254", "v255"
vP2r = [[8, 9], [10, 11], [12, 13]]
vP16, vPoll = "v14", "v15"
vAo = [64, 80]
vXr = 246


def v(n, k=1):
    return f"v{n}" if k == 1 else f"v[{n}:{n + k - 1}]"


def a(n, k=1):
    return f"a{n}" if k == 1 else f"a[{n}:{n + k - 1}]"


def act_reg(n):
    return a(168 + 4 * (n % RING), 4)


def f2u(x):
    return "0x%08x" % struct.unpack("<I", struct.pack("<f", x))[0]


LOG2E = 1.4426950408889634
LN2 = 0.6931471805599453
_SCC_USE = ("s_cselect", "s_addc", "s_cbranch_scc")


class Extras:
    def __init__(self):
        self.q = []

    def add(self, items):
        self.q += [it for it in items if not isinstance(it, Hold)]

    def take(self, n):
        out = []
        while self.q:
            it = self.q[0]
            glue = not isinstance(it, I) or it.t.endswith(":") or it.t.startswith(_SCC_USE)
            if n <= 0 and not glue:
                break
            out.append(self.q.pop(0))
            if isinstance(it, I) and not it.t.endswith(":"):
                n -= 1
        return out


class Gen:
    allnames = ["a0", "p1end", "epi1", "p2end", "epi2", "actok", "s1", "apre", "aok", "opre", "ook", "gemm2", "end"]

    def __init__(self, opt):
        self.opt = opt
        if opt.get("stampset"):
            self.allnames = opt["stampset"].split(",")
        self.slow = []
        self.fs = 1 if opt.get("skip3", 0) else 0
        self.vact = v(vB2) if self.fs else vL16
        self.uid = 0

    def stamp(self, S, name):
        if not self.opt.get("stamps") or name not in self.allnames:
            return
        S.append(I(f"{'s_memtime' if self.opt.get('cyc') else 's_memrealtime'} s[98:99]"))
        S.append(W("lg"))
        S.append(I(f"v_writelane_b32 v179, s98, {1 + self.allnames.index(name)}"))
        if self.opt.get("both"):
            S.append(I("s_memtime s[98:99]"))
            S.append(W("lg"))
            S.append(I(f"v_writelane_b32 v179, s98, {17 + self.allnames.index(name)}"))

    def label(self, base):
        self.uid += 1
        return f"L_{base}_{self.uid}"

    def prologue(self):
        o = self.opt
        S = []
        e = lambda t, tag=None: S.append(I(t, tag))
        e(f"s_lshr_b32 {sA}, s2, 8")
        e("s_cbranch_scc1 L_end")
        if o.get("stamps"):
            e("s_memtime s[100:101]" if o.get("cyc") else "s_memrealtime s[100:101]")
        e("s_load_dwordx2 s[4:5], s[0:1], 0")
        e("s_load_dwordx16 s[64:79], s[0:1], 0")
        e("s_load_dwordx2 s[32:33], s[0:1], 72")
        e("v_lshrrev_b32 v6, 6, v0")
        e(f"v_and_b32 {vLane}, 63, v0")
        e(f"v_readfirstlane_b32 {sW}, v6")
        e("s_lshl_b32 s7, 1, 17")
        e("s_getpc_b64 s[92:93]")
        e("s_lshr_b32 s92, s92, 8")
        e("s_lshl_b32 s92, s92, 8")
        e(f"s_mov_b32 s94, L_codeend-{NAME}_kernel")
        e("s_mov_b32 s95, s7")
        e("v_lshrrev_b32 v238, 4, v0")
        e("v_lshlrev_b32 v238, 7, v238")
        e(f"s_lshr_b32 {sB}, s2, 3")
        e(f"s_lshl_b32 {sA}, {sB}, 11")
        e(f"buffer_load_dword {vPFd}, v238, {PFS}, {sA} offen")
        e("s_lshl_b32 s6, 1, 21")
        e(f"s_and_b32 {sA}, s2, 7")
        e(f"s_lshr_b32 {sC}, s2, 7")
        e(f"s_lshl1_add_u32 {sI}, {sA}, {sC}")
        if o.get("rot", "l0") == "l0":
            e(f"s_lshl2_add_u32 {sA}, {sC}, {sA}")
            e(f"s_and_b32 {sA}, {sA}, 7")
        e(f"s_lshl_b32 {sXk[0]}, {sA}, 7")
        e(f"v_lshrrev_b32 v240, 3, {vLane}")
        e(f"v_and_b32 v241, 7, {vLane}")
        e(f"s_lshl2_add_u32 {sC}, {sI}, {sW}")
        e(f"s_lshl_b32 {sC}, {sC}, 15")
        e(f"v_lshl_add_u32 v243, v240, 10, {sC}")
        e("v_lshrrev_b32 v244, 1, v240")
        e("v_xor_b32 v244, v244, v241")
        e(f"v_lshl_add_u32 {v(vXs[0])}, v244, 4, v243")
        e(f"v_xor_b32 {v(vXs[1])}, 64, {v(vXs[0])}")
        e(f"v_add_u32 {v(vXs[1])}, {7168}, {v(vXs[1])}")
        e(f"v_add_u32 {v(vXs[2])}, {2 * 7168}, {v(vXs[0])}")
        e(f"v_add_u32 {v(vXs[3])}, {2 * 7168}, {v(vXs[1])}")
        e(f"s_lshl_b32 {sW8K}, {sW}, 13")
        e(f"s_add_u32 m0, {sW8K}, {SLOT[0]}")
        S.append(W("lg"))
        for pp in range(4):
            off = f" offset:{1024 * pp}" if pp else ""
            e(f"buffer_load_dwordx4 {v(vXs[pp])}, {SRD['x']}, {sXk[0]} offen{off} lds", "a0")
        e(f"s_and_b32 {sJ}, {sB}, 15")
        e("L_first256:")
        e(f"v_lshlrev_b32 {vL16}, 4, {vLane}")
        e(f"s_lshl4_add_u32 {sM0}, {sI}, {sJ}")
        e(f"s_lshl2_add_u32 {sM0}, {sM0}, {sW}")
        e(f"s_lshl_b32 {sM1}, {sM0}, 11")
        if o.get("strow1", 1):
            e(f"buffer_load_dwordx4 v[224:227], {vL16}, {SRD['x']}, {sM1} offen", "strow")
            e(f"buffer_load_dwordx4 v[228:231], {vL16}, {SRD['x']}, {sM1} offen offset:1024", "strow")
        e(f"s_load_dword {sE}, s[32:33], {WS_E}")
        e(f"s_lshr_b32 {sP}, {sJ}, 1")
        e(f"v_lshl_add_u32 v239, v6, 4, v240")
        e("v_lshlrev_b32 v242, 1, v240")
        e("v_and_b32 v242, 4, v242")
        e("v_xor_b32 v242, v242, v241")
        e("v_lshlrev_b32 v242, 4, v242")
        e(f"s_mul_i32 {sT0}, {sP}, 6")
        e(f"s_add_u32 {sT1}, {sT0}, 2")
        e(f"s_cmp_eq_u32 {sP}, 7")
        e(f"s_cselect_b32 {sD}, {OOB >> 7}, {sT1}")
        e(f"s_lshl1_add_u32 {sA}, {sP}, 16")
        e(f"s_lshl1_add_u32 {sB}, {sP}, 32")
        e(f"s_movk_i32 {sC}, 3072")
        e(f"s_bitcmp1_b32 {sJ}, 0")
        e(f"s_cselect_b32 {sA}, {sT0}, {sA}")
        e(f"s_cselect_b32 {sB}, {sD}, {sB}")
        e(f"s_cselect_b32 {sC}, 2752, {sC}")
        e("s_cselect_b64 s[80:81], s[72:73], s[66:67]")
        e(f"s_lshl_b32 s82, {sC}, 9")
        e("s_mov_b32 s83, s7")
        e(f"v_mul_u32_u24 v238, {sC}, v239")
        e(f"s_lshl_b32 {sA}, {sA}, 6")
        e(f"s_lshl_b32 {sB}, {sB}, 6")
        e(f"s_lshl_b32 {sD}, {sC}, 3")
        e(f"s_sub_u32 {sD}, {sD}, 1024")
        e(f"v_add3_u32 {v(vWs[0])}, v238, v242, {sA}")
        e(f"v_add3_u32 {v(vWs[2])}, v238, v242, {sB}")
        e(f"s_lshr_b32 {sC}, {sC}, 1")
        e(f"s_mul_i32 {sWO}, {sXk[0]}, {sC}")
        e(f"s_add_u32 m0, {sW8K}, {SLOT[0] + 4096}")
        e(f"v_add_u32 {v(vWs[1])}, {sD}, {v(vWs[0])}")
        e(f"v_add_u32 {v(vWs[3])}, {sD}, {v(vWs[2])}")
        e(f"buffer_load_dwordx4 {v(vWs[0])}, s[80:83], {sWO} offen lds", "a0")
        e(f"buffer_load_dwordx4 {v(vWs[1])}, s[80:83], {sWO} offen offset:1024 lds", "a0")
        e(f"s_add_u32 m0, {sW8K}, {SLOT[0] + 6144}")
        e(f"s_lshl_b32 {sM0}, {sM0}, 1")
        e(f"buffer_load_dwordx4 {v(vWs[2])}, s[80:83], {sWO} offen lds", "a0")
        e(f"buffer_load_dwordx4 {v(vWs[3])}, s[80:83], {sWO} offen offset:1024 lds", "a0")
        if o.get("pf3"):
            n = o["pf3"]
            e(f"s_lshr_b32 {sA}, s2, 3")
            e(f"s_lshl2_add_u32 {sA}, {sA}, {sW}")
            e(f"s_mul_i32 {sA}, {sA}, {4 * 3072}")
            e(f"s_add_u32 {sA}, {sA}, {384 + 1024 * (3 - n)}")
            e(f"v_and_b32 v236, 3, {vLane}")
            e("v_mul_u32_u24 v236, 3072, v236")
            e(f"v_lshrrev_b32 v235, 2, {vLane}")
            e("v_lshl_add_u32 v236, v235, 10, v236")
            e(f"v_cmp_gt_u32 vcc, {n}, v235")
            e(f"v_mov_b32 v235, {OOB}")
            e("s_mov_b64 s[8:9], s[66:67]")
            e(f"s_mov_b32 s10, {KARG['qkv'][1]}")
            e("s_mov_b32 s11, 0x20000")
            e("v_cndmask_b32 v236, v235, v236, vcc")
            e(f"buffer_load_dword {vPFd}, v236, {SRD['qkv']}, {sA} offen")
        if not o.get("strow1", 1):
            e(f"buffer_load_dwordx4 v[224:227], {vL16}, {SRD['x']}, {sM1} offen", "strow")
            e(f"buffer_load_dwordx4 v[228:231], {vL16}, {SRD['x']}, {sM1} offen offset:1024", "strow")
        if o.get("stamps"):
            e("v_mov_b32 v179, 0")
            e("v_writelane_b32 v179, s100, 0")
        self.stamp(S, "karg")
        for nm, p in (("qkv", 66), ("wo", 68), ("w1", 72), ("b1", 74), ("w2", 76), ("out", 78)):
            b = int(SRD[nm][2:].split(":")[0])
            e(f"s_mov_b64 s[{b}:{b + 1}], s[{p}:{p + 1}]")
        for nm in ("qkv", "w1"):
            b = int(SRD[nm][2:].split(":")[0])
            e(f"s_mov_b32 s{b + 2}, {KARG[nm][1]}")
            e(f"s_mov_b32 s{b + 3}, 0x20000")
        S += self.setup_now()
        if o.get("pfpos", "a0") == "a0":
            st, ld = self.pf_w2("chip")
            S += st + ld
        if o.get("dual", 1) and o.get("touch", 1):
            S += [I(f"s_and_b32 {sA}, s2, 7"), I(f"s_lshl_b32 {sA}, {sA}, 2"), I(f"s_lshr_b32 {sB}, s2, 6"), I(f"s_add_u32 {sA}, {sA}, {sB}"),
                  I(f"s_lshl_b32 {sA}, {sA}, 7"), I(f"s_add_u32 {sA}, {sA}, {WS_AF + WS_DUAL}"), I(f"s_min_u32 {sB}, {sW}, 2"),
                  I(f"s_lshl_b32 {sB}, {sB}, 12"), I(f"s_add_u32 {sA}, {sA}, {sB}"), I(f"v_mov_b32 {vPFa}, 0"),
                  I(f"buffer_load_dword {vPFd}, {vPFa}, {SRD['ws']}, {sA} offen")]
        e(f"s_bitcmp1_b32 {sJ}, 0")
        e("s_cbranch_scc1 L_typeB")
        return S

    def dma_a(self, s, typ):
        srd, stride = (SRD["qkv"], 3072) if typ == "A" else (SRD["w1"], 2752)
        slot = SLOT[s % 3]
        tag = f"a{s}"
        G = []
        mul = I(f"s_mul_i32 {sWO}, {sXk[s]}, {stride // 2}")
        if s:
            for pp in range(4):
                off = f" offset:{1024 * pp}" if pp else ""
                ins = I(f"buffer_load_dwordx4 {v(vXs[pp])}, {SRD['x']}, {sXk[s]} offen{off} lds", tag)
                G.append(([I(f"s_add_u32 m0, {sW8K}, {slot}"), mul] if pp == 0 else []) + [ins])
        for g in range(2):
            G.append(([mul] if (s == 0 and g == 0) else []) + [I(f"s_add_u32 m0, {sW8K}, {slot + 4096 + 2048 * g}"),
                      I(f"buffer_load_dwordx4 {v(vWs[2 * g])}, {srd}, {sWO} offen lds", tag)])
            G.append([I(f"buffer_load_dwordx4 {v(vWs[2 * g + 1])}, {srd}, {sWO} offen offset:1024 lds", tag)])
        return G

    def dma_b(self, b, typ):
        srd, stride = (SRD["w1"], 2752) if typ == "B" else (SRD["qkv"], 3072)
        tag = f"b{b}s"
        if self.opt.get("bswap", 0):
            pre = [I(f"s_xor_b32 m0, s90, {8192 * bpos(b)}"), I(f"s_xor_b32 {sWO}, {sXk[b]}, s91"),
                   I(f"s_add_u32 m0, m0, {sW2K}"), I(f"s_mul_i32 {sWO}, {sWO}, {stride // 2}")]
        else:
            pre = [I(f"s_add_u32 m0, {sW2K}, {8192 * bpos(b)}"), I(f"s_mul_i32 {sWO}, {sXk[b]}, {stride // 2}")]
        return [pre + [I(f"buffer_load_dwordx4 {v(vBs[0])}, {srd}, {sWO} offen lds", tag)],
                [I(f"buffer_load_dwordx4 {v(vBs[1])}, {srd}, {sWO} offen offset:1024 lds", tag)]]

    def dma_w2(self, n):
        kind, T = ORDER[n]
        srd = SRD["w2"] if kind == "f" else SRD["wo"]
        return [I(f"s_add_u32 m0, {sW1K}, {pc_addr(n)}"), I(f"s_mov_b32 {sWO}, {T * 32768}"),
                I(f"buffer_load_dwordx4 {vW2s}, {srd}, {sWO} offen lds", f"c{n}")]

    def code_touch(self):
        lb = self.label("pc")
        S = [I("s_getpc_b64 s[84:85]"), I(f"{lb}:"), I(f"s_sub_u32 s84, s84, {lb}-{NAME}_kernel"), I("s_subb_u32 s85, s85, 0"),
             I(f"s_mov_b32 s86, L_codeend-{NAME}_kernel"), I("s_mov_b32 s87, 0x20000"),
             I(f"s_lshr_b32 {sA}, s2, 3"), I(f"s_lshl_b32 {sA}, {sA}, 2"), I(f"s_add_u32 {sA}, {sA}, {sW}"), I(f"s_lshl_b32 {sA}, {sA}, 9"),
             I(f"v_and_b32 v219, 3, {vLane}"), I(f"v_lshl_add_u32 v219, v219, 7, {sA}")]
        return S, [I(f"buffer_load_dword {vPFd}, v219, s[84:87], 0 offen")]

    def pf_w2(self, kind):
        again = kind == "chip2"
        if again:
            kind = "chip"
        sh = 7 if kind == "chip" else 10
        r0 = 84 if again else 92
        va = "v220" if kind == "chip" else vPFa
        S = []
        e = lambda t, tag=None: S.append(I(t, tag))
        idx = "s2" if (kind == "chip" and not again) else sA
        if again:
            e(f"s_add_u32 {sA}, s2, {self.opt.get('pf2d', 1)}")
            e(f"s_and_b32 {sA}, {sA}, 255")
        if kind == "col":
            e(f"s_lshr_b32 {sA}, s2, 3")
        e(f"s_mul_i32 {sB}, {idx}, 43")
        e(f"s_mul_i32 {sC}, {sW}, 22")
        e(f"s_add_u32 {sB}, {sB}, {sC}")
        e(f"s_lshl_b32 {sC}, {idx}, 4")
        e(f"s_cmp_ge_u32 {sW}, 2")
        e(f"s_cselect_b32 {sB}, {sC}, {sB}")
        e(f"s_cselect_b32 s{r0}, s16, s20")
        e(f"s_cselect_b32 s{r0 + 1}, s17, s21")
        e(f"s_lshl_b32 {sB}, {sB}, {sh}")
        if kind == "col":
            e(f"s_add_u32 {sB}, {sB}, 384")
        e(f"s_add_u32 s{r0}, s{r0}, {sB}")
        e(f"s_addc_u32 s{r0 + 1}, s{r0 + 1}, 0")
        e(f"s_lshl_b32 {sC}, {sW}, 3")
        e(f"s_lshr_b32 s{r0 + 2}, {0x00101516}, {sC}")
        e(f"s_and_b32 s{r0 + 2}, s{r0 + 2}, 0xff")
        e(f"s_lshl_b32 s{r0 + 2}, s{r0 + 2}, {sh}")
        if kind == "col":
            e(f"s_sub_u32 s{r0 + 2}, s{r0 + 2}, 512")
            e(f"s_max_i32 s{r0 + 2}, s{r0 + 2}, 0")
        e(f"s_mov_b32 s{r0 + 3}, 0x20000")
        e(f"v_lshlrev_b32 {va}, {sh}, {vLane}")
        return S, [I(f"buffer_load_dword {vPFd}, {va}, s[{r0}:{r0 + 3}], 0 offen")]

    def reads1(self, T):
        s, tau = divmod(T, 4)
        slot = s % 3
        xr = vXrA if slot < 2 else vXrB
        wr = vWrA if slot < 2 else vWrB
        so = 32768 if slot == 1 else 0
        buf = T & 1
        wrd = lambda g, u, tag: I(f"ds_read_b64_tr_b16 {v(vWf[buf][g] + 2 * u, 2)}, {v(wr[tau & 1])} offset:{so + (tau & 2) * 8192 + 2048 * g + 512 * u}", tag)
        xrd = lambda g, tag: I(f"ds_read_b128 {a(8 * T + 4 * g, 4)}, {v(xr[tau])} offset:{so + 8192 * g}", tag)
        return ([wrd(0, 0, f"r{T}a"), wrd(0, 1, f"r{T}a"), xrd(0, f"r{T}a")],
                [xrd(1, f"r{T}b"), wrd(1, 0, f"r{T}c"), wrd(1, 1, f"r{T}c")])

    def mfma1(self, T, typ):
        buf = T & 1
        big, sm = [], []
        for g in range(2):
            for gg in range(2):
                acc = v(vAcc1(g, gg), 16)
                xf, wf = a(8 * T + 4 * gg, 4), v(vWf[buf][g], 4)
                A_, B_ = (xf, wf) if typ == "A" else (wf, xf)
                big.append(I(f"v_mfma_f32_32x32x16_bf16 {acc}, {A_}, {B_}, {'0' if T == 0 else acc}"))
            if (T & 1) == 0:
                cs = v(vCs[g], 4)
                sm.append(I(f"v_mfma_f32_16x16x32_bf16 {cs}, {v(vSel, 4)}, {v(vWf[buf][g], 4)}, {'0' if T == 0 else cs}"))
        if self.opt.get("snake", 0):
            big[2], big[3] = big[3], big[2]
        return big, sm

    def reads2(self, T):
        b, tau = divmod(T, 4)
        return [I(f"ds_read_b64_tr_b16 {v(48 + 4 * (T & 3) + 2 * u, 2)}, {v(vBr[tau & 1])} offset:{8192 * bpos(b) + (tau & 2) * 2048 + 512 * u}", f"q{T}")
                for u in range(2)]

    def mfma2(self, T):
        wf = v(48 + 4 * (T & 3), 4)
        big = [I(f"v_mfma_f32_32x32x16_bf16 {v(vAcc2(gg), 16)}, {wf}, {a(8 * T + 4 * gg, 4)}, {'0' if T == 0 else v(vAcc2(gg), 16)}") for gg in range(2)]
        cs = v(vCs[2], 4)
        return big, I(f"v_mfma_f32_16x16x32_bf16 {cs}, {v(vSel, 4)}, {wf}, {'0' if T == 0 else cs}")

    def setup_now(self):
        S = []
        e = lambda t, tag=None: S.append(I(t, tag))
        for nm in ("ws", "w2", "wo"):
            b = int(SRD[nm][2:].split(":")[0])
            e(f"s_mov_b32 s{b + 2}, {KARG[nm][1]}")
            e(f"s_mov_b32 s{b + 3}, 0x20000")
        e(f"s_and_b32 {sRH}, {sW}, 1")
        e(f"s_lshr_b32 {sCH}, {sW}, 1")
        for k in range(1, 8):
            e(f"s_add_u32 {sXk[k]}, {sXk[k - 1]}, 128")
            e(f"s_and_b32 {sXk[k]}, {sXk[k]}, 0x380")
        e(f"v_and_b32 v232, 31, {vLane}")
        e(f"v_lshrrev_b32 v233, 5, {vLane}")
        e(f"v_lshlrev_b32 {v(vP32)}, 2, v232")
        e("v_bfe_u32 v234, v232, 1, 3")
        e("v_xor_b32 v234, v234, v233")
        e(f"s_lshl_b32 {sA}, {sRH}, 14")
        e(f"s_add_u32 {sA}, {sA}, {SLOT0}")
        e(f"v_lshl_add_u32 v235, v232, 7, {sA}")
        e(f"s_lshl_b32 {sB}, {sRH}, 1")
        e(f"v_xor_b32 v234, {sB}, v234")
        e(f"v_lshl_add_u32 {v(vXrA[0])}, v234, 4, v235")
        for tau in range(1, 4):
            e(f"v_xor_b32 {v(vXrA[tau])}, {32 * tau}, {v(vXrA[0])}")
        for tau in range(4):
            e(f"v_add_u32 {v(vXrB[tau])}, 65536, {v(vXrA[tau])}")
        e(f"v_bfe_u32 v234, {vLane}, 2, 2")
        e(f"v_bfe_u32 v238, {vLane}, 4, 1")
        e("v_lshlrev_b32 v238, 5, v238")
        e(f"v_and_b32 v236, 3, {vLane}")
        e("v_lshl_add_u32 v238, v236, 3, v238")
        e("v_lshrrev_b32 v236, 1, v234")
        e(f"v_xor_b32 v236, {sCH}, v236")
        e("v_lshl_add_u32 v236, v236, 6, v238")
        e("v_lshl_add_u32 v237, v233, 3, v234")
        e("v_lshl_add_u32 v237, v237, 7, v236")
        e(f"s_lshl_b32 {sA}, {sRH}, 13")
        e(f"s_add_u32 {sB}, {sA}, {SLOT0 + 4096}")
        e(f"s_sub_u32 {sC}, {SLOT0 + 4096 + 8192}, {sA}")
        e(f"v_add_u32 {v(vWrA[0])}, {sB}, v237")
        e(f"v_add_u32 {v(vWrA[1])}, {sC}, v237")
        e(f"v_add_u32 {v(vWrB[0])}, 65536, {v(vWrA[0])}")
        e(f"v_add_u32 {v(vWrB[1])}, 65536, {v(vWrA[1])}")
        e(f"v_lshrrev_b32 v234, 2, {vLane}")
        e(f"v_xor_b32 v234, v234, {vLane}")
        e("v_and_b32 v234, 4, v234")
        e("v_cmp_eq_u32 vcc, 0, v234")
        e(f"v_mov_b32 {v(vNE + 1)}, 0x3f803f80")
        for r in range(4):
            e(f"v_cndmask_b32 {v(vSel + r)}, 0, {v(vNE + 1)}, vcc")
        e(f"v_cmp_eq_u32 vcc, 63, {vLane}")
        e(f"v_mov_b32 v212, {OOB}")
        e(f"s_lshl_b32 {sM0}, {sM0}, 3")
        e(f"s_add_u32 {sM0}, {sM0}, {WS_STAT}")
        e("v_cndmask_b32 v212, v212, 0, vcc")
        return S

    def setup_later(self, typ):
        S = []
        e = lambda t, tag=None: S.append(I(t, tag))
        e(f"v_cmp_eq_u32 vcc, 0, {vLane}")
        e(f"v_mov_b32 v222, {OOB}")
        e(f"v_mov_b32 {v(vZero)}, 0")
        e(f"v_cndmask_b32 {vL0}, v222, 0, vcc")
        if typ == "A":
            e(f"s_sub_u32 {sB}, {sW}, 3")
            e(f"s_lshr_b32 {sC}, {sI}, 1")
            e(f"s_or_b32 {sB}, {sB}, {sC}")
            e(f"s_cmp_eq_u32 {sB}, 0")
            e(f"s_cselect_b32 {sB}, 0, {OOB}")
            e(f"s_lshl_b32 {sA}, {sP}, 1")
            e(f"s_add_u32 {sA}, {sA}, {sI}")
            e(f"s_lshl_b32 {sC}, {sA}, 12")
            e(f"s_add_u32 {sC}, {sC}, {sB}")
            e(f"v_add_u32 v194, {sC}, {vL16}")
            e(f"s_lshl_b32 {sC}, {sA}, 7")
            e(f"s_add_u32 {sC}, {sC}, {sB}")
            e(f"v_add_u32 v195, {sC}, {vL0}")
            e(f"v_min_u32 v195, {OOB}, v195")
            for r in range(4):
                e(f"v_mov_b32 v{196 + r}, 0")
            S.append(Rel([[I(f"s_mov_b32 {sG}, {WS_KV}")] +
                          [I(f"buffer_store_dwordx4 v[196:199], v194, {SRD['ws']}, {sG} offen offset:{1024 * k} sc1", "zst") for k in range(3)]]))
        e("s_mov_b32 s27, 0x20000")
        if typ == "B":
            e(f"s_mov_b32 s26, {KARG['b1'][1]}")
            e(f"v_lshrrev_b32 v221, 1, {v(vP32)}")
            e(f"s_add_u32 {sT2}, {sT0}, 4")
            S.append(Rel([[I(f"s_add_u32 {sG}, {st}, {sCH}"), I(f"s_lshl_b32 {sG}, {sG}, 6"),
                           I(f"buffer_load_ushort {v(d)}, v221, {SRD['b1']}, {sG} offen", "b1")]
                          for st, d in ((sT0, vWa[0] + 1), (sT1, vWa[1] + 1), (sT2, vB2))]))
        e(f"s_lshl_b32 {sW2K}, {sW}, 11")
        e(f"s_add_u32 {sW2K}, {sW2K}, {BBASE}")
        e(f"s_and_b32 s91, {sI}, 1")
        e("s_lshl_b32 s90, s91, 15")
        e("s_lshl_b32 s91, s91, 9")
        e(f"s_lshl_b32 {sW1K}, {sW}, 10")
        stride = 2752 if typ == "B" else 3072
        e(f"v_mul_u32_u24 v222, {stride}, v239")
        if typ == "A":
            e(f"s_lshl_b32 {sA}, {sP}, 7")
        else:
            e(f"s_lshl_b32 {sA}, {sT2}, 6")
            e(f"s_cmp_eq_u32 {sP}, 7")
            e(f"s_cselect_b32 {sA}, {OOB >> 1}, {sA}")
        e(f"v_add3_u32 {v(vBs[0])}, v222, v242, {sA}")
        e(f"v_add_u32 {v(vBs[1])}, {8 * stride - 1024}, {v(vBs[0])}")
        e(f"s_lshl_b32 {sA}, {sRH}, 11")
        e(f"s_add_u32 {sB}, {sA}, {BBASE}")
        e(f"s_sub_u32 {sC}, {BBASE + 2048}, {sA}")
        e(f"v_add_u32 {v(vBr[0])}, {sB}, v237")
        e(f"v_add_u32 {v(vBr[1])}, {sC}, v237")
        e(f"s_lshl_b32 {sA}, {sP}, 1")
        e(f"s_add_u32 {sA}, {sA}, {sCH}")
        e(f"s_lshl_b32 {sB}, {sI}, 1")
        e(f"s_add_u32 {sB}, {sB}, {sRH}")
        e(f"s_lshl_b32 {sM0}, {sB}, 9")
        e(f"s_add_u32 {sM0}, {sM0}, {WS_STAT}")
        e(f"v_lshlrev_b32 {vStA}, 1, {v(vP32)}")
        e(f"s_lshl_b32 {sC}, {sA}, 7")
        e(f"s_add_u32 {sZF}, {sC}, {WS_ZF}")
        S.append("STATREADY")
        e(f"s_add_u32 {sPKV}, {sC}, {WS_KVF}")
        e(f"s_lshl_b32 {sKV}, {sA}, 12")
        e(f"s_add_u32 {sKV}, {sKV}, {WS_KV}")
        e(f"s_lshl_b32 {sC}, {sB}, 2")
        e(f"s_add_u32 {sFKV}, {sPKV}, {sC}")
        e(f"s_lshl_b32 {sActB}, {sB}, {18 + self.fs}")
        e(f"s_add_u32 {sActB}, {sActB}, {WS_ACT}")
        e(f"s_lshl_b32 {sB}, {sB}, 5")
        e(f"s_add_u32 {sB}, {sB}, {sA}")
        e(f"s_lshl_b32 {sB}, {sB}, 2")
        e(f"s_add_u32 {sFAct}, {sB}, {WS_BF}")
        e(f"s_add_u32 {sFAct2}, {sB}, {WS_AF}")
        e(f"s_add_u32 {sFO}, {sB}, {WS_OF}")
        e(f"s_and_b32 {sR2}, s2, 7")
        e(f"s_lshl_b32 {sR2}, {sR2}, 2")
        e(f"s_lshr_b32 {sA}, s2, 6")
        e(f"s_add_u32 {sR2}, {sR2}, {sA}")
        e(f"s_lshr_b32 {sC2}, s2, 3")
        e(f"s_and_b32 {sC2}, {sC2}, 7")
        if self.opt.get("c2m", 0):
            e(f"s_and_b32 {sA}, {sA}, 1")
            e(f"s_xor_b32 {sC2}, {sC2}, {sA}")
        elif self.opt.get("c2x", 1):
            e(f"s_xor_b32 {sC2}, {sC2}, {self.opt.get('c2x', 1)}")
        e(f"s_lshl_b32 {sA}, {sW}, 3")
        e(f"v_add_lshl_u32 v222, {sA}, v240, 10")
        e(f"s_lshl_b32 {sA}, {sC2}, 7")
        e(f"v_add3_u32 {vW2s}, v222, v242, {sA}")
        e(f"v_cmp_gt_u32 vcc, 32, {vLane}")
        e(f"v_mov_b32 {v(vEL + 1)}, {f2u(LOG2E)}")
        e(f"v_lshlrev_b32 {vL4}, 2, {vLane}")
        e(f"v_cndmask_b32 {vMH0}, 0, -1, vcc")
        e(f"v_mov_b32 {v(vEL)}, {f2u(1e-6)}")
        e(f"v_mov_b32 {v(vNE)}, {f2u(-1e-6 * LOG2E)}")
        e(f"v_mov_b32 {v(vC12)}, {f2u(-2 * LN2)}")
        e(f"v_mov_b32 {v(vC12 + 1)}, {f2u(LN2)}")
        for r in (vXa[0] + 2, vXa[0] + 3, vXa[1] + 2, vXa[1] + 3, vWa[0] + 2, vWa[0] + 3, vWa[1] + 2, vWa[1] + 3):
            e(f"v_mov_b32 {v(r)}, 0")
        if typ == "A":
            e(f"v_mov_b32 {v(vWa[0] + 1)}, 0")
            e(f"v_mov_b32 {v(vWa[1] + 1)}, 0")
        e(f"v_and_b32 v222, 16, {vLane}")
        e(f"v_cmp_eq_u32 {sSET0}, 0, v222")
        e(f"s_lshl_b32 {sA}, {sW}, 9")
        e(f"v_add_u32 {vCsW}, {sA}, {vL4}")
        e(f"v_xor_b32 {vCsR}, 512, {vCsW}")
        if self.opt.get("colpos", "a7") == "a7":
            S += self.pf_w2("col")[0]
        return S

    def setup_p2a(self):
        S = []
        e = lambda t, tag=None: S.append(I(t, tag))
        e(f"v_bfe_u32 v224, {vLane}, 2, 2")
        e(f"v_lshrrev_b32 v226, 5, {vLane}")
        e("v_lshl_add_u32 v225, v226, 2, v224")
        e("v_lshlrev_b32 v225, 7, v225")
        e(f"v_bfe_u32 v226, {vLane}, 4, 1")
        e("v_lshl_add_u32 v225, v226, 5, v225")
        e(f"v_and_b32 v226, 3, {vLane}")
        e("v_lshl_add_u32 v225, v226, 3, v225")
        e(f"s_lshl_b32 {sA}, {sCH}, 11")
        e(f"s_add_u32 {sA}, {sA}, {SLOT0}")
        e("v_lshrrev_b32 v224, 1, v224")
        e(f"v_xor_b32 v224, {sCH}, v224")
        e("v_lshl_add_u32 v225, v224, 6, v225")
        e(f"v_add_u32 {v(vP2r[0][0])}, {sA}, v225")
        e(f"v_xor_b32 {v(vP2r[0][1])}, 64, {v(vP2r[0][0])}")
        for rg in (1, 2):
            for t in range(2):
                e(f"v_add_u32 {v(vP2r[rg][t])}, {65536 * rg}, {v(vP2r[0][t])}")
        if self.fs:
            assert self.opt.get("map", "r") == "r"
            e(f"s_and_b32 {sA}, {sI}, 7")
            e(f"s_cmp_eq_u32 {sA}, 3")
            e(f"s_cselect_b32 {sA}, 5, {sA}")
            e(f"s_lshl_b32 {sA}, {sA}, 7")
            e(f"s_add_u32 {sA}, {sA}, {1024 - 384}")
            e(f"v_lshrrev_b32 v224, 3, {vLane}")
            e("v_cmp_eq_u32 vcc, 3, v224")
            e(f"v_add_u32 v225, {sA}, {vL16}")
            e(f"v_cndmask_b32 {self.vact}, {vL16}, v225, vcc")
        return S

    def setup_kv(self):
        S = []
        e = lambda t, tag=None: S.append(I(t, tag))
        for k in range(3):
            e(f"v_and_b32 v222, {1 << k}, {vLane}")
            e(f"v_cmp_ne_u32 {sLB[k]}, 0, v222")
        e(f"v_bfe_u32 v222, {vLane}, 4, 1")
        e(f"v_lshrrev_b32 v223, 5, {vLane}")
        e("v_lshl_add_u32 v222, v222, 1, v223")
        e(f"v_and_b32 v223, 7, {vLane}")
        e("v_lshl_add_u32 v222, v222, 3, v223")
        e("v_lshlrev_b32 v222, 2, v222")
        e(f"v_lshrrev_b32 v223, 1, {vLane}")
        e(f"s_lshl_b32 {sA}, {sRH}, 3")
        e(f"v_xor_b32 v223, {sA}, v223")
        e(f"v_or_b32 v223, v223, {vLane}")
        e("v_and_b32 v223, 8, v223")
        e(f"v_mul_u32_u24 v223, {OOB >> 11}, v223")
        e(f"v_lshl_add_u32 {v(vZf)}, v223, 8, v222")
        e(f"s_cmp_eq_u32 {sRH}, 1")
        e(f"s_cselect_b64 {sRHM}, -1, 0")
        e(f"s_lshl_b32 {sA}, {sW}, 10")
        e(f"v_add_u32 v165, {sA}, {vL16}")
        e(f"s_lshl_b32 {sA}, {sW}, 8")
        e(f"v_add_u32 v166, {sA}, {vL4}")
        e(f"v_xor_b32 {vStA}, 256, v166")
        e(f"s_lshl_b32 {sB}, {sRH}, 10")
        e(f"s_add_u32 {sM1}, {sB}, {sKV}")
        return S

    def setup_p2b(self):
        S = []
        e = lambda t, tag=None: S.append(I(t, tag))
        e(f"v_lshrrev_b32 v20, 5, {vLane}")
        e(f"s_lshl_b32 {sA}, {sR2}, 7")
        e(f"s_add_u32 {sPB}, {sA}, {WS_BF}")
        e(f"s_add_u32 {sPA}, {sA}, {WS_AF}")
        e(f"s_add_u32 {sPO}, {sA}, {WS_OF}")
        e(f"s_lshl_b32 {sA}, {sR2}, 1")
        e(f"s_add_u32 {sA}, {sA}, {sRH}")
        e(f"s_lshl_b32 {sB}, {sA}, 7")
        e(f"s_add_u32 {sB}, {sB}, {sCH}")
        e(f"s_lshl_b32 {sB}, {sB}, {10 + self.fs}")
        e(f"s_add_u32 {sAct2}, {sB}, {WS_ACT}")
        e(f"s_lshl_b32 {sA}, {sA}, 15")
        e(f"s_lshl_b32 {sB}, {sC2}, 1")
        e(f"s_add_u32 {sB}, {sB}, {sCH}")
        e(f"s_lshl_b32 {sB}, {sB}, 6")
        e(f"s_add_u32 {sA}, {sA}, {sB}")
        e("v_lshlrev_b32 v20, 4, v20")
        e(f"v_lshl_add_u32 v20, {v(vP32)}, 8, v20")
        e(f"v_add_u32 v0, {sA}, v20")
        e(f"s_mov_b32 s30, {KARG['out'][1]}")
        e("s_mov_b32 s31, 0x20000")
        e(f"v_and_b32 {vP16}, 60, {v(vP32)}")
        e(f"s_lshl_b32 {sA}, {sW}, 12")
        e(f"s_add_u32 {sA}, {sA}, {RED}")
        e(f"v_add_u32 v19, {sA}, {vL16}")
        e(f"s_xor_b32 {sA}, {sW}, 2")
        e(f"s_lshl_b32 {sA}, {sA}, 12")
        e(f"s_add_u32 {sA}, {sA}, {RED}")
        e(f"v_add_u32 v20, {sA}, {vL16}")
        return S

    def stats_produce(self):
        S = []
        e = lambda t, tag=None: S.append(I(t, tag))
        base = [224, 228]
        acc = [200, 201, 202, 203]
        for k in range(2):
            e(f"v_dot2_f32_bf16 {v(acc[k])}, {v(base[k])}, {v(vNE + 1)}, 0")
            e(f"v_dot2_f32_bf16 {v(acc[2 + k])}, {v(base[k])}, {v(base[k])}, 0")
        for d in range(1, 4):
            for k in range(2):
                e(f"v_dot2_f32_bf16 {v(acc[k])}, {v(base[k] + d)}, {v(vNE + 1)}, {v(acc[k])}")
                e(f"v_dot2_f32_bf16 {v(acc[2 + k])}, {v(base[k] + d)}, {v(base[k] + d)}, {v(acc[2 + k])}")
        e("s_nop 2")
        for m in ("row_ror:8 row_mask:0xf", "row_ror:4 row_mask:0xf", "row_ror:2 row_mask:0xf", "row_ror:1 row_mask:0xf",
                  "row_bcast:15 row_mask:0xa", "row_bcast:31 row_mask:0xc"):
            for k in range(4):
                e(f"v_add_f32_dpp {v(acc[k])}, {v(acc[k])}, {v(acc[k])} {m} bank_mask:0xf")
        for k in range(4):
            e(f"v_mul_f32 {v(acc[k])}, {f2u(1.0 / 512)}, {v(acc[k])}")
        for k in range(2):
            e(f"v_fma_f32 {v(acc[2 + k])}, -{v(acc[k])}, {v(acc[k])}, {v(acc[2 + k])}")
        for k in range(2):
            e(f"v_max_f32 {v(acc[2 + k])}, 0, {v(acc[2 + k])}")
        e("v_cvt_pk_bf16_f32 v204, v202, v203")
        e("v_lshlrev_b32 v205, 16, v204")
        e("v_and_b32 v206, 0xffff0000, v204")
        e(f"v_add_f32 v205, {f2u(1e-5)}, v205")
        e(f"v_add_f32 v206, {f2u(1e-5)}, v206")
        e("v_cvt_pk_bf16_f32 v204, v205, v206")
        e("v_lshlrev_b32 v205, 16, v204")
        e("v_and_b32 v206, 0xffff0000, v204")
        e("v_sqrt_f32 v205, v205")
        e("v_sqrt_f32 v206, v206")
        S.append(W("lg"))
        e(f"s_add_u32 {sT}, {sE}, {TAGC}")
        e(f"v_mov_b32 {vTag}, {sT}")
        e(f"v_mov_b32 v209, {sT}")
        e(f"v_mov_b32 v211, {sT}")
        e("v_cvt_pk_bf16_f32 v208, v200, v205")
        e("v_cvt_pk_bf16_f32 v210, v201, v206")
        e(f"buffer_store_dwordx4 v[208:211], v212, {SRD['ws']}, {sM1} offen sc1")
        return S

    def head(self, typ):
        o = self.opt
        S = [Hold(True)]
        S += [Rel(self.dma_a(1, typ)), Flush(o.get("early1", 2))]
        later = [x for x in self.setup_later(typ) if x != "STATREADY"]
        S += [I(f"s_mov_b32 {sM1}, {sM0}")]
        self.early_ex = []
        if o.get("spread", 0):
            self.early_ex = [W("vm", "strow")] + [x for x in self.stats_produce() if not isinstance(x, W)] + later
            S += [W("lg"), Flush(), Rel(self.dma_a(2, typ))]
            return S
        late_groups = [g for x in later if isinstance(x, Rel) for g in x.groups]
        S += [x for x in later if not isinstance(x, Rel)]
        self.stamp(S, "setup")
        S.append(W("vm", "strow"))
        self.stamp(S, "strow")
        S += [Hold(False), Pace(o.get("pace0", 40))] + self.stats_produce()
        self.stamp(S, "stats")
        S.append(Flush())
        self.stamp(S, "prea0")
        S.append(Rel(self.dma_a(2, typ) + late_groups))
        return S

    def stat_loads(self, typ):
        G = [I(f"buffer_load_dwordx2 {v(vSt[0], 2)}, {vStA}, {SRD['ws']}, {sM0} offen sc1", "stat"),
             I(f"buffer_load_dwordx2 {v(vSt[1], 2)}, {vStA}, {SRD['ws']}, {sM0} offen offset:256 sc1", "stat")]
        if typ == "A":
            G.append(I(f"buffer_load_dword {v(vZf)}, {v(vZero)}, {SRD['ws']}, {sZF} offen sc1", "stat"))
        return G

    def stat_check(self, typ):
        S = []
        e = lambda t, tag=None: S.append(I(t, tag))
        slow, back = self.label("slow"), self.label("back")
        cmp = [f"v_xor_b32 v222, {sT}, {v(vSt[0] + 1)}", f"v_xor_b32 v223, {sT}, {v(vSt[1] + 1)}", "v_or_b32 v222, v222, v223"]
        if typ == "A":
            cmp += [f"v_xor_b32 v223, {sT}, {v(vZf)}", "v_or_b32 v222, v222, v223"]
        cmp.append("v_cmp_ne_u32 vcc, 0, v222")
        S.append(W("vm", "stat"))
        for t in cmp:
            e(t)
        e(f"s_cbranch_vccnz {slow}")
        e(f"{back}:")
        self.slow += [f"{slow}:", f"s_mov_b32 {sCnt}, {SPIN}", f"{slow}_l:", f"s_sleep {self.opt.get('sleep', 2)}"] + \
            [it.t for it in self.stat_loads(typ)] + ["s_waitcnt vmcnt(0)"] + cmp + \
            [f"s_cbranch_vccz {back}", f"s_sub_u32 {sCnt}, {sCnt}, 1", f"s_cbranch_scc0 {slow}_l", f"s_branch {back}"]
        for gg in range(2):
            g = v(vSt[gg])
            e(f"v_and_b32 v222, 0xffff, {g}")
            e(f"v_and_b32 v223, 0xffff0000, {g}")
            e("v_xor_b32 v222, 0x8000, v222")
            e(f"v_rcp_f32 {v(vRs[gg])}, v223")
            e("v_lshl_or_b32 v222, v222, 16, v222")
            e(f"v_lshrrev_b32 v223, 16, {g}")
            e(f"v_and_b32 {v(vXa[gg])}, {vMH0}, v222")
            e(f"v_and_b32 {v(vXa[gg] + 1)}, {vMH0}, v223")
            e(f"v_mul_f32 {v(vRs[gg] + 1)}, {v(vEL + 1)}, {v(vRs[gg])}")
        if typ == "A":
            e(f"s_lshl_b32 {sA}, {sW}, 8")
            e(f"v_add_u32 v222, {sA}, {v(vP32)}")
            e(f"v_lshrrev_b32 v223, 5, {vLane}")
            e(f"ds_write_b32 v222, {v(vRs[0])} offset:{SC_RS}")
            e(f"ds_write_b32 v222, {v(vRs[1])} offset:{SC_RS + 128}")
            e(f"v_lshl_add_u32 v223, v223, 4, {sA}")
            for gg in range(2):
                for jj in range(4):
                    e(f"ds_read_b128 {v(vRsA[gg] + 4 * jj, 4)}, v223 offset:{SC_RS + 128 * gg + 32 * jj}", "rs")
        S.append(W("vm", "b1"))
        e(f"s_add_u32 s24, s32, {WS_DUAL}")
        e("s_addc_u32 s25, s33, 0")
        e(f"s_mov_b32 s26, {WS_BYTES - WS_DUAL}")
        e(f"v_mov_b32 {v(vWa[2] + 1)}, {v(vB2) if typ == 'B' else 0}")
        e(f"v_mov_b32 {v(vWa[2] + 2)}, 0")
        e(f"v_mov_b32 {v(vWa[2] + 3)}, 0")
        return S

    def poll_issue(self, line_s, vaddr, reg, tag, dual=False):
        off = f" offset:{0}" if not dual else ""
        if dual and self.opt.get("dual", 1):
            return I(f"buffer_load_dword {reg}, {vaddr}, {SRD['ws2']}, {line_s} offen sc1", tag)
        return I(f"buffer_load_dword {reg}, {vaddr}, {SRD['ws']}, {line_s} offen sc1", tag)

    def poll_check(self, line_s, vaddr, reg, tag, prelude=(), dual=False):
        slow, back = self.label("slow"), self.label("back")
        L = [f"{slow}:"] + list(prelude) + [f"s_mov_b32 {sCnt}, {SPIN}", f"{slow}_l:", f"s_sleep {self.opt.get('sleep', 2)}"]
        one = lambda srd: [f"buffer_load_dword {reg}, {vaddr}, {srd}, {line_s} offen sc1", "s_waitcnt vmcnt(0)",
                           f"v_cmp_ne_u32 vcc, {sT}, {reg}", f"s_cbranch_vccz {back}"]
        if dual and self.opt.get("dual", 1):
            L += one(SRD["ws2"]) + [f"s_sub_u32 {sCnt}, {sCnt}, 1", f"s_and_b32 {sM1}, {sCnt}, 7", f"s_cbranch_scc1 {slow}_l"]
        L += one(SRD["ws"]) + [f"s_sub_u32 {sCnt}, {sCnt}, 1", f"s_cbranch_scc0 {slow}_l", f"s_branch {back}"]
        self.slow += L
        return [W("vm", tag), I(f"v_cmp_ne_u32 vcc, {sT}, {reg}"), I(f"s_cbranch_vccnz {slow}"), I(f"{back}:")]

    def flag(self, tag, sreg, dual=False):
        S = [W("vm", tag)]
        if dual and self.opt.get("dual", 1):
            S.append(I(f"buffer_store_dword {vTag}, {vL0}, {SRD['ws2']}, {sreg} offen"))
        return S + [I(f"buffer_store_dword {vTag}, {vL0}, {SRD['ws']}, {sreg} offen sc1")]

    def cs_write(self, regs):
        return [I(f"ds_write_b32 {vCsW}, {v(r)} offset:{SC_CS + 256 * k}") for k, r in enumerate(regs)]

    def cs_read(self, regs):
        return [I(f"ds_read_b32 {v(r + 1)}, {vCsR} offset:{SC_CS + 256 * k}", "cs") for k, r in enumerate(regs)]

    def aug_v(self, cs, wa):
        return [I(f"v_add_f32 {v(cs)}, {v(cs)}, {v(cs + 1)}"), I(f"v_cvt_pk_bf16_f32 {v(cs + 1)}, {v(cs)}, {v(cs)}"),
                I(f"v_and_b32 {v(cs + 1)}, 0xffff0000, {v(cs + 1)}"), I(f"v_sub_f32 {v(cs + 2)}, {v(cs)}, {v(cs + 1)}"),
                I(f"v_cvt_pk_bf16_f32 {v(wa)}, {v(cs + 1)}, {v(cs + 2)}")]

    def aug_m(self, wa, accs, normal):
        S = []
        for gg, acc in enumerate(accs):
            A_, B_ = (v(vXa[gg], 4), v(wa, 4)) if normal else (v(wa, 4), v(vXa[gg], 4))
            S.append(I(f"v_mfma_f32_32x32x16_bf16 {v(acc, 16)}, {A_}, {B_}, {v(acc, 16)}"))
        return S

    def mish(self, acc, gg, st):
        S = []
        e = lambda t, tag=None: S.append(I(t, tag))
        E, U, P = vT, vT + 8, vT + 16
        e(f"s_add_u32 {sD}, {st}, {sCH}")
        e(f"s_lshl_b32 {sD}, {sD}, {11 + self.fs}")
        e(f"s_add_u32 {sD}, {sD}, {sActB}")
        if gg:
            e(f"s_add_u32 {sD}, {sD}, {131072 << self.fs}")
        for half in range(2):
            b = acc + 8 * half
            po = P + 4 * half
            Q = (0, 2, 4, 6)
            for r in Q:
                e(f"v_pk_mul_f32 {v(E + r, 2)}, {v(b + r, 2)}, {v(vRs[gg], 2)} op_sel:[0,1] op_sel_hi:[1,1]")
            for r in range(8):
                e(f"v_exp_f32 {v(U + r)}, {v(E + r)}")
            for r in Q:
                e(f"v_pk_add_f32 {v(U + r, 2)}, {v(U + r, 2)}, 1.0 op_sel_hi:[1,0]")
            for r in Q:
                e(f"v_pk_fma_f32 {v(U + r, 2)}, {v(U + r, 2)}, {v(U + r, 2)}, 1.0 op_sel_hi:[1,1,0]")
            for r in range(8):
                e(f"v_rcp_f32 {v(U + r)}, {v(U + r)}")
            for r in Q:
                e(f"v_pk_fma_f32 {v(U + r, 2)}, {v(U + r, 2)}, {v(vC12, 2)}, {v(vC12, 2)} op_sel:[0,0,1] op_sel_hi:[1,0,1]")
            for r in Q:
                e(f"v_pk_mul_f32 {v(E + r, 2)}, {v(E + r, 2)}, {v(U + r, 2)}")
            for r in Q:
                e(f"v_cvt_pk_bf16_f32 {v(po + r // 2)}, {v(E + r)}, {v(E + r + 1)}")
            off = f" offset:{1024 << self.fs}" if half else ""
            vv = vL0 if self.opt.get("x_nost") else self.vact
            e(f"buffer_store_dwordx4 {v(po, 4)}, {vv}, {SRD['ws']}, {sD} offen{off} {self.opt.get('staux', 'sc1')}", "actst")
        return S

    def phi(self, acc, dst, rs_fn):
        S = []
        e = lambda t, tag=None: S.append(I(t, tag))
        Tt, U = vT, vT + 8
        Q = (0, 2, 4, 6)
        for q in (0, 8):
            for r in Q:
                op, sel, selh = rs_fn(q + r)
                e(f"v_pk_fma_f32 {v(Tt + r, 2)}, {v(acc + q + r, 2)}, {op}, {v(vEL, 2)} op_sel:[0,{sel},0] op_sel_hi:[1,{selh},0]")
            for r in Q:
                e(f"v_pk_fma_f32 {v(U + r, 2)}, {v(Tt + r, 2)}, {v(vEL, 2)}, {v(vNE, 2)} op_sel:[0,1,0] op_sel_hi:[1,1,0]")
            for r in range(8):
                e(f"v_exp_f32_e64 {v(U + r)}, {v(U + r)} clamp")
            for r in range(8):
                e(f"v_max_f32 {v(Tt + r)}, {v(Tt + r)}, {v(vEL)}")
            for r in Q:
                e(f"v_pk_add_f32 {v(Tt + r, 2)}, {v(Tt + r, 2)}, {v(U + r, 2)}")
            for r in Q:
                e(f"v_cvt_pk_bf16_f32 {v(dst + (q + r) // 2)}, {v(Tt + r)}, {v(Tt + r + 1)}")
        return S

    def p2_reads(self, n, dst_fn, tag):
        rg, off = divmod(pc_addr(n) - SLOT0, 65536)
        return [I(f"ds_read_b64_tr_b16 {dst_fn(t, u)}, {v(vP2r[rg][t])} offset:{off + 1024 * u}", tag)
                for t in range(2) for u in range(2)]

    def xres_loads(self):
        return [[I(f"buffer_load_dwordx4 {v(vXr, 4)}, v0, {SRD['x']}, 0 offen", "xres")],
                [I(f"buffer_load_dwordx4 {v(vXr + 4, 4)}, v0, {SRD['x']}, 0 offen offset:32", "xres")]]

    def xres_unpack(self):
        S = [W("vm", "xres")]
        e = lambda t, tag=None: S.append(I(t, tag))
        for k in range(2):
            e(f"v_permlane32_swap_b32 {v(vXr + 4 * k)}, {v(vXr + 4 * k + 2)}")
            e(f"v_permlane32_swap_b32 {v(vXr + 4 * k + 1)}, {v(vXr + 4 * k + 3)}")
        for d in range(8):
            e(f"v_lshlrev_b32 {v(vAo[0] + 2 * d)}, 16, {v(vXr + d)}")
            e(f"v_and_b32 {v(vAo[0] + 2 * d + 1)}, 0xffff0000, {v(vXr + d)}")
        return S

    def pass1(self, typ):
        o = dict(self.opt)
        for key in ("bk", "s3"):
            if key + typ in o:
                o[key] = o[key + typ]
        S = [W("vm", "a0"), I("s_barrier")]
        self.stamp(S, "a0")
        S.append(Hold(True))
        r0, r1 = self.reads1(0)
        S += r0 + r1
        ex = Extras()
        ex.add(self.early_ex)
        spread = o.get("spread", 0)
        for T in range(32):
            if T == 31:
                S += [W("lg"), I("s_barrier")]
                self.stamp(S, "p1end")
                G = []
                if o.get("bk") is None:
                    for b in range(o.get("bearly", 8), 8):
                        G += self.dma_b(b, typ)
                S.append(Rel(G + [self.dma_w2(n) for n in range(0 if o.get("bk") is None else 14, 22)]))
            elif T % 4 == 3:
                k = (T + 1) // 4
                S += [W("lg")]
                self.stamp(S, f"pre{k}")
                S += [W("vm", f"a{k}"), I("s_barrier")]
                self.stamp(S, f"a{k}")
                G = []
                if k <= 5 and not o.get("x_nodma"):
                    G += self.dma_a(k + 2, typ)
                if o.get("x_halfdma"):
                    G = G[:4]
                if k == o.get("statk", 5 if spread else 4):
                    assert not ex.q
                if typ == "A" and k == (4 if spread else 2):
                    G = [[W("vm", "zst"), I(f"s_mov_b32 {sG}, {WS_ZF}"),
                          I(f"buffer_store_dword {vTag}, v195, {SRD['ws']}, {sG} offen sc1")]] + G
                if k == o.get("statk", 5 if spread else 4):
                    G = [self.stat_loads(typ)] + G
                bk = o.get("bk")
                if bk is None:
                    if k == 5:
                        for b in range(min(3, o.get("bearly", 8))):
                            G += self.dma_b(b, typ)
                    if k == 6:
                        for b in range(3, o.get("bearly", 8)):
                            G += self.dma_b(b, typ)
                else:
                    assert not spread or min(bk) >= 4
                    for b in range(8):
                        if bk[b] == k:
                            G += self.dma_b(b, typ)
                    if k == 6:
                        G += [self.dma_w2(n) for n in range(0, 6)]
                    if k == 7:
                        G += [self.dma_w2(n) for n in range(6, 14)]
                if k == o.get("statk", 5 if spread else 4) + 1:
                    ex.add(self.stat_check(typ))
                if k == 6:
                    ex.add((self.setup_kv() if typ == "A" else []) + self.setup_p2a())
                if k == 7 and o.get("colpos", "a7") == "a7":
                    G.append(self.pf_w2("col")[1])
                S.append(Rel(G))
            big, sm = self.mfma1(T, typ)
            if o.get("x_nom16") and T != 30:
                sm = []
            dT = o.get("dotT", 32)
            dots = []
            if sm and T < dT:
                for d in range(4):
                    for g in range(2):
                        acc = v(vDs[g])
                        dots.append(I(f"v_dot2_f32_bf16 {acc}, {v(vWf[0][g] + d)}, {v(vNE + 1)}, {'0' if (T == 0 and d == 0) else acc}"))
                sm = []
            elif sm and T == dT + (dT & 1) and dT:
                sm = [I(m.t.rsplit(",", 1)[0] + ", 0") for m in sm]
            if T == 31:
                S += [big[0]] + self.cs_read(vCs[:2]) + [Slot(0), big[1], W("lg", "cs")] + self.aug_v(vCs[0], vWa[0]) + \
                    [big[2]] + self.aug_v(vCs[1], vWa[1]) + [big[3], Slot(0)]
                S += self.aug_m(vWa[0], [vAcc1(0, 0), vAcc1(0, 1)], typ == "A") + self.aug_m(vWa[1], [vAcc1(1, 0), vAcc1(1, 1)], typ == "A")
                continue
            r0, r1 = self.reads1(T + 1)
            if T == 30:
                fin = []
                if dT:
                    for g in range(2):
                        fin += [I(f"v_mov_b32 {v(vCs[g] + 1)}, {v(vDs[g])}")]
                    for g in range(2):
                        fin += [I(f"v_permlane32_swap_b32 {v(vCs[g] + 1)}, {v(vDs[g])}")]
                    for g in range(2):
                        if dots:
                            fin += [I(f"v_add_f32 {v(vCs[g])}, {v(vCs[g] + 1)}, {v(vDs[g])}")]
                        else:
                            fin += [I(f"v_add_f32 {v(vDs[g])}, {v(vCs[g] + 1)}, {v(vDs[g])}"), I(f"v_add_f32 {v(vCs[g])}, {v(vCs[g])}, {v(vDs[g])}")]
                S += [W("lg", f"r{T}c")] + sm + dots + [big[0]] + r0 + ex.take(2) + [big[1]] + r1 + [I("s_nop 0")] * bool(dots) + fin + \
                    [big[2]] + self.cs_write(vCs[:2]) + ex.take(3) + [big[3]] + ex.take(1000)
                continue
            busy = T < 27
            if o.get("x_pad") and T in range(*o.get("x_padr", (0, 32))):
                S += [I("s_nop 7")] * o["x_pad"]
            S += [W("lg", f"r{T}a"), big[0]] + r0 + ([Slot(0)] if T < 3 else [])
            n1, n3 = o.get("exn", (8, 10)) if (spread and T < 19) else ((3, 3) if busy else (5, 5))
            S += [W("lg", f"r{T}b"), big[1], Slot(0)] + ex.take(n1)
            S += sm[:1] + [W("lg", f"r{T}c"), big[2]] + r1 + ([Slot(0, True)] if (T >= 3 and not ((T & 1) == 0 and T in range(*o.get("s3", (0, 0))))) else [Slot(0)])
            S += [big[3], Slot(0)] + ex.take(n3) + sm[1:] + dots
        S += [Hold(False), Pace(o.get("pace2" + typ, o.get("pace2", 80)))]
        return S

    def pass2(self, typ, mid=None, extra=None):
        o = dict(self.opt)
        if "p2s2" + typ in o:
            o["p2s2"] = o["p2s2" + typ]
        bw = 4 if o.get("bswap", 0) else 0
        S = [W("vm", f"b{bw}s"), W("vm", "c0"), I("s_barrier"), Hold(True)]
        self.stamp(S, "w0")
        S += self.reads2(0) + self.reads2(1)
        wr = {k + 1: k for k in range(21)}
        ex = Extras()
        ex.add(extra or [])
        ex.add(self.setup_p2b())
        gap = o.get("gap2", 40)
        for T in range(32):
            if T in P2BAR and T < 31:
                S += [W("lg")]
                self.stamp(S, f"u{T}")
                S += [W("vm", f"b{min(7, (T + 2) // 4 + bw)}s"), W("vm", f"c{min(T + 2, 20)}"), I("s_barrier")]
                self.stamp(S, f"w{T}")
                S.append(Rel([self.dma_w2(n) for n in P2REL[T]]))
            if mid and T in mid:
                S.append(Rel([mid[T]], front=True))
            big, sm = self.mfma2(T)
            if T == 31:
                S += [W("lg"), I("s_barrier")]
                self.stamp(S, "p2end")
                S += [big[0]] + self.cs_read(vCs[2:]) + [Slot(0), big[1], W("lg", "cs")] + self.aug_v(vCs[2], vWa[2])
                S += self.aug_m(vWa[2], [vAcc2(0), vAcc2(1)], False)
                continue
            rd = self.reads2(T + 2) if T < 30 else self.cs_write(vCs[2:])
            wq = self.p2_reads(wr[T], lambda t, u: a(8 * wr[T] + 4 * t + 2 * u, 2), "wreg") if T in wr else []
            S += [W("lg", f"q{T}"), big[0]] + rd + (wq[:1] if wq else ex.take(2)) + [big[1], Slot(gap)] + (wq[1:] if wq else ex.take(3))
            if T == 29:
                S += [W("lg", "q30"), self.mfma2(30)[1]]
            elif T == 30:
                S += ex.take(1000)
            elif (T & 1) == 0:
                S += [sm] + ([Slot(0)] if (o.get("p2s2", 4) and T % o.get("p2s2", 4) == 0) else ex.take(1))
        S += [Hold(False), Pace(o.get("pace4" + typ, o.get("pace4", 80)))]
        return S

    def tail_groups(self):
        return ([] if self.opt.get("xfront", 1) else self.xres_loads()) + [self.dma_w2(n) for n in P2REL[31]]

    def act_ld(self, n):
        kind, T = ORDER[n]
        T = T if kind == "f" else 48 + T
        return [I(f"s_add_u32 {sG}, {sAct2}, {(T * 2048) << self.fs}"),
                I(f"buffer_load_dwordx4 {act_reg(n)}, {self.vact}, {SRD['ws']}, {sG} offen sc1", f"x{n}")]

    def early_act(self):
        S = [Hold(True)] + self.poll_check(sPB, vP16, vPoll, "bpoll", dual=True) + [Hold(False)]
        self.stamp(S, "actok")
        xf = self.opt.get("xfront", 1)
        S.append(Rel((self.xres_loads() if xf else []) + [self.act_ld(n) for n in range(self.opt.get("R", 12))], front=bool(xf)))
        return S

    def path_a(self):
        o = self.opt
        S = []
        e = lambda t, tag=None: S.append(I(t, tag))
        S += self.head("A")
        S += self.pass1("A")
        PK, PV = 128, 144
        C0, C1 = 64, 80
        S.append(W("lg"))
        for gg in range(2):
            S += self.phi(vAcc1(0, gg), PK + 8 * gg, lambda r, gg=gg: (v(vRsA[gg] + r, 2), 0, 1))
        for gg in range(2):
            acc = vAcc1(1, gg)
            for r in range(0, 16, 2):
                e(f"v_pk_mul_f32 {v(acc + r, 2)}, {v(acc + r, 2)}, {v(vRsA[gg] + r, 2)}")
            for r in range(0, 16, 2):
                e(f"v_cvt_pk_bf16_f32 {v(PV + 8 * gg + r // 2)}, {v(acc + r)}, {v(acc + r + 1)}")
        ONE = 96
        for r in range(4):
            e(f"v_mov_b32 {v(ONE + r)}, {v(vNE + 1)}")
        for f in range(4):
            e(f"v_mfma_f32_32x32x16_bf16 {v(C1, 16)}, {v(PK + 4 * f, 4)}, {v(ONE, 4)}, {'0' if f == 0 else v(C1, 16)}")
        for f in range(4):
            e(f"v_mfma_f32_32x32x16_bf16 {v(C0, 16)}, {v(PK + 4 * f, 4)}, {v(PV + 4 * f, 4)}, {'0' if f == 0 else v(C0, 16)}")
        M, Z = 100, 108
        for r in range(8):
            e(f"v_cndmask_b32 {v(Z + r)}, {v(C1 + 8 + r)}, {v(C1 + r)}, {sSET0}")
        for k in range(3):
            for r in range(4 >> k):
                e(f"v_cndmask_b32 {v(Z + r)}, {v(Z + 2 * r)}, {v(Z + 2 * r + 1)}, {sLB[k]}")
        e(f"ds_write_b32 v166, {v(Z)} offset:3072")
        SD, KP = 116, 120
        for r in range(8):
            e(f"v_cndmask_b32 {v(M + r)}, {v(C0 + 8 + r)}, {v(C0 + r)}, {sSET0}")
        for r in range(4):
            e(f"v_cndmask_b32 {v(SD + r)}, {v(M + 4 + r)}, {v(M + r)}, {sRHM}")
        e(f"ds_write_b128 v165, {v(SD, 4)} offset:{SC_KV}")
        for r in range(4):
            e(f"v_cndmask_b32 {v(KP + r)}, {v(M + r)}, {v(M + 4 + r)}, {sRHM}")
        e("v_xor_b32 v165, 1024, v165")
        S += [W("lg"), I("s_barrier"), Hold(True)]
        e(f"ds_read_b128 {v(124, 4)}, v165 offset:{SC_KV}")
        e(f"ds_read_b32 {v(Z + 1)}, {vStA} offset:3072")
        S += [Slot(0), W("lg")]
        for r in range(4):
            e(f"v_add_f32 {v(KP + r)}, {v(KP + r)}, {v(124 + r)}")
            e(f"buffer_atomic_add_f32 {v(KP + r)}, {vL4}, {SRD['ws']}, {sM1} offen offset:{256 * r}", "kvat")
        e(f"v_add_f32 {v(Z)}, {v(Z)}, {v(Z + 1)}")
        e(f"buffer_atomic_add_f32 {v(Z)}, {v(vZf)}, {SRD['ws']}, {sKV} offen offset:2048", "kvat")
        S.append(Hold(False))
        self.stamp(S, "epi1")
        KV, ZZ, PQ = 96, 104, 112
        kT = o.get("kvpollT", 24)
        za = [I(f"v_bfe_u32 v64, {vLane}, 4, 1"), I("v_xor_b32 v64, 1, v64"), I(f"v_lshrrev_b32 v66, 5, {vLane}"),
              I("v_lshlrev_b32 v64, 6, v64"), I("v_lshl_add_u32 v64, v66, 5, v64")]
        ld = [I(f"buffer_load_dword {v(KV + r)}, {vL4}, {SRD['ws']}, {sKV} offen offset:{256 * r} sc1", "kvld") for r in range(8)] + \
             [I(f"buffer_load_dwordx4 {v(ZZ + 4 * k, 4)}, v64, {SRD['ws']}, {sKV} offen offset:{2048 + 16 * k} sc1", "kvld") for k in range(2)]
        chk = self.poll_check(sPKV, v(vP32), "v65", "kvpoll")
        self.stamp(chk, "kvok")
        post = o.get("kvpost", 2)
        mid = {o.get("kvflagT", 7): self.flag("kvat", sFKV),
               (o.get("kvpollT", 26 + 2 * post) if post else kT): [self.poll_issue(sPKV, v(vP32), "v65", "kvpoll")]}
        if not post:
            mid[o.get("kvchkT", 29)] = chk + ld
        S += self.pass2("A", mid=mid, extra=za)
        if post == 1:
            S += [Hold(True)] + chk + ld + [Hold(False)]
        S.append(Rel(self.tail_groups()))
        KP_, ZP, F0, F1 = 64, 68, 72, 76
        fb = [W("vm", "kvld")]
        for r in range(4):
            fb.append(I(f"v_cvt_pk_bf16_f32 {v(KP_ + r)}, {v(KV + 2 * r)}, {v(KV + 2 * r + 1)}"))
            fb.append(I(f"v_cvt_pk_bf16_f32 {v(ZP + r)}, {v(ZZ + 2 * r)}, {v(ZZ + 2 * r + 1)}"))
        for r in range(4):
            fb.append(I(f"v_cndmask_b32 {v(F0 + r)}, {v(ZP + r)}, {v(KP_ + r)}, {sSET0}"))
            fb.append(I(f"v_cndmask_b32 {v(F1 + r)}, {v(KP_ + r)}, {v(ZP + r)}, {sSET0}"))
        if not post:
            S += fb
        e(f"s_lshl_b32 {sD}, {sP}, 1")
        e(f"s_add_u32 {sD}, {sD}, {sCH}")
        e(f"s_lshl_b32 {sD}, {sD}, {11 + self.fs}")
        e(f"s_add_u32 {sD}, {sD}, {sActB}")
        e(f"s_add_u32 {sD}, {sD}, {(96 * 1024) << self.fs}")
        D = [190, 206, 128, 144]

        def omf(gg):
            return [I(f"v_mfma_f32_32x32x16_bf16 {v(D[2 * gg + hd], 16)}, {v((F0, F1)[hd], 4)}, {v(PQ + 8 * gg + 4 * hd, 4)}, 0") for hd in range(2)]

        def ofin(gg):
            for hd in range(2):
                d = D[2 * gg + hd]
                num, den = (d, d + 8) if hd == 0 else (d + 8, d)
                po = 80 + 4 * (2 * gg + hd)
                e(f"v_add_f32 {v(den)}, {v(vEL)}, {v(den)}")
                e(f"v_rcp_f32 {v(den)}, {v(den)}")
                for r in range(0, 8, 2):
                    e(f"v_pk_mul_f32 {v(num + r, 2)}, {v(num + r, 2)}, {v(den, 2)} op_sel_hi:[1,0]")
                for r in range(0, 8, 2):
                    e(f"v_cvt_pk_bf16_f32 {v(po + r // 2)}, {v(num + r)}, {v(num + r + 1)}")
                off = f" offset:{1024 << self.fs}" if hd else ""
                e(f"buffer_store_dwordx4 {v(po, 4)}, {self.vact}, {SRD['ws']}, {sD} offen{off} {self.opt.get('staux', 'sc1')}", "ost")
        S += [self.poll_issue(sPB, vP16, vPoll, "bpoll", dual=True)] + self.phi(vAcc2(0), PQ, lambda r: (v(vRs[0], 2), 0, 0))
        if post == 2:
            S += [Hold(True)] + chk + ld + [Hold(False)]
        if post:
            S += self.early_act() + self.phi(vAcc2(1), PQ + 8, lambda r: (v(vRs[1], 2), 0, 0)) + fb + omf(0) + omf(1)
        else:
            S += omf(0) + self.early_act() + self.phi(vAcc2(1), PQ + 8, lambda r: (v(vRs[1], 2), 0, 0)) + omf(1)
        ofin(0)
        e(f"s_add_u32 {sD}, {sD}, {131072 << self.fs}")
        ofin(1)
        self.stamp(S, "epi2")
        S += self.phase2("ost", sFO)
        return S

    def path_b(self):
        o = self.opt
        S = []
        e = lambda t, tag=None: S.append(I(t, tag))
        S += self.head("B")
        S += self.pass1("B")
        for g in range(2):
            for gg in range(2):
                S += self.mish(vAcc1(g, gg), gg, (sT0, sT1)[g])
        self.stamp(S, "epi1")
        S += self.pass2("B", mid={o.get("actflagT", 12): self.flag("actst", sFAct, True)})
        S.append(Rel(self.tail_groups()))
        S += [self.poll_issue(sPB, vP16, vPoll, "bpoll", dual=True)] + self.mish(vAcc2(0), 0, sT2) + self.early_act() + self.mish(vAcc2(1), 1, sT2)
        self.stamp(S, "epi2")
        S += self.phase2("actst", sFAct2)
        return S

    def phase2(self, sttag, sflag):
        o = self.opt
        S = []
        e = lambda t, tag=None: S.append(I(t, tag))
        R = o.get("R", 12)
        S += [FlushTo(f"x{R - 1}") if o.get("xfront", 1) else Flush(), Hold(True)]
        ld = self.act_ld
        S += ld(R)[:1]
        S += self.xres_unpack()
        frag = lambda n: (lambda t, u: v(32 + 8 * (n & 3) + 4 * t + 2 * u, 2))
        back = o.get("pollback", 8)
        dA, dO = o.get("late", (0, 0))
        issue = {}
        for m in range(R, 59):
            st = m - R
            if m >= NA:
                st = max(st, NA - R + dO + (m - NA) // 2)
            elif m >= NB:
                st = max(st, NB - R + dA + (m - NB) // 2)
            issue[m] = st
        at = lambda n: [m for m in range(R, 59) if issue[m] == n]
        for n in range(59):
            m = n + R
            if n == NREGW - 2 or n == 44:
                S += [W("vm", "c46" if n < 44 else "c58"), I("s_barrier")]
            if n == issue[NB] - back:
                S.append(self.poll_issue(sPA, vP16, vPoll, "apoll", dual=True))
            if n == max(issue[NA] - back, issue[NB] + 1):
                S.append(self.poll_issue(sPO, vP16, vPoll, "opoll", dual=True))
            self.stamp(S, f"s{n}")
            if n == issue[NB]:
                self.stamp(S, "apre")
                S += self.poll_check(sPA, vP16, vPoll, "apoll", dual=True)
                self.stamp(S, "aok")
            if n == issue[NA]:
                self.stamp(S, "opre")
                S += self.poll_check(sPO, vP16, vPoll, "opoll", dual=True)
                self.stamp(S, "ook")
            S.append(W("vm", f"x{n}"))
            if n == o.get("flagstep", self.flagstep[sttag]):
                S += self.flag(sttag, sflag, True)
            if n >= NREGW:
                S.append(W("lg", f"w{n}"))
            if n == 57 and o.get("tail2", 1):
                mm = lambda k, tt: I(f"v_mfma_f32_32x32x16_bf16 {v(vAo[tt], 16)}, {v(32 + 8 * (k & 3) + 4 * tt, 4)}, {act_reg(k)}, {v(vAo[tt], 16)}")
                S += [mm(57, 1), W("vm", "x58"), W("lg", "w58"), mm(58, 1), mm(57, 0), mm(58, 0)]
                break
            for t in range(2):
                wf = a(8 * n + 4 * t, 4) if n < NREGW else v(32 + 8 * (n & 3) + 4 * t, 4)
                tt = 1 - t
                wf = a(8 * n + 4 * tt, 4) if n < NREGW else v(32 + 8 * (n & 3) + 4 * tt, 4)
                acc = v(vAo[tt], 16)
                e(f"v_mfma_f32_32x32x16_bf16 {acc}, {wf}, {act_reg(n)}, {'0' if (n == 0 and tt == 1) else acc}")
                q = at(n)
                if t < len(q):
                    S += ld(q[t])[1:] + (ld(q[t] + 1)[:1] if q[t] < 58 else [])
                elif t == 1:
                    S.append(Slot(0))
                if NREGW - 2 <= n < 57:
                    S += self.p2_reads(n + 2, frag(n + 2), f"w{n + 2}")[2 * t:2 * t + 2]
            if n == issue[58] + 1:
                e(f"s_or_b32 {sA}, s2, {sW}")
                e(f"s_cmp_eq_u32 {sA}, 0")
                e(f"s_cselect_b32 {sA}, 0, {OOB}")
                e(f"v_or_b32 v16, {sA}, {vL0}")
                e(f"buffer_store_dword {vTag}, v16, {SRD['ws']}, 0 offen offset:{WS_E}")
        self.stamp(S, "gemm2")
        for q in range(4):
            e(f"ds_write_b128 v19, {v(vAo[1] + 4 * q, 4)} offset:{1024 * q}")
        S += [W("lg"), I("s_barrier")]
        for q in range(4):
            e(f"ds_read_b128 {v(96 + 4 * q, 4)}, v20 offset:{1024 * q}", f"f{q}")
        for q in range(4):
            S.append(W("lg", f"f{q}"))
            for r in (0, 2):
                e(f"v_pk_add_f32 {v(vAo[0] + 4 * q + r, 2)}, {v(vAo[0] + 4 * q + r, 2)}, {v(96 + 4 * q + r, 2)}")
            for r in (0, 2):
                e(f"v_cvt_pk_bf16_f32 {v(112 + 2 * q + r // 2)}, {v(vAo[0] + 4 * q + r)}, {v(vAo[0] + 4 * q + r + 1)}")
            if q & 1:
                k = q >> 1
                e(f"v_permlane32_swap_b32 {v(112 + 4 * k)}, {v(112 + 4 * k + 2)}")
                e(f"v_permlane32_swap_b32 {v(112 + 4 * k + 1)}, {v(112 + 4 * k + 3)}")
                off = " offset:32" if k else ""
                e(f"buffer_store_dwordx4 {v(112 + 4 * k, 4)}, v0, {SRD['out']}, 0 offen{off}")
        if o.get("stamps"):
            S.append(W("vm"))
            self.stamp(S, "end")
            pr = o.get("probe")
            if o.get("xprobe"):
                lp = self.label("probe")
                e(f"s_getreg_b32 {sA}, hwreg(HW_REG_XCC_ID, 0, 4)")
                e(f"s_sub_u32 {sA}, {sA}, s2")
                e(f"s_and_b32 {sA}, {sA}, 7")
                if o["xprobe"] == 2:
                    e(f"s_sub_u32 {sA}, 7, {sA}")
                e(f"s_mul_i32 {sA}, {sA}, 500")
                e(f"v_readlane_b32 {sC}, v179, {1 + self.allnames.index('end')}")
                e(f"{lp}:")
                e("s_memrealtime s[98:99]")
                e("s_waitcnt lgkmcnt(0)")
                e(f"s_sub_u32 {sB}, s98, {sC}")
                e(f"s_cmp_lt_u32 {sB}, {sA}")
                e(f"s_cbranch_scc1 {lp}")
            if pr:
                lp = self.label("probe")
                e(f"v_readlane_b32 {sA}, v179, {1 + self.allnames.index(pr)}")
                e(f"v_readlane_b32 {sC}, v179, {1 + self.allnames.index('end')}")
                e(f"s_sub_u32 {sA}, {sA}, s100")
                e(f"s_mul_i32 {sA}, {sA}, {o.get('mult', 4)}")
                e(f"{lp}:")
                e("s_memrealtime s[98:99]")
                e("s_waitcnt lgkmcnt(0)")
                e(f"s_sub_u32 {sB}, s98, {sC}")
                e(f"s_cmp_lt_u32 {sB}, {sA}")
                e(f"s_cbranch_scc1 {lp}")
            e(f"s_lshl_b32 {sA}, s2, 2")
            e(f"s_add_u32 {sA}, {sA}, {sW}")
            e(f"s_lshl_b32 {sA}, {sA}, 7")
            e(f"s_add_u32 {sA}, {sA}, {WS_STAMP}")
            e(f"v_cmp_gt_u32 vcc, 32, {vLane}")
            e(f"v_mov_b32 v21, {OOB}")
            e(f"v_cndmask_b32 v21, v21, {vL4}, vcc")
            e(f"buffer_store_dword v179, v21, {SRD['ws']}, {sA} offen")
        e("s_endpgm")
        return S

    def build(self):
        self.flagstep = {"actst": 0, "ost": 0}
        for path, tag in ((self.path_a, "ost"), (self.path_b, "actst")):
            seq = [it for it in schedule(self.prologue() + path())[0] if isinstance(it, I)]
            last = max(n for n, it in enumerate(seq) if it.tag == tag)
            self.flagstep[tag] = sum(1 for it in seq[:last] if it.tag and it.tag[0] == "x" and it.tag[1:].isdigit())
        self.slow = []
        self.uid = 0
        pro = self.prologue()
        A = self.path_a()
        B = self.path_b()
        la, pka, na, ea = finalize2(pro + A)
        lb, pkb, nb, eb = finalize2(pro + B)
        npro = len(finalize2(pro)[0])
        assert la[:npro] == lb[:npro]
        body = la + ["L_typeB:"] + lb[npro:] + self.slow + ["L_end:", "s_endpgm", "L_codeend:"]
        self.info = dict(peakA=pka, peakB=pkb, nopsA=na, nopsB=nb, nA=len(la), nB=len(lb), est=(ea, eb), fs=self.flagstep)
        hdr = open("cdna_kernels/" + NAME + ".s.ref").read().split("; Override launch")[0]
        txt = hdr + "; Generated by a script: fused LayerNorm + linear attention + Mish FFN, one persistent launch.\n"
        txt += "; @launch grid=(256,1,1) block=(256,1,1) lds=163840\n"
        txt += f'.amdgcn_target "amdgcn-amd-amdhsa--gfx950"\n.text\n.globl {NAME}_kernel\n.p2align 8\n.type {NAME}_kernel,@function\n{NAME}_kernel:\n'
        txt += "\n".join(("" if l.endswith(":") else "    ") + l for l in body) + "\n"
        txt += f""".section .rodata,"a"
.p2align 6
.amdhsa_kernel {NAME}_kernel
  .amdhsa_next_free_vgpr 512
  .amdhsa_next_free_sgpr 102
  .amdhsa_accum_offset 256
  .amdhsa_group_segment_fixed_size 0
  .amdhsa_kernarg_size 80
  .amdhsa_user_sgpr_count 2
  .amdhsa_user_sgpr_kernarg_segment_ptr 1
  .amdhsa_system_sgpr_workgroup_id_x 1
  .amdhsa_float_denorm_mode_32 3
.end_amdhsa_kernel
"""
        return txt


def generate(**opt):
    global WS_ACT, WS_BYTES
    WS_ACT = opt.get("actoff", 0x100000)
    WS_BYTES = max(0x2000000, WS_ACT + 0x1100000)
    KARG["ws"] = (72, WS_BYTES)
    g = Gen(opt)
    t = g.build()
    return t, g


if __name__ == "__main__":
    t, g = generate()
    out = sys.argv[1] if len(sys.argv) > 1 else "cdna_kernels/" + NAME + ".s"
    open(out, "w").write(t)
    print(g.info, len(t))
```

```python
import struct
import sys
sys.path.insert(0, "dev")
from asmfw import I, W, Rel, Flush, Pace, Hold, Slot, FlushTo, finalize2, schedule

NAME = "parallel_sum__linear_attn_block__dense_activation_mish__prompt"

WS_E = 0x0
WS_STAT = 0x1000
WS_ZF = 0x8000
WS_KVF = 0x9000
WS_AF = 0xA000
WS_BF = 0xB000
WS_OF = 0xC000
WS_DUAL = 0x3000
WS_KV = 0x10000
WS_ACT = 0x100000
WS_STAMP = 0x1800000
WS_BYTES = 0x2000000
TAGC = 0x5BD1E995
OOB = 0x7FFF0000
SPIN = 100000

SLOT0 = 8192
SLOT = [8192, 40960, 73728]
BBASE = 98304
SC_RS = 0
SC_CS = 1024
SC_KV = 4096
RED = 106496


def bpos(b):
    return 0 if b == 7 else b + 1


def _pc_first(n):
    if n < 6:
        return 73728 + n * 4096
    if n < 14:
        return 8192 + (n - 6) * 4096
    if n < 21:
        return 40960 + (n - 14) * 4096
    return 69632


P2BAR = {2: (0, [0]), 6: (1, [1, 2, 3, 4]), 10: (2, [5, 6, 7, 8]), 14: (3, [9, 10, 11, 12]), 18: (4, [13, 14, 15, 16]),
         22: (5, [17, 18, 19, 20]), 26: (6, []), 31: (7, [])}
PC = [_pc_first(n) for n in range(22)]
P2REL = {}
for _T, (_b, _st) in P2BAR.items():
    _new = [BBASE + 8192 * bpos(_b), BBASE + 8192 * bpos(_b) + 4096] + [_pc_first(n) for n in _st]
    P2REL[_T] = list(range(len(PC), len(PC) + len(_new)))
    PC += _new
assert len(PC) == 59


def pc_addr(n):
    return PC[n]


NREGW = 21
ORDER = [("f", 6 * p + q) for p in range(7) for q in range(4)] + [("f", 42)] \
    + [("f", 6 * p + 4 + q) for p in range(7) for q in range(2)] + [("o", hp) for hp in range(16)]
NB, NA = 29, 43
RING = 22

sT0, sT1 = "s0", "s1"
sW = "s3"
SRD = dict(x="s[4:7]", qkv="s[8:11]", w1="s[12:15]", wo="s[16:19]", w2="s[20:23]", b1="s[24:27]", out="s[28:31]", ws="s[32:35]", ws2="s[24:27]")
KARG = dict(x=(0, 2048 * 1024), qkv=(8, 512 * 3072), w1=(32, 512 * 2752), ws=(72, WS_BYTES), wo=(16, 512 * 1024),
            w2=(48, 1376 * 1024), b1=(40, 2752), out=(56, 2048 * 1024))
sI, sJ, sP, sRH, sCH, sT, sR2, sC2, sSig = "s36", "s37", "s38", "s39", "s40", "s41", "s42", "s43", "s44"
sSET0 = "s[46:47]"
sRHM = "s[48:49]"
sW8K, sW2K, sW1K = "s50", "s51", "s52"
sT2, sWO = "s53", "s54"
sA, sB, sC, sD = "s55", "s56", "s57", "s58"
sActB = "s59"
sCnt, sE, sM0, sM1 = "s60", "s61", "s62", "s63"
sFKV, sFAct, sFO, sPKV, sPB, sPA, sPO, sKV, sAct2, sG, sZF, sFAct2 = [f"s{64 + k}" for k in range(12)]
sXk = ["s45"] + [f"s{76 + k}" for k in range(1, 8)]
sLB = ["s[84:85]", "s[86:87]", "s[88:89]"]
PFS = "s[92:95]"

vLane, vL16, vL4, vMH0, vL0 = "v1", "v2", "v3", "v4", "v5"
vW2s, vTag = "v6", "v7"
vXs = [8, 9, 10, 11]
vWs = [12, 13, 14, 15]
vBs = [16, 17]
vXrA = [18, 19, 20, 21]
vXrB = [22, 23, 24, 25]
vWrA = [26, 27]
vWrB = [28, 29]
vBr = [30, 31]
vSel = 32
vCs = [36, 40, 44]
vWf = [[48, 52], [56, 60]]
vAcc1 = lambda G, gg: 64 + 32 * G + 16 * gg
vAcc2 = lambda gg: 128 + 16 * gg
vSt = [160, 162]
vZf, vB2, vZero, vP32 = 164, 165, 166, 167
vXa = [168, 172]
vPFd, vPFa, vStA = "v176", "v177", "v178"
vRs = [180, 182]
vC12 = 184
vEL = 186
vNE = 188
vRsA = [190, 206]
vT = 222
vWa = [246, 250, 160]
vDs = [46, 47]
vCsW, vCsR = "v254", "v255"
vP2r = [[8, 9], [10, 11], [12, 13]]
vP16, vPoll = "v14", "v15"
vAo = [64, 80]
vXr = 246


def v(n, k=1):
    return f"v{n}" if k == 1 else f"v[{n}:{n + k - 1}]"


def a(n, k=1):
    return f"a{n}" if k == 1 else f"a[{n}:{n + k - 1}]"


def act_reg(n):
    return a(168 + 4 * (n % RING), 4)


def f2u(x):
    return "0x%08x" % struct.unpack("<I", struct.pack("<f", x))[0]


LOG2E = 1.4426950408889634
LN2 = 0.6931471805599453
_SCC_USE = ("s_cselect", "s_addc", "s_cbranch_scc")


class Extras:
    def __init__(self):
        self.q = []

    def add(self, items):
        self.q += [it for it in items if not isinstance(it, Hold)]

    def take(self, n):
        out = []
        while self.q:
            it = self.q[0]
            glue = not isinstance(it, I) or it.t.endswith(":") or it.t.startswith(_SCC_USE)
            if n <= 0 and not glue:
                break
            out.append(self.q.pop(0))
            if isinstance(it, I) and not it.t.endswith(":"):
                n -= 1
        return out


class Gen:
    allnames = ["a0", "p1end", "epi1", "p2end", "epi2", "actok", "s1", "apre", "aok", "opre", "ook", "gemm2", "end"]

    def __init__(self, opt):
        self.opt = opt
        if opt.get("stampset"):
            self.allnames = opt["stampset"].split(",")
        self.slow = []
        self.fs = 1 if opt.get("skip3", 0) else 0
        self.vact = v(vB2) if self.fs else vL16
        self.uid = 0

    def stamp(self, S, name):
        if not self.opt.get("stamps") or name not in self.allnames:
            return
        S.append(I(f"{'s_memtime' if self.opt.get('cyc') else 's_memrealtime'} s[98:99]"))
        S.append(W("lg"))
        S.append(I(f"v_writelane_b32 v179, s98, {1 + self.allnames.index(name)}"))
        if self.opt.get("both"):
            S.append(I("s_memtime s[98:99]"))
            S.append(W("lg"))
            S.append(I(f"v_writelane_b32 v179, s98, {17 + self.allnames.index(name)}"))

    def label(self, base):
        self.uid += 1
        return f"L_{base}_{self.uid}"

    def prologue(self):
        o = self.opt
        S = []
        e = lambda t, tag=None: S.append(I(t, tag))
        e(f"s_lshr_b32 {sA}, s2, 8")
        e("s_cbranch_scc1 L_end")
        if o.get("stamps"):
            e("s_memtime s[100:101]" if o.get("cyc") else "s_memrealtime s[100:101]")
        e("s_load_dwordx2 s[4:5], s[0:1], 0")
        e("s_load_dwordx16 s[64:79], s[0:1], 0")
        e("s_load_dwordx2 s[32:33], s[0:1], 72")
        e("v_lshrrev_b32 v6, 6, v0")
        e(f"v_and_b32 {vLane}, 63, v0")
        e(f"v_readfirstlane_b32 {sW}, v6")
        e("s_lshl_b32 s7, 1, 17")
        e("s_getpc_b64 s[92:93]")
        e("s_lshr_b32 s92, s92, 8")
        e("s_lshl_b32 s92, s92, 8")
        e(f"s_mov_b32 s94, L_codeend-{NAME}_kernel")
        e("s_mov_b32 s95, s7")
        e("v_lshrrev_b32 v238, 4, v0")
        e("v_lshlrev_b32 v238, 7, v238")
        e(f"s_lshr_b32 {sB}, s2, 3")
        e(f"s_lshl_b32 {sA}, {sB}, 11")
        e(f"buffer_load_dword {vPFd}, v238, {PFS}, {sA} offen")
        e("s_lshl_b32 s6, 1, 21")
        e(f"s_and_b32 {sA}, s2, 7")
        e(f"s_lshr_b32 {sC}, s2, 7")
        e(f"s_lshl1_add_u32 {sI}, {sA}, {sC}")
        if o.get("rot", "l0") == "l0":
            e(f"s_lshl2_add_u32 {sA}, {sC}, {sA}")
            e(f"s_and_b32 {sA}, {sA}, 7")
        e(f"s_lshl_b32 {sXk[0]}, {sA}, 7")
        e(f"v_lshrrev_b32 v240, 3, {vLane}")
        e(f"v_and_b32 v241, 7, {vLane}")
        e(f"s_lshl2_add_u32 {sC}, {sI}, {sW}")
        e(f"s_lshl_b32 {sC}, {sC}, 15")
        e(f"v_lshl_add_u32 v243, v240, 10, {sC}")
        e("v_lshrrev_b32 v244, 1, v240")
        e("v_xor_b32 v244, v244, v241")
        e(f"v_lshl_add_u32 {v(vXs[0])}, v244, 4, v243")
        e(f"v_xor_b32 {v(vXs[1])}, 64, {v(vXs[0])}")
        e(f"v_add_u32 {v(vXs[1])}, {7168}, {v(vXs[1])}")
        e(f"v_add_u32 {v(vXs[2])}, {2 * 7168}, {v(vXs[0])}")
        e(f"v_add_u32 {v(vXs[3])}, {2 * 7168}, {v(vXs[1])}")
        e(f"s_lshl_b32 {sW8K}, {sW}, 13")
        e(f"s_add_u32 m0, {sW8K}, {SLOT[0]}")
        S.append(W("lg"))
        for pp in range(4):
            off = f" offset:{1024 * pp}" if pp else ""
            e(f"buffer_load_dwordx4 {v(vXs[pp])}, {SRD['x']}, {sXk[0]} offen{off} lds", "a0")
        e(f"s_and_b32 {sJ}, {sB}, 15")
        e("L_first256:")
        e(f"v_lshlrev_b32 {vL16}, 4, {vLane}")
        e(f"s_lshl4_add_u32 {sM0}, {sI}, {sJ}")
        e(f"s_lshl2_add_u32 {sM0}, {sM0}, {sW}")
        e(f"s_lshl_b32 {sM1}, {sM0}, 11")
        if o.get("strow1", 1):
            e(f"buffer_load_dwordx4 v[224:227], {vL16}, {SRD['x']}, {sM1} offen", "strow")
            e(f"buffer_load_dwordx4 v[228:231], {vL16}, {SRD['x']}, {sM1} offen offset:1024", "strow")
        e(f"s_load_dword {sE}, s[32:33], {WS_E}")
        e(f"s_lshr_b32 {sP}, {sJ}, 1")
        e(f"v_lshl_add_u32 v239, v6, 4, v240")
        e("v_lshlrev_b32 v242, 1, v240")
        e("v_and_b32 v242, 4, v242")
        e("v_xor_b32 v242, v242, v241")
        e("v_lshlrev_b32 v242, 4, v242")
        e(f"s_mul_i32 {sT0}, {sP}, 6")
        e(f"s_add_u32 {sT1}, {sT0}, 2")
        e(f"s_cmp_eq_u32 {sP}, 7")
        e(f"s_cselect_b32 {sD}, {OOB >> 7}, {sT1}")
        e(f"s_lshl1_add_u32 {sA}, {sP}, 16")
        e(f"s_lshl1_add_u32 {sB}, {sP}, 32")
        e(f"s_movk_i32 {sC}, 3072")
        e(f"s_bitcmp1_b32 {sJ}, 0")
        e(f"s_cselect_b32 {sA}, {sT0}, {sA}")
        e(f"s_cselect_b32 {sB}, {sD}, {sB}")
        e(f"s_cselect_b32 {sC}, 2752, {sC}")
        e("s_cselect_b64 s[80:81], s[72:73], s[66:67]")
        e(f"s_lshl_b32 s82, {sC}, 9")
        e("s_mov_b32 s83, s7")
        e(f"v_mul_u32_u24 v238, {sC}, v239")
        e(f"s_lshl_b32 {sA}, {sA}, 6")
        e(f"s_lshl_b32 {sB}, {sB}, 6")
        e(f"s_lshl_b32 {sD}, {sC}, 3")
        e(f"s_sub_u32 {sD}, {sD}, 1024")
        e(f"v_add3_u32 {v(vWs[0])}, v238, v242, {sA}")
        e(f"v_add3_u32 {v(vWs[2])}, v238, v242, {sB}")
        e(f"s_lshr_b32 {sC}, {sC}, 1")
        e(f"s_mul_i32 {sWO}, {sXk[0]}, {sC}")
        e(f"s_add_u32 m0, {sW8K}, {SLOT[0] + 4096}")
        e(f"v_add_u32 {v(vWs[1])}, {sD}, {v(vWs[0])}")
        e(f"v_add_u32 {v(vWs[3])}, {sD}, {v(vWs[2])}")
        e(f"buffer_load_dwordx4 {v(vWs[0])}, s[80:83], {sWO} offen lds", "a0")
        e(f"buffer_load_dwordx4 {v(vWs[1])}, s[80:83], {sWO} offen offset:1024 lds", "a0")
        e(f"s_add_u32 m0, {sW8K}, {SLOT[0] + 6144}")
        e(f"s_lshl_b32 {sM0}, {sM0}, 1")
        e(f"buffer_load_dwordx4 {v(vWs[2])}, s[80:83], {sWO} offen lds", "a0")
        e(f"buffer_load_dwordx4 {v(vWs[3])}, s[80:83], {sWO} offen offset:1024 lds", "a0")
        if o.get("pf3"):
            n = o["pf3"]
            e(f"s_lshr_b32 {sA}, s2, 3")
            e(f"s_lshl2_add_u32 {sA}, {sA}, {sW}")
            e(f"s_mul_i32 {sA}, {sA}, {4 * 3072}")
            e(f"s_add_u32 {sA}, {sA}, {384 + 1024 * (3 - n)}")
            e(f"v_and_b32 v236, 3, {vLane}")
            e("v_mul_u32_u24 v236, 3072, v236")
            e(f"v_lshrrev_b32 v235, 2, {vLane}")
            e("v_lshl_add_u32 v236, v235, 10, v236")
            e(f"v_cmp_gt_u32 vcc, {n}, v235")
            e(f"v_mov_b32 v235, {OOB}")
            e("s_mov_b64 s[8:9], s[66:67]")
            e(f"s_mov_b32 s10, {KARG['qkv'][1]}")
            e("s_mov_b32 s11, 0x20000")
            e("v_cndmask_b32 v236, v235, v236, vcc")
            e(f"buffer_load_dword {vPFd}, v236, {SRD['qkv']}, {sA} offen")
        if not o.get("strow1", 1):
            e(f"buffer_load_dwordx4 v[224:227], {vL16}, {SRD['x']}, {sM1} offen", "strow")
            e(f"buffer_load_dwordx4 v[228:231], {vL16}, {SRD['x']}, {sM1} offen offset:1024", "strow")
        if o.get("stamps"):
            e("v_mov_b32 v179, 0")
            e("v_writelane_b32 v179, s100, 0")
        self.stamp(S, "karg")
        for nm, p in (("qkv", 66), ("wo", 68), ("w1", 72), ("b1", 74), ("w2", 76), ("out", 78)):
            b = int(SRD[nm][2:].split(":")[0])
            e(f"s_mov_b64 s[{b}:{b + 1}], s[{p}:{p + 1}]")
        for nm in ("qkv", "w1"):
            b = int(SRD[nm][2:].split(":")[0])
            e(f"s_mov_b32 s{b + 2}, {KARG[nm][1]}")
            e(f"s_mov_b32 s{b + 3}, 0x20000")
        S += self.setup_now()
        if o.get("pfpos", "a0") == "a0":
            st, ld = self.pf_w2("chip")
            S += st + ld
        if o.get("dual", 1) and o.get("touch", 1):
            S += [I(f"s_and_b32 {sA}, s2, 7"), I(f"s_lshl_b32 {sA}, {sA}, 2"), I(f"s_lshr_b32 {sB}, s2, 6"), I(f"s_add_u32 {sA}, {sA}, {sB}"),
                  I(f"s_lshl_b32 {sA}, {sA}, 7"), I(f"s_add_u32 {sA}, {sA}, {WS_AF + WS_DUAL}"), I(f"s_min_u32 {sB}, {sW}, 2"),
                  I(f"s_lshl_b32 {sB}, {sB}, 12"), I(f"s_add_u32 {sA}, {sA}, {sB}"), I(f"v_mov_b32 {vPFa}, 0"),
                  I(f"buffer_load_dword {vPFd}, {vPFa}, {SRD['ws']}, {sA} offen")]
        e(f"s_bitcmp1_b32 {sJ}, 0")
        e("s_cbranch_scc1 L_typeB")
        return S

    def dma_a(self, s, typ):
        srd, stride = (SRD["qkv"], 3072) if typ == "A" else (SRD["w1"], 2752)
        slot = SLOT[s % 3]
        tag = f"a{s}"
        G = []
        mul = I(f"s_mul_i32 {sWO}, {sXk[s]}, {stride // 2}")
        if s:
            for pp in range(4):
                off = f" offset:{1024 * pp}" if pp else ""
                ins = I(f"buffer_load_dwordx4 {v(vXs[pp])}, {SRD['x']}, {sXk[s]} offen{off} lds", tag)
                G.append(([I(f"s_add_u32 m0, {sW8K}, {slot}"), mul] if pp == 0 else []) + [ins])
        for g in range(2):
            G.append(([mul] if (s == 0 and g == 0) else []) + [I(f"s_add_u32 m0, {sW8K}, {slot + 4096 + 2048 * g}"),
                      I(f"buffer_load_dwordx4 {v(vWs[2 * g])}, {srd}, {sWO} offen lds", tag)])
            G.append([I(f"buffer_load_dwordx4 {v(vWs[2 * g + 1])}, {srd}, {sWO} offen offset:1024 lds", tag)])
        return G

    def dma_b(self, b, typ):
        srd, stride = (SRD["w1"], 2752) if typ == "B" else (SRD["qkv"], 3072)
        tag = f"b{b}s"
        if self.opt.get("bswap", 0):
            pre = [I(f"s_xor_b32 m0, s90, {8192 * bpos(b)}"), I(f"s_xor_b32 {sWO}, {sXk[b]}, s91"),
                   I(f"s_add_u32 m0, m0, {sW2K}"), I(f"s_mul_i32 {sWO}, {sWO}, {stride // 2}")]
        else:
            pre = [I(f"s_add_u32 m0, {sW2K}, {8192 * bpos(b)}"), I(f"s_mul_i32 {sWO}, {sXk[b]}, {stride // 2}")]
        return [pre + [I(f"buffer_load_dwordx4 {v(vBs[0])}, {srd}, {sWO} offen lds", tag)],
                [I(f"buffer_load_dwordx4 {v(vBs[1])}, {srd}, {sWO} offen offset:1024 lds", tag)]]

    def dma_w2(self, n):
        kind, T = ORDER[n]
        srd = SRD["w2"] if kind == "f" else SRD["wo"]
        return [I(f"s_add_u32 m0, {sW1K}, {pc_addr(n)}"), I(f"s_mov_b32 {sWO}, {T * 32768}"),
                I(f"buffer_load_dwordx4 {vW2s}, {srd}, {sWO} offen lds", f"c{n}")]

    def code_touch(self):
        lb = self.label("pc")
        S = [I("s_getpc_b64 s[84:85]"), I(f"{lb}:"), I(f"s_sub_u32 s84, s84, {lb}-{NAME}_kernel"), I("s_subb_u32 s85, s85, 0"),
             I(f"s_mov_b32 s86, L_codeend-{NAME}_kernel"), I("s_mov_b32 s87, 0x20000"),
             I(f"s_lshr_b32 {sA}, s2, 3"), I(f"s_lshl_b32 {sA}, {sA}, 2"), I(f"s_add_u32 {sA}, {sA}, {sW}"), I(f"s_lshl_b32 {sA}, {sA}, 9"),
             I(f"v_and_b32 v219, 3, {vLane}"), I(f"v_lshl_add_u32 v219, v219, 7, {sA}")]
        return S, [I(f"buffer_load_dword {vPFd}, v219, s[84:87], 0 offen")]

    def pf_w2(self, kind):
        again = kind == "chip2"
        if again:
            kind = "chip"
        sh = 7 if kind == "chip" else 10
        r0 = 84 if again else 92
        va = "v220" if kind == "chip" else vPFa
        S = []
        e = lambda t, tag=None: S.append(I(t, tag))
        idx = "s2" if (kind == "chip" and not again) else sA
        if again:
            e(f"s_add_u32 {sA}, s2, {self.opt.get('pf2d', 1)}")
            e(f"s_and_b32 {sA}, {sA}, 255")
        if kind == "col":
            e(f"s_lshr_b32 {sA}, s2, 3")
        e(f"s_mul_i32 {sB}, {idx}, 43")
        e(f"s_mul_i32 {sC}, {sW}, 22")
        e(f"s_add_u32 {sB}, {sB}, {sC}")
        e(f"s_lshl_b32 {sC}, {idx}, 4")
        e(f"s_cmp_ge_u32 {sW}, 2")
        e(f"s_cselect_b32 {sB}, {sC}, {sB}")
        e(f"s_cselect_b32 s{r0}, s16, s20")
        e(f"s_cselect_b32 s{r0 + 1}, s17, s21")
        e(f"s_lshl_b32 {sB}, {sB}, {sh}")
        if kind == "col":
            e(f"s_add_u32 {sB}, {sB}, 384")
        e(f"s_add_u32 s{r0}, s{r0}, {sB}")
        e(f"s_addc_u32 s{r0 + 1}, s{r0 + 1}, 0")
        e(f"s_lshl_b32 {sC}, {sW}, 3")
        e(f"s_lshr_b32 s{r0 + 2}, {0x00101516}, {sC}")
        e(f"s_and_b32 s{r0 + 2}, s{r0 + 2}, 0xff")
        e(f"s_lshl_b32 s{r0 + 2}, s{r0 + 2}, {sh}")
        if kind == "col":
            e(f"s_sub_u32 s{r0 + 2}, s{r0 + 2}, 512")
            e(f"s_max_i32 s{r0 + 2}, s{r0 + 2}, 0")
        e(f"s_mov_b32 s{r0 + 3}, 0x20000")
        e(f"v_lshlrev_b32 {va}, {sh}, {vLane}")
        return S, [I(f"buffer_load_dword {vPFd}, {va}, s[{r0}:{r0 + 3}], 0 offen")]

    def reads1(self, T):
        s, tau = divmod(T, 4)
        slot = s % 3
        xr = vXrA if slot < 2 else vXrB
        wr = vWrA if slot < 2 else vWrB
        so = 32768 if slot == 1 else 0
        buf = T & 1
        wrd = lambda g, u, tag: I(f"ds_read_b64_tr_b16 {v(vWf[buf][g] + 2 * u, 2)}, {v(wr[tau & 1])} offset:{so + (tau & 2) * 8192 + 2048 * g + 512 * u}", tag)
        xrd = lambda g, tag: I(f"ds_read_b128 {a(8 * T + 4 * g, 4)}, {v(xr[tau])} offset:{so + 8192 * g}", tag)
        return ([wrd(0, 0, f"r{T}a"), wrd(0, 1, f"r{T}a"), xrd(0, f"r{T}a")],
                [xrd(1, f"r{T}b"), wrd(1, 0, f"r{T}c"), wrd(1, 1, f"r{T}c")])

    def mfma1(self, T, typ):
        buf = T & 1
        big, sm = [], []
        for g in range(2):
            for gg in range(2):
                acc = v(vAcc1(g, gg), 16)
                xf, wf = a(8 * T + 4 * gg, 4), v(vWf[buf][g], 4)
                A_, B_ = (xf, wf) if typ == "A" else (wf, xf)
                big.append(I(f"v_mfma_f32_32x32x16_bf16 {acc}, {A_}, {B_}, {'0' if T == 0 else acc}"))
            if (T & 1) == 0:
                cs = v(vCs[g], 4)
                sm.append(I(f"v_mfma_f32_16x16x32_bf16 {cs}, {v(vSel, 4)}, {v(vWf[buf][g], 4)}, {'0' if T == 0 else cs}"))
        if self.opt.get("snake", 0):
            big[2], big[3] = big[3], big[2]
        return big, sm

    def reads2(self, T):
        b, tau = divmod(T, 4)
        return [I(f"ds_read_b64_tr_b16 {v(48 + 4 * (T & 3) + 2 * u, 2)}, {v(vBr[tau & 1])} offset:{8192 * bpos(b) + (tau & 2) * 2048 + 512 * u}", f"q{T}")
                for u in range(2)]

    def mfma2(self, T):
        wf = v(48 + 4 * (T & 3), 4)
        big = [I(f"v_mfma_f32_32x32x16_bf16 {v(vAcc2(gg), 16)}, {wf}, {a(8 * T + 4 * gg, 4)}, {'0' if T == 0 else v(vAcc2(gg), 16)}") for gg in range(2)]
        cs = v(vCs[2], 4)
        return big, I(f"v_mfma_f32_16x16x32_bf16 {cs}, {v(vSel, 4)}, {wf}, {'0' if T == 0 else cs}")

    def setup_now(self):
        S = []
        e = lambda t, tag=None: S.append(I(t, tag))
        for nm in ("ws", "w2", "wo"):
            b = int(SRD[nm][2:].split(":")[0])
            e(f"s_mov_b32 s{b + 2}, {KARG[nm][1]}")
            e(f"s_mov_b32 s{b + 3}, 0x20000")
        e(f"s_and_b32 {sRH}, {sW}, 1")
        e(f"s_lshr_b32 {sCH}, {sW}, 1")
        for k in range(1, 8):
            e(f"s_add_u32 {sXk[k]}, {sXk[k - 1]}, 128")
            e(f"s_and_b32 {sXk[k]}, {sXk[k]}, 0x380")
        e(f"v_and_b32 v232, 31, {vLane}")
        e(f"v_lshrrev_b32 v233, 5, {vLane}")
        e(f"v_lshlrev_b32 {v(vP32)}, 2, v232")
        e("v_bfe_u32 v234, v232, 1, 3")
        e("v_xor_b32 v234, v234, v233")
        e(f"s_lshl_b32 {sA}, {sRH}, 14")
        e(f"s_add_u32 {sA}, {sA}, {SLOT0}")
        e(f"v_lshl_add_u32 v235, v232, 7, {sA}")
        e(f"s_lshl_b32 {sB}, {sRH}, 1")
        e(f"v_xor_b32 v234, {sB}, v234")
        e(f"v_lshl_add_u32 {v(vXrA[0])}, v234, 4, v235")
        for tau in range(1, 4):
            e(f"v_xor_b32 {v(vXrA[tau])}, {32 * tau}, {v(vXrA[0])}")
        for tau in range(4):
            e(f"v_add_u32 {v(vXrB[tau])}, 65536, {v(vXrA[tau])}")
        e(f"v_bfe_u32 v234, {vLane}, 2, 2")
        e(f"v_bfe_u32 v238, {vLane}, 4, 1")
        e("v_lshlrev_b32 v238, 5, v238")
        e(f"v_and_b32 v236, 3, {vLane}")
        e("v_lshl_add_u32 v238, v236, 3, v238")
        e("v_lshrrev_b32 v236, 1, v234")
        e(f"v_xor_b32 v236, {sCH}, v236")
        e("v_lshl_add_u32 v236, v236, 6, v238")
        e("v_lshl_add_u32 v237, v233, 3, v234")
        e("v_lshl_add_u32 v237, v237, 7, v236")
        e(f"s_lshl_b32 {sA}, {sRH}, 13")
        e(f"s_add_u32 {sB}, {sA}, {SLOT0 + 4096}")
        e(f"s_sub_u32 {sC}, {SLOT0 + 4096 + 8192}, {sA}")
        e(f"v_add_u32 {v(vWrA[0])}, {sB}, v237")
        e(f"v_add_u32 {v(vWrA[1])}, {sC}, v237")
        e(f"v_add_u32 {v(vWrB[0])}, 65536, {v(vWrA[0])}")
        e(f"v_add_u32 {v(vWrB[1])}, 65536, {v(vWrA[1])}")
        e(f"v_lshrrev_b32 v234, 2, {vLane}")
        e(f"v_xor_b32 v234, v234, {vLane}")
        e("v_and_b32 v234, 4, v234")
        e("v_cmp_eq_u32 vcc, 0, v234")
        e(f"v_mov_b32 {v(vNE + 1)}, 0x3f803f80")
        for r in range(4):
            e(f"v_cndmask_b32 {v(vSel + r)}, 0, {v(vNE + 1)}, vcc")
        e(f"v_cmp_eq_u32 vcc, 63, {vLane}")
        e(f"v_mov_b32 v212, {OOB}")
        e(f"s_lshl_b32 {sM0}, {sM0}, 3")
        e(f"s_add_u32 {sM0}, {sM0}, {WS_STAT}")
        e("v_cndmask_b32 v212, v212, 0, vcc")
        return S

    def setup_later(self, typ):
        S = []
        e = lambda t, tag=None: S.append(I(t, tag))
        e(f"v_cmp_eq_u32 vcc, 0, {vLane}")
        e(f"v_mov_b32 v222, {OOB}")
        e(f"v_mov_b32 {v(vZero)}, 0")
        e(f"v_cndmask_b32 {vL0}, v222, 0, vcc")
        if typ == "A":
            e(f"s_sub_u32 {sB}, {sW}, 3")
            e(f"s_lshr_b32 {sC}, {sI}, 1")
            e(f"s_or_b32 {sB}, {sB}, {sC}")
            e(f"s_cmp_eq_u32 {sB}, 0")
            e(f"s_cselect_b32 {sB}, 0, {OOB}")
            e(f"s_lshl_b32 {sA}, {sP}, 1")
            e(f"s_add_u32 {sA}, {sA}, {sI}")
            e(f"s_lshl_b32 {sC}, {sA}, 12")
            e(f"s_add_u32 {sC}, {sC}, {sB}")
            e(f"v_add_u32 v194, {sC}, {vL16}")
            e(f"s_lshl_b32 {sC}, {sA}, 7")
            e(f"s_add_u32 {sC}, {sC}, {sB}")
            e(f"v_add_u32 v195, {sC}, {vL0}")
            e(f"v_min_u32 v195, {OOB}, v195")
            for r in range(4):
                e(f"v_mov_b32 v{196 + r}, 0")
            S.append(Rel([[I(f"s_mov_b32 {sG}, {WS_KV}")] +
                          [I(f"buffer_store_dwordx4 v[196:199], v194, {SRD['ws']}, {sG} offen offset:{1024 * k} sc1", "zst") for k in range(3)]]))
        e("s_mov_b32 s27, 0x20000")
        if typ == "B":
            e(f"s_mov_b32 s26, {KARG['b1'][1]}")
            e(f"v_lshrrev_b32 v221, 1, {v(vP32)}")
            e(f"s_add_u32 {sT2}, {sT0}, 4")
            S.append(Rel([[I(f"s_add_u32 {sG}, {st}, {sCH}"), I(f"s_lshl_b32 {sG}, {sG}, 6"),
                           I(f"buffer_load_ushort {v(d)}, v221, {SRD['b1']}, {sG} offen", "b1")]
                          for st, d in ((sT0, vWa[0] + 1), (sT1, vWa[1] + 1), (sT2, vB2))]))
        e(f"s_lshl_b32 {sW2K}, {sW}, 11")
        e(f"s_add_u32 {sW2K}, {sW2K}, {BBASE}")
        e(f"s_and_b32 s91, {sI}, 1")
        e("s_lshl_b32 s90, s91, 15")
        e("s_lshl_b32 s91, s91, 9")
        e(f"s_lshl_b32 {sW1K}, {sW}, 10")
        stride = 2752 if typ == "B" else 3072
        e(f"v_mul_u32_u24 v222, {stride}, v239")
        if typ == "A":
            e(f"s_lshl_b32 {sA}, {sP}, 7")
        else:
            e(f"s_lshl_b32 {sA}, {sT2}, 6")
            e(f"s_cmp_eq_u32 {sP}, 7")
            e(f"s_cselect_b32 {sA}, {OOB >> 1}, {sA}")
        e(f"v_add3_u32 {v(vBs[0])}, v222, v242, {sA}")
        e(f"v_add_u32 {v(vBs[1])}, {8 * stride - 1024}, {v(vBs[0])}")
        e(f"s_lshl_b32 {sA}, {sRH}, 11")
        e(f"s_add_u32 {sB}, {sA}, {BBASE}")
        e(f"s_sub_u32 {sC}, {BBASE + 2048}, {sA}")
        e(f"v_add_u32 {v(vBr[0])}, {sB}, v237")
        e(f"v_add_u32 {v(vBr[1])}, {sC}, v237")
        e(f"s_lshl_b32 {sA}, {sP}, 1")
        e(f"s_add_u32 {sA}, {sA}, {sCH}")
        e(f"s_lshl_b32 {sB}, {sI}, 1")
        e(f"s_add_u32 {sB}, {sB}, {sRH}")
        e(f"s_lshl_b32 {sM0}, {sB}, 9")
        e(f"s_add_u32 {sM0}, {sM0}, {WS_STAT}")
        e(f"v_lshlrev_b32 {vStA}, 1, {v(vP32)}")
        e(f"s_lshl_b32 {sC}, {sA}, 7")
        e(f"s_add_u32 {sZF}, {sC}, {WS_ZF}")
        S.append("STATREADY")
        e(f"s_add_u32 {sPKV}, {sC}, {WS_KVF}")
        e(f"s_lshl_b32 {sKV}, {sA}, 12")
        e(f"s_add_u32 {sKV}, {sKV}, {WS_KV}")
        e(f"s_lshl_b32 {sC}, {sB}, 2")
        e(f"s_add_u32 {sFKV}, {sPKV}, {sC}")
        e(f"s_lshl_b32 {sActB}, {sB}, {18 + self.fs}")
        e(f"s_add_u32 {sActB}, {sActB}, {WS_ACT}")
        e(f"s_lshl_b32 {sB}, {sB}, 5")
        e(f"s_add_u32 {sB}, {sB}, {sA}")
        e(f"s_lshl_b32 {sB}, {sB}, 2")
        e(f"s_add_u32 {sFAct}, {sB}, {WS_BF}")
        e(f"s_add_u32 {sFAct2}, {sB}, {WS_AF}")
        e(f"s_add_u32 {sFO}, {sB}, {WS_OF}")
        e(f"s_and_b32 {sR2}, s2, 7")
        e(f"s_lshl_b32 {sR2}, {sR2}, 2")
        e(f"s_lshr_b32 {sA}, s2, 6")
        e(f"s_add_u32 {sR2}, {sR2}, {sA}")
        e(f"s_lshr_b32 {sC2}, s2, 3")
        e(f"s_and_b32 {sC2}, {sC2}, 7")
        if self.opt.get("c2m", 0):
            e(f"s_and_b32 {sA}, {sA}, 1")
            e(f"s_xor_b32 {sC2}, {sC2}, {sA}")
        elif self.opt.get("c2x", 1):
            e(f"s_xor_b32 {sC2}, {sC2}, {self.opt.get('c2x', 1)}")
        e(f"s_lshl_b32 {sA}, {sW}, 3")
        e(f"v_add_lshl_u32 v222, {sA}, v240, 10")
        e(f"s_lshl_b32 {sA}, {sC2}, 7")
        e(f"v_add3_u32 {vW2s}, v222, v242, {sA}")
        e(f"v_cmp_gt_u32 vcc, 32, {vLane}")
        e(f"v_mov_b32 {v(vEL + 1)}, {f2u(LOG2E)}")
        e(f"v_lshlrev_b32 {vL4}, 2, {vLane}")
        e(f"v_cndmask_b32 {vMH0}, 0, -1, vcc")
        e(f"v_mov_b32 {v(vEL)}, {f2u(1e-6)}")
        e(f"v_mov_b32 {v(vNE)}, {f2u(-1e-6 * LOG2E)}")
        e(f"v_mov_b32 {v(vC12)}, {f2u(-2 * LN2)}")
        e(f"v_mov_b32 {v(vC12 + 1)}, {f2u(LN2)}")
        for r in (vXa[0] + 2, vXa[0] + 3, vXa[1] + 2, vXa[1] + 3, vWa[0] + 2, vWa[0] + 3, vWa[1] + 2, vWa[1] + 3):
            e(f"v_mov_b32 {v(r)}, 0")
        if typ == "A":
            e(f"v_mov_b32 {v(vWa[0] + 1)}, 0")
            e(f"v_mov_b32 {v(vWa[1] + 1)}, 0")
        e(f"v_and_b32 v222, 16, {vLane}")
        e(f"v_cmp_eq_u32 {sSET0}, 0, v222")
        e(f"s_lshl_b32 {sA}, {sW}, 9")
        e(f"v_add_u32 {vCsW}, {sA}, {vL4}")
        e(f"v_xor_b32 {vCsR}, 512, {vCsW}")
        if self.opt.get("colpos", "a7") == "a7":
            S += self.pf_w2("col")[0]
        return S

    def setup_p2a(self):
        S = []
        e = lambda t, tag=None: S.append(I(t, tag))
        e(f"v_bfe_u32 v224, {vLane}, 2, 2")
        e(f"v_lshrrev_b32 v226, 5, {vLane}")
        e("v_lshl_add_u32 v225, v226, 2, v224")
        e("v_lshlrev_b32 v225, 7, v225")
        e(f"v_bfe_u32 v226, {vLane}, 4, 1")
        e("v_lshl_add_u32 v225, v226, 5, v225")
        e(f"v_and_b32 v226, 3, {vLane}")
        e("v_lshl_add_u32 v225, v226, 3, v225")
        e(f"s_lshl_b32 {sA}, {sCH}, 11")
        e(f"s_add_u32 {sA}, {sA}, {SLOT0}")
        e("v_lshrrev_b32 v224, 1, v224")
        e(f"v_xor_b32 v224, {sCH}, v224")
        e("v_lshl_add_u32 v225, v224, 6, v225")
        e(f"v_add_u32 {v(vP2r[0][0])}, {sA}, v225")
        e(f"v_xor_b32 {v(vP2r[0][1])}, 64, {v(vP2r[0][0])}")
        for rg in (1, 2):
            for t in range(2):
                e(f"v_add_u32 {v(vP2r[rg][t])}, {65536 * rg}, {v(vP2r[0][t])}")
        if self.fs:
            assert self.opt.get("map", "r") == "r"
            e(f"s_and_b32 {sA}, {sI}, 7")
            e(f"s_cmp_eq_u32 {sA}, 3")
            e(f"s_cselect_b32 {sA}, 5, {sA}")
            e(f"s_lshl_b32 {sA}, {sA}, 7")
            e(f"s_add_u32 {sA}, {sA}, {1024 - 384}")
            e(f"v_lshrrev_b32 v224, 3, {vLane}")
            e("v_cmp_eq_u32 vcc, 3, v224")
            e(f"v_add_u32 v225, {sA}, {vL16}")
            e(f"v_cndmask_b32 {self.vact}, {vL16}, v225, vcc")
        return S

    def setup_kv(self):
        S = []
        e = lambda t, tag=None: S.append(I(t, tag))
        for k in range(3):
            e(f"v_and_b32 v222, {1 << k}, {vLane}")
            e(f"v_cmp_ne_u32 {sLB[k]}, 0, v222")
        e(f"v_bfe_u32 v222, {vLane}, 4, 1")
        e(f"v_lshrrev_b32 v223, 5, {vLane}")
        e("v_lshl_add_u32 v222, v222, 1, v223")
        e(f"v_and_b32 v223, 7, {vLane}")
        e("v_lshl_add_u32 v222, v222, 3, v223")
        e("v_lshlrev_b32 v222, 2, v222")
        e(f"v_lshrrev_b32 v223, 1, {vLane}")
        e(f"s_lshl_b32 {sA}, {sRH}, 3")
        e(f"v_xor_b32 v223, {sA}, v223")
        e(f"v_or_b32 v223, v223, {vLane}")
        e("v_and_b32 v223, 8, v223")
        e(f"v_mul_u32_u24 v223, {OOB >> 11}, v223")
        e(f"v_lshl_add_u32 {v(vZf)}, v223, 8, v222")
        e(f"s_cmp_eq_u32 {sRH}, 1")
        e(f"s_cselect_b64 {sRHM}, -1, 0")
        e(f"s_lshl_b32 {sA}, {sW}, 10")
        e(f"v_add_u32 v165, {sA}, {vL16}")
        e(f"s_lshl_b32 {sA}, {sW}, 8")
        e(f"v_add_u32 v166, {sA}, {vL4}")
        e(f"v_xor_b32 {vStA}, 256, v166")
        e(f"s_lshl_b32 {sB}, {sRH}, 10")
        e(f"s_add_u32 {sM1}, {sB}, {sKV}")
        return S

    def setup_p2b(self):
        S = []
        e = lambda t, tag=None: S.append(I(t, tag))
        e(f"v_lshrrev_b32 v20, 5, {vLane}")
        e(f"s_lshl_b32 {sA}, {sR2}, 7")
        e(f"s_add_u32 {sPB}, {sA}, {WS_BF}")
        e(f"s_add_u32 {sPA}, {sA}, {WS_AF}")
        e(f"s_add_u32 {sPO}, {sA}, {WS_OF}")
        e(f"s_lshl_b32 {sA}, {sR2}, 1")
        e(f"s_add_u32 {sA}, {sA}, {sRH}")
        e(f"s_lshl_b32 {sB}, {sA}, 7")
        e(f"s_add_u32 {sB}, {sB}, {sCH}")
        e(f"s_lshl_b32 {sB}, {sB}, {10 + self.fs}")
        e(f"s_add_u32 {sAct2}, {sB}, {WS_ACT}")
        e(f"s_lshl1_add_u32 {sA}, {sA}, {sCH}")
        e(f"s_lshl_b32 {sA}, {sA}, 14")
        e(f"s_lshl_b32 {sB}, {sC2}, 7")
        e(f"s_add_u32 {sA}, {sA}, {sB}")
        e(f"v_lshrrev_b32 v21, 3, {vLane}")
        e(f"v_and_b32 v22, 7, {vLane}")
        e(f"v_lshl_add_u32 v0, v22, 4, {sA}")
        e("v_lshl_add_u32 v0, v21, 10, v0")
        e("s_movk_i32 s90, 8192")
        e(f"s_mov_b32 s30, {KARG['out'][1]}")
        e("s_mov_b32 s31, 0x20000")
        e(f"v_and_b32 {vP16}, 60, {v(vP32)}")
        e(f"v_bfe_u32 v23, {v(vP32)}, 2, 3")
        e("v_xor_b32 v23, v23, v20")
        e(f"s_lshl_b32 {sA}, {sW}, 13")
        e(f"s_lshl_b32 {sB}, {sCH}, 7")
        e(f"s_add_u32 {sA}, {sA}, {sB}")
        e(f"s_add_u32 {sA}, {sA}, {RED}")
        e(f"v_lshl_add_u32 v23, v23, 4, {sA}")
        e(f"v_lshl_add_u32 v19, {v(vP32)}, 6, v23")
        e("v_lshlrev_b32 v22, 1, v22")
        e("v_xor_b32 v22, v22, v21")
        e(f"s_lshl_b32 {sA}, {sRH}, 13")
        e(f"s_lshl_b32 {sB}, {sCH}, 12")
        e(f"s_add_u32 {sA}, {sA}, {sB}")
        e(f"s_add_u32 {sA}, {sA}, {RED}")
        e(f"v_lshl_add_u32 v22, v22, 4, {sA}")
        e("v_lshl_add_u32 v20, v21, 8, v22")
        return S

    def stats_produce(self):
        S = []
        e = lambda t, tag=None: S.append(I(t, tag))
        base = [224, 228]
        acc = [200, 201, 202, 203]
        for k in range(2):
            e(f"v_dot2_f32_bf16 {v(acc[k])}, {v(base[k])}, {v(vNE + 1)}, 0")
            e(f"v_dot2_f32_bf16 {v(acc[2 + k])}, {v(base[k])}, {v(base[k])}, 0")
        for d in range(1, 4):
            for k in range(2):
                e(f"v_dot2_f32_bf16 {v(acc[k])}, {v(base[k] + d)}, {v(vNE + 1)}, {v(acc[k])}")
                e(f"v_dot2_f32_bf16 {v(acc[2 + k])}, {v(base[k] + d)}, {v(base[k] + d)}, {v(acc[2 + k])}")
        e("s_nop 2")
        for m in ("row_ror:8 row_mask:0xf", "row_ror:4 row_mask:0xf", "row_ror:2 row_mask:0xf", "row_ror:1 row_mask:0xf",
                  "row_bcast:15 row_mask:0xa", "row_bcast:31 row_mask:0xc"):
            for k in range(4):
                e(f"v_add_f32_dpp {v(acc[k])}, {v(acc[k])}, {v(acc[k])} {m} bank_mask:0xf")
        for k in range(4):
            e(f"v_mul_f32 {v(acc[k])}, {f2u(1.0 / 512)}, {v(acc[k])}")
        for k in range(2):
            e(f"v_fma_f32 {v(acc[2 + k])}, -{v(acc[k])}, {v(acc[k])}, {v(acc[2 + k])}")
        for k in range(2):
            e(f"v_max_f32 {v(acc[2 + k])}, 0, {v(acc[2 + k])}")
        e("v_cvt_pk_bf16_f32 v204, v202, v203")
        e("v_lshlrev_b32 v205, 16, v204")
        e("v_and_b32 v206, 0xffff0000, v204")
        e(f"v_add_f32 v205, {f2u(1e-5)}, v205")
        e(f"v_add_f32 v206, {f2u(1e-5)}, v206")
        e("v_cvt_pk_bf16_f32 v204, v205, v206")
        e("v_lshlrev_b32 v205, 16, v204")
        e("v_and_b32 v206, 0xffff0000, v204")
        e("v_sqrt_f32 v205, v205")
        e("v_sqrt_f32 v206, v206")
        S.append(W("lg"))
        e(f"s_add_u32 {sT}, {sE}, {TAGC}")
        e(f"v_mov_b32 {vTag}, {sT}")
        e(f"v_mov_b32 v209, {sT}")
        e(f"v_mov_b32 v211, {sT}")
        e("v_cvt_pk_bf16_f32 v208, v200, v205")
        e("v_cvt_pk_bf16_f32 v210, v201, v206")
        e(f"buffer_store_dwordx4 v[208:211], v212, {SRD['ws']}, {sM1} offen sc1")
        return S

    def head(self, typ):
        o = self.opt
        S = [Hold(True)]
        S += [Rel(self.dma_a(1, typ)), Flush(o.get("early1", 2))]
        later = [x for x in self.setup_later(typ) if x != "STATREADY"]
        S += [I(f"s_mov_b32 {sM1}, {sM0}")]
        self.early_ex = []
        if o.get("spread" + typ, o.get("spread", 0)):
            self.early_ex = [W("vm", "strow")] + [x for x in self.stats_produce() if not isinstance(x, W)] + later
            S += [W("lg"), Flush(), Rel(self.dma_a(2, typ))]
            return S
        late_groups = [g for x in later if isinstance(x, Rel) for g in x.groups]
        S += [x for x in later if not isinstance(x, Rel)]
        self.stamp(S, "setup")
        S.append(W("vm", "strow"))
        self.stamp(S, "strow")
        S += [Hold(False), Pace(o.get("pace0", 40))] + self.stats_produce()
        self.stamp(S, "stats")
        S.append(Flush())
        self.stamp(S, "prea0")
        S.append(Rel(self.dma_a(2, typ) + late_groups))
        return S

    def stat_loads(self, typ):
        G = [I(f"buffer_load_dwordx2 {v(vSt[0], 2)}, {vStA}, {SRD['ws']}, {sM0} offen sc1", "stat"),
             I(f"buffer_load_dwordx2 {v(vSt[1], 2)}, {vStA}, {SRD['ws']}, {sM0} offen offset:256 sc1", "stat")]
        if typ == "A":
            G.append(I(f"buffer_load_dword {v(vZf)}, {v(vZero)}, {SRD['ws']}, {sZF} offen sc1", "stat"))
        return G

    def stat_check(self, typ):
        S = []
        e = lambda t, tag=None: S.append(I(t, tag))
        slow, back = self.label("slow"), self.label("back")
        cmp = [f"v_xor_b32 v222, {sT}, {v(vSt[0] + 1)}", f"v_xor_b32 v223, {sT}, {v(vSt[1] + 1)}", "v_or_b32 v222, v222, v223"]
        if typ == "A":
            cmp += [f"v_xor_b32 v223, {sT}, {v(vZf)}", "v_or_b32 v222, v222, v223"]
        cmp.append("v_cmp_ne_u32 vcc, 0, v222")
        S.append(W("vm", "stat"))
        for t in cmp:
            e(t)
        e(f"s_cbranch_vccnz {slow}")
        e(f"{back}:")
        self.slow += [f"{slow}:", f"s_mov_b32 {sCnt}, {SPIN}", f"{slow}_l:"] + self.backoff() + \
            [it.t for it in self.stat_loads(typ)] + ["s_waitcnt vmcnt(0)"] + cmp + \
            [f"s_cbranch_vccz {back}", f"s_sub_u32 {sCnt}, {sCnt}, 1", f"s_cbranch_scc0 {slow}_l", f"s_branch {back}"]
        for gg in range(2):
            g = v(vSt[gg])
            e(f"v_and_b32 v222, 0xffff, {g}")
            e(f"v_and_b32 v223, 0xffff0000, {g}")
            e("v_xor_b32 v222, 0x8000, v222")
            e(f"v_rcp_f32 {v(vRs[gg])}, v223")
            e("v_lshl_or_b32 v222, v222, 16, v222")
            e(f"v_lshrrev_b32 v223, 16, {g}")
            e(f"v_and_b32 {v(vXa[gg])}, {vMH0}, v222")
            e(f"v_and_b32 {v(vXa[gg] + 1)}, {vMH0}, v223")
            e(f"v_mul_f32 {v(vRs[gg] + 1)}, {v(vEL + 1)}, {v(vRs[gg])}")
        if typ == "A":
            e(f"s_lshl_b32 {sA}, {sW}, 8")
            e(f"v_add_u32 v222, {sA}, {v(vP32)}")
            e(f"v_lshrrev_b32 v223, 5, {vLane}")
            e(f"ds_write_b32 v222, {v(vRs[0])} offset:{SC_RS}")
            e(f"ds_write_b32 v222, {v(vRs[1])} offset:{SC_RS + 128}")
            e(f"v_lshl_add_u32 v223, v223, 4, {sA}")
            for gg in range(2):
                for jj in range(4):
                    e(f"ds_read_b128 {v(vRsA[gg] + 4 * jj, 4)}, v223 offset:{SC_RS + 128 * gg + 32 * jj}", "rs")
        S.append(W("vm", "b1"))
        e(f"s_add_u32 s24, s32, {WS_DUAL}")
        e("s_addc_u32 s25, s33, 0")
        e(f"s_mov_b32 s26, {WS_BYTES - WS_DUAL}")
        e(f"v_mov_b32 {v(vWa[2] + 1)}, {v(vB2) if typ == 'B' else 0}")
        e(f"v_mov_b32 {v(vWa[2] + 2)}, 0")
        e(f"v_mov_b32 {v(vWa[2] + 3)}, 0")
        return S

    def backoff(self):
        return [f"s_sleep {self.opt['sleep']}"] if self.opt.get("sleep") else []

    def poll_issue(self, line_s, vaddr, reg, tag, dual=False):
        off = f" offset:{0}" if not dual else ""
        if dual and self.opt.get("dual", 1):
            return I(f"buffer_load_dword {reg}, {vaddr}, {SRD['ws2']}, {line_s} offen sc1", tag)
        return I(f"buffer_load_dword {reg}, {vaddr}, {SRD['ws']}, {line_s} offen sc1", tag)

    def poll_check(self, line_s, vaddr, reg, tag, prelude=(), dual=False):
        slow, back = self.label("slow"), self.label("back")
        L = [f"{slow}:"] + list(prelude) + [f"s_mov_b32 {sCnt}, {SPIN}", f"{slow}_l:"] + self.backoff()
        one = lambda srd: [f"buffer_load_dword {reg}, {vaddr}, {srd}, {line_s} offen sc1", "s_waitcnt vmcnt(0)",
                           f"v_cmp_ne_u32 vcc, {sT}, {reg}", f"s_cbranch_vccz {back}"]
        if dual and self.opt.get("dual", 1):
            L += one(SRD["ws2"]) + [f"s_sub_u32 {sCnt}, {sCnt}, 1", f"s_and_b32 {sM1}, {sCnt}, 7", f"s_cbranch_scc1 {slow}_l"]
        L += one(SRD["ws"]) + [f"s_sub_u32 {sCnt}, {sCnt}, 1", f"s_cbranch_scc0 {slow}_l", f"s_branch {back}"]
        self.slow += L
        return [W("vm", tag), I(f"v_cmp_ne_u32 vcc, {sT}, {reg}"), I(f"s_cbranch_vccnz {slow}"), I(f"{back}:")]

    def flag(self, tag, sreg, dual=False):
        S = [W("vm", tag)]
        if dual and self.opt.get("dual", 1):
            S.append(I(f"buffer_store_dword {vTag}, {vL0}, {SRD['ws2']}, {sreg} offen"))
        return S + [I(f"buffer_store_dword {vTag}, {vL0}, {SRD['ws']}, {sreg} offen sc1")]

    def cs_write(self, regs):
        return [I(f"ds_write_b32 {vCsW}, {v(r)} offset:{SC_CS + 256 * k}") for k, r in enumerate(regs)]

    def cs_read(self, regs):
        return [I(f"ds_read_b32 {v(r + 1)}, {vCsR} offset:{SC_CS + 256 * k}", "cs") for k, r in enumerate(regs)]

    def aug_v(self, cs, wa):
        return [I(f"v_add_f32 {v(cs)}, {v(cs)}, {v(cs + 1)}"), I(f"v_cvt_pk_bf16_f32 {v(cs + 1)}, {v(cs)}, {v(cs)}"),
                I(f"v_and_b32 {v(cs + 1)}, 0xffff0000, {v(cs + 1)}"), I(f"v_sub_f32 {v(cs + 2)}, {v(cs)}, {v(cs + 1)}"),
                I(f"v_cvt_pk_bf16_f32 {v(wa)}, {v(cs + 1)}, {v(cs + 2)}")]

    def aug_m(self, wa, accs, normal):
        S = []
        for gg, acc in enumerate(accs):
            A_, B_ = (v(vXa[gg], 4), v(wa, 4)) if normal else (v(wa, 4), v(vXa[gg], 4))
            S.append(I(f"v_mfma_f32_32x32x16_bf16 {v(acc, 16)}, {A_}, {B_}, {v(acc, 16)}"))
        return S

    def mish(self, acc, gg, st):
        S = []
        e = lambda t, tag=None: S.append(I(t, tag))
        E, U, P = vT, vT + 8, vT + 16
        e(f"s_add_u32 {sD}, {st}, {sCH}")
        e(f"s_lshl_b32 {sD}, {sD}, {11 + self.fs}")
        e(f"s_add_u32 {sD}, {sD}, {sActB}")
        if gg:
            e(f"s_add_u32 {sD}, {sD}, {131072 << self.fs}")
        for half in range(2):
            b = acc + 8 * half
            po = P + 4 * half
            Q = (0, 2, 4, 6)
            for r in Q:
                e(f"v_pk_mul_f32 {v(E + r, 2)}, {v(b + r, 2)}, {v(vRs[gg], 2)} op_sel:[0,1] op_sel_hi:[1,1]")
            for r in range(8):
                e(f"v_exp_f32 {v(U + r)}, {v(E + r)}")
            for r in Q:
                e(f"v_pk_add_f32 {v(U + r, 2)}, {v(U + r, 2)}, 1.0 op_sel_hi:[1,0]")
            for r in Q:
                e(f"v_pk_fma_f32 {v(U + r, 2)}, {v(U + r, 2)}, {v(U + r, 2)}, 1.0 op_sel_hi:[1,1,0]")
            for r in range(8):
                e(f"v_rcp_f32 {v(U + r)}, {v(U + r)}")
            for r in Q:
                e(f"v_pk_fma_f32 {v(U + r, 2)}, {v(U + r, 2)}, {v(vC12, 2)}, {v(vC12, 2)} op_sel:[0,0,1] op_sel_hi:[1,0,1]")
            for r in Q:
                e(f"v_pk_mul_f32 {v(E + r, 2)}, {v(E + r, 2)}, {v(U + r, 2)}")
            for r in Q:
                e(f"v_cvt_pk_bf16_f32 {v(po + r // 2)}, {v(E + r)}, {v(E + r + 1)}")
            off = f" offset:{1024 << self.fs}" if half else ""
            vv = vL0 if self.opt.get("x_nost") else self.vact
            e(f"buffer_store_dwordx4 {v(po, 4)}, {vv}, {SRD['ws']}, {sD} offen{off} {self.opt.get('staux', 'sc1')}", "actst")
        return S

    def phi(self, acc, dst, rs_fn):
        S = []
        e = lambda t, tag=None: S.append(I(t, tag))
        Tt, U = vT, vT + 8
        Q = (0, 2, 4, 6)
        for q in (0, 8):
            for r in Q:
                op, sel, selh = rs_fn(q + r)
                e(f"v_pk_fma_f32 {v(Tt + r, 2)}, {v(acc + q + r, 2)}, {op}, {v(vEL, 2)} op_sel:[0,{sel},0] op_sel_hi:[1,{selh},0]")
            for r in Q:
                e(f"v_pk_fma_f32 {v(U + r, 2)}, {v(Tt + r, 2)}, {v(vEL, 2)}, {v(vNE, 2)} op_sel:[0,1,0] op_sel_hi:[1,1,0]")
            for r in range(8):
                e(f"v_exp_f32_e64 {v(U + r)}, {v(U + r)} clamp")
            for r in range(8):
                e(f"v_max_f32 {v(Tt + r)}, {v(Tt + r)}, {v(vEL)}")
            for r in Q:
                e(f"v_pk_add_f32 {v(Tt + r, 2)}, {v(Tt + r, 2)}, {v(U + r, 2)}")
            for r in Q:
                e(f"v_cvt_pk_bf16_f32 {v(dst + (q + r) // 2)}, {v(Tt + r)}, {v(Tt + r + 1)}")
        return S

    def p2_reads(self, n, dst_fn, tag):
        rg, off = divmod(pc_addr(n) - SLOT0, 65536)
        return [I(f"ds_read_b64_tr_b16 {dst_fn(t, u)}, {v(vP2r[rg][t])} offset:{off + 1024 * u}", tag)
                for t in range(2) for u in range(2)]

    def xres_loads(self):
        return [[I(f"buffer_load_dwordx4 {v(vXr, 4)}, v0, {SRD['x']}, 0 offen", "xres")],
                [I(f"buffer_load_dwordx4 {v(vXr + 4, 4)}, v0, {SRD['x']}, s90 offen", "xres")]]

    def tail_prep(self):
        S = [W("vm", "xres")]
        for d in range(8):
            S += [I(f"v_lshlrev_b32 {v(96 + 2 * d)}, 16, {v(vXr + d)}"), I(f"v_and_b32 {v(97 + 2 * d)}, 0xffff0000, {v(vXr + d)}")]
        for t in range(2):
            for q in range(4):
                S.append(I(f"v_xor_b32 {v(112 + 4 * t + q)}, {128 * t + 32 * q}, v19"))
        S.append(I("v_xor_b32 v21, 16, v20"))
        return S

    def pass1(self, typ):
        o = dict(dict(bkB=[1, 2, 3, 4, 4, 5, 5, 6], s3B=[3, 31]), **self.opt)
        for key in ("bk", "s3"):
            if key + typ in o:
                o[key] = o[key + typ]
        S = [W("vm", "a0"), I("s_barrier")]
        self.stamp(S, "a0")
        S.append(Hold(True))
        r0, r1 = self.reads1(0)
        S += r0 + r1
        ex = Extras()
        ex.add(self.early_ex)
        spread = o.get("spread" + typ, o.get("spread", 0))
        for T in range(32):
            if T == 31:
                S += [W("lg"), I("s_barrier")]
                self.stamp(S, "p1end")
                G = []
                if o.get("bk") is None:
                    for b in range(o.get("bearly", 8), 8):
                        G += self.dma_b(b, typ)
                S.append(Rel(G + [self.dma_w2(n) for n in range(0 if o.get("bk") is None else 14, 22)]))
            elif T % 4 == 3:
                k = (T + 1) // 4
                S += [W("lg")]
                self.stamp(S, f"pre{k}")
                S += [W("vm", f"a{k}"), I("s_barrier")]
                self.stamp(S, f"a{k}")
                G = []
                if k <= 5 and not o.get("x_nodma"):
                    G += self.dma_a(k + 2, typ)
                if o.get("x_halfdma"):
                    G = G[:4]
                if k == o.get("statk", 5 if spread else 4):
                    assert not ex.q
                if typ == "A" and k == (4 if spread else 2):
                    G = [[W("vm", "zst"), I(f"s_mov_b32 {sG}, {WS_ZF}"),
                          I(f"buffer_store_dword {vTag}, v195, {SRD['ws']}, {sG} offen sc1")]] + G
                if k == o.get("statk", 5 if spread else 4):
                    G = [self.stat_loads(typ)] + G
                bk = o.get("bk")
                if bk is None:
                    if k == 5:
                        for b in range(min(3, o.get("bearly", 8))):
                            G += self.dma_b(b, typ)
                    if k == 6:
                        for b in range(3, o.get("bearly", 8)):
                            G += self.dma_b(b, typ)
                else:
                    assert not spread or min(bk) >= 4
                    for b in range(8):
                        if bk[b] == k:
                            G += self.dma_b(b, typ)
                    if k == 6:
                        G += [self.dma_w2(n) for n in range(0, 6)]
                    if k == 7:
                        G += [self.dma_w2(n) for n in range(6, 14)]
                if k == o.get("statk", 5 if spread else 4) + 1:
                    ex.add(self.stat_check(typ))
                if k == 6:
                    ex.add((self.setup_kv() if typ == "A" else []) + self.setup_p2a())
                if k == 7 and o.get("colpos", "a7") == "a7":
                    G.append(self.pf_w2("col")[1])
                S.append(Rel(G))
            big, sm = self.mfma1(T, typ)
            if o.get("x_nom16") and T != 30:
                sm = []
            dT = o.get("dotT", 32)
            dots = []
            if sm and T < dT:
                for d in range(4):
                    for g in range(2):
                        acc = v(vDs[g])
                        dots.append(I(f"v_dot2_f32_bf16 {acc}, {v(vWf[0][g] + d)}, {v(vNE + 1)}, {'0' if (T == 0 and d == 0) else acc}"))
                sm = []
            elif sm and T == dT + (dT & 1) and dT:
                sm = [I(m.t.rsplit(",", 1)[0] + ", 0") for m in sm]
            if T == 31:
                S += [big[0]] + self.cs_read(vCs[:2]) + [Slot(0), big[1], W("lg", "cs")] + self.aug_v(vCs[0], vWa[0]) + \
                    [big[2]] + self.aug_v(vCs[1], vWa[1]) + [big[3], Slot(0)]
                S += self.aug_m(vWa[0], [vAcc1(0, 0), vAcc1(0, 1)], typ == "A") + self.aug_m(vWa[1], [vAcc1(1, 0), vAcc1(1, 1)], typ == "A")
                continue
            r0, r1 = self.reads1(T + 1)
            if T == 30:
                fin = []
                if dT:
                    for g in range(2):
                        fin += [I(f"v_mov_b32 {v(vCs[g] + 1)}, {v(vDs[g])}")]
                    for g in range(2):
                        fin += [I(f"v_permlane32_swap_b32 {v(vCs[g] + 1)}, {v(vDs[g])}")]
                    for g in range(2):
                        if dots:
                            fin += [I(f"v_add_f32 {v(vCs[g])}, {v(vCs[g] + 1)}, {v(vDs[g])}")]
                        else:
                            fin += [I(f"v_add_f32 {v(vDs[g])}, {v(vCs[g] + 1)}, {v(vDs[g])}"), I(f"v_add_f32 {v(vCs[g])}, {v(vCs[g])}, {v(vDs[g])}")]
                S += [W("lg", f"r{T}c")] + sm + dots + [big[0]] + r0 + ex.take(2) + [big[1]] + r1 + [I("s_nop 0")] * bool(dots) + fin + \
                    [big[2]] + self.cs_write(vCs[:2]) + ex.take(3) + [big[3]] + ex.take(1000)
                continue
            busy = T < 27
            if o.get("x_pad") and T in range(*o.get("x_padr", (0, 32))):
                S += [I("s_nop 7")] * o["x_pad"]
            S += [W("lg", f"r{T}a"), big[0]] + r0 + ([Slot(0)] if T < 3 else [])
            n1, n3 = o.get("exn", (8, 10)) if (spread and T < 19) else ((3, 3) if busy else (5, 5))
            S += [W("lg", f"r{T}b"), big[1], Slot(0)] + ex.take(n1)
            S += sm[:1] + [W("lg", f"r{T}c"), big[2]] + r1 + ([Slot(0, True)] if (T >= 3 and not ((T & 1) == 0 and T in range(*o.get("s3", (0, 0))))) else [Slot(0)])
            S += [big[3], Slot(0)] + ex.take(n3) + sm[1:] + dots
        S += [Hold(False), Pace(o.get("pace2" + typ, o.get("pace2", 80)))]
        return S

    def pass2(self, typ, mid=None, extra=None):
        o = dict(self.opt)
        if "p2s2" + typ in o:
            o["p2s2"] = o["p2s2" + typ]
        bw = 4 if o.get("bswap", 0) else 0
        S = [W("vm", f"b{bw}s"), W("vm", "c0"), I("s_barrier"), Hold(True)]
        self.stamp(S, "w0")
        S += self.reads2(0) + self.reads2(1)
        wr = {k + 1: k for k in range(21)}
        ex = Extras()
        ex.add(extra or [])
        ex.add(self.setup_p2b())
        gap = o.get("gap2", 40)
        for T in range(32):
            if T in P2BAR and T < 31:
                S += [W("lg")]
                self.stamp(S, f"u{T}")
                S += [W("vm", f"b{min(7, (T + 2) // 4 + bw)}s"), W("vm", f"c{min(T + 2, 20)}"), I("s_barrier")]
                self.stamp(S, f"w{T}")
                S.append(Rel([self.dma_w2(n) for n in P2REL[T]]))
            if mid and T in mid:
                S.append(Rel([mid[T]], front=True))
            big, sm = self.mfma2(T)
            if T == 31:
                S += [W("lg"), I("s_barrier")]
                self.stamp(S, "p2end")
                S += [big[0]] + self.cs_read(vCs[2:]) + [Slot(0), big[1], W("lg", "cs")] + self.aug_v(vCs[2], vWa[2])
                S += self.aug_m(vWa[2], [vAcc2(0), vAcc2(1)], False)
                continue
            rd = self.reads2(T + 2) if T < 30 else self.cs_write(vCs[2:])
            wq = self.p2_reads(wr[T], lambda t, u: a(8 * wr[T] + 4 * t + 2 * u, 2), "wreg") if T in wr else []
            S += [W("lg", f"q{T}"), big[0]] + rd + (wq[:1] if wq else ex.take(2)) + [big[1], Slot(gap)] + (wq[1:] if wq else ex.take(3))
            if T == 29:
                S += [W("lg", "q30"), self.mfma2(30)[1]]
            elif T == 30:
                S += ex.take(1000)
            elif (T & 1) == 0:
                S += [sm] + ([Slot(0)] if (o.get("p2s2", 4) and T % o.get("p2s2", 4) == 0) else ex.take(1))
        S += [Hold(False), Pace(o.get("pace4" + typ, o.get("pace4", 80)))]
        return S

    def tail_groups(self):
        return ([] if self.opt.get("xfront", 1) else self.xres_loads()) + [self.dma_w2(n) for n in P2REL[31]]

    def act_ld(self, n):
        kind, T = ORDER[n]
        T = T if kind == "f" else 48 + T
        return [I(f"s_add_u32 {sG}, {sAct2}, {(T * 2048) << self.fs}"),
                I(f"buffer_load_dwordx4 {act_reg(n)}, {self.vact}, {SRD['ws']}, {sG} offen sc1", f"x{n}")]

    def early_act(self):
        S = [Hold(True)] + self.poll_check(sPB, vP16, vPoll, "bpoll", dual=True) + [Hold(False)]
        self.stamp(S, "actok")
        xf = self.opt.get("xfront", 1)
        S.append(Rel((self.xres_loads() if xf else []) + [self.act_ld(n) for n in range(self.opt.get("R", 12))], front=bool(xf)))
        return S

    def path_a(self):
        o = self.opt
        S = []
        e = lambda t, tag=None: S.append(I(t, tag))
        S += self.head("A")
        S += self.pass1("A")
        PK, PV = 128, 144
        C0, C1 = 64, 80
        S.append(W("lg"))
        for gg in range(2):
            S += self.phi(vAcc1(0, gg), PK + 8 * gg, lambda r, gg=gg: (v(vRsA[gg] + r, 2), 0, 1))
        for gg in range(2):
            acc = vAcc1(1, gg)
            for r in range(0, 16, 2):
                e(f"v_pk_mul_f32 {v(acc + r, 2)}, {v(acc + r, 2)}, {v(vRsA[gg] + r, 2)}")
            for r in range(0, 16, 2):
                e(f"v_cvt_pk_bf16_f32 {v(PV + 8 * gg + r // 2)}, {v(acc + r)}, {v(acc + r + 1)}")
        ONE = 96
        for r in range(4):
            e(f"v_mov_b32 {v(ONE + r)}, {v(vNE + 1)}")
        for f in range(4):
            e(f"v_mfma_f32_32x32x16_bf16 {v(C1, 16)}, {v(PK + 4 * f, 4)}, {v(ONE, 4)}, {'0' if f == 0 else v(C1, 16)}")
        for f in range(4):
            e(f"v_mfma_f32_32x32x16_bf16 {v(C0, 16)}, {v(PK + 4 * f, 4)}, {v(PV + 4 * f, 4)}, {'0' if f == 0 else v(C0, 16)}")
        M, Z = 100, 108
        for r in range(8):
            e(f"v_cndmask_b32 {v(Z + r)}, {v(C1 + 8 + r)}, {v(C1 + r)}, {sSET0}")
        for k in range(3):
            for r in range(4 >> k):
                e(f"v_cndmask_b32 {v(Z + r)}, {v(Z + 2 * r)}, {v(Z + 2 * r + 1)}, {sLB[k]}")
        e(f"ds_write_b32 v166, {v(Z)} offset:3072")
        SD, KP = 116, 120
        for r in range(8):
            e(f"v_cndmask_b32 {v(M + r)}, {v(C0 + 8 + r)}, {v(C0 + r)}, {sSET0}")
        for r in range(4):
            e(f"v_cndmask_b32 {v(SD + r)}, {v(M + 4 + r)}, {v(M + r)}, {sRHM}")
        e(f"ds_write_b128 v165, {v(SD, 4)} offset:{SC_KV}")
        for r in range(4):
            e(f"v_cndmask_b32 {v(KP + r)}, {v(M + r)}, {v(M + 4 + r)}, {sRHM}")
        e("v_xor_b32 v165, 1024, v165")
        S += [W("lg"), I("s_barrier"), Hold(True)]
        e(f"ds_read_b128 {v(124, 4)}, v165 offset:{SC_KV}")
        e(f"ds_read_b32 {v(Z + 1)}, {vStA} offset:3072")
        S += [Slot(0), W("lg")]
        for r in range(4):
            e(f"v_add_f32 {v(KP + r)}, {v(KP + r)}, {v(124 + r)}")
            e(f"buffer_atomic_add_f32 {v(KP + r)}, {vL4}, {SRD['ws']}, {sM1} offen offset:{256 * r}", "kvat")
        e(f"v_add_f32 {v(Z)}, {v(Z)}, {v(Z + 1)}")
        e(f"buffer_atomic_add_f32 {v(Z)}, {v(vZf)}, {SRD['ws']}, {sKV} offen offset:2048", "kvat")
        S.append(Hold(False))
        self.stamp(S, "epi1")
        KV, ZZ, PQ = 96, 104, 112
        kT = o.get("kvpollT", 24)
        za = [I(f"v_bfe_u32 v64, {vLane}, 4, 1"), I("v_xor_b32 v64, 1, v64"), I(f"v_lshrrev_b32 v66, 5, {vLane}"),
              I("v_lshlrev_b32 v64, 6, v64"), I("v_lshl_add_u32 v64, v66, 5, v64")]
        ld = [I(f"buffer_load_dword {v(KV + r)}, {vL4}, {SRD['ws']}, {sKV} offen offset:{256 * r} sc1", "kvld") for r in range(8)] + \
             [I(f"buffer_load_dwordx4 {v(ZZ + 4 * k, 4)}, v64, {SRD['ws']}, {sKV} offen offset:{2048 + 16 * k} sc1", "kvld") for k in range(2)]
        chk = self.poll_check(sPKV, v(vP32), "v65", "kvpoll")
        self.stamp(chk, "kvok")
        post = o.get("kvpost", 2)
        mid = {o.get("kvflagT", 7): self.flag("kvat", sFKV),
               (o.get("kvpollT", 26 + 2 * post) if post else kT): [self.poll_issue(sPKV, v(vP32), "v65", "kvpoll")]}
        if not post:
            mid[o.get("kvchkT", 29)] = chk + ld
        S += self.pass2("A", mid=mid, extra=za)
        if post == 1:
            S += [Hold(True)] + chk + ld + [Hold(False)]
        S.append(Rel(self.tail_groups()))
        KP_, ZP, F0, F1 = 64, 68, 72, 76
        fb = [W("vm", "kvld")]
        for r in range(4):
            fb.append(I(f"v_cvt_pk_bf16_f32 {v(KP_ + r)}, {v(KV + 2 * r)}, {v(KV + 2 * r + 1)}"))
            fb.append(I(f"v_cvt_pk_bf16_f32 {v(ZP + r)}, {v(ZZ + 2 * r)}, {v(ZZ + 2 * r + 1)}"))
        for r in range(4):
            fb.append(I(f"v_cndmask_b32 {v(F0 + r)}, {v(ZP + r)}, {v(KP_ + r)}, {sSET0}"))
            fb.append(I(f"v_cndmask_b32 {v(F1 + r)}, {v(KP_ + r)}, {v(ZP + r)}, {sSET0}"))
        if not post:
            S += fb
        e(f"s_lshl_b32 {sD}, {sP}, 1")
        e(f"s_add_u32 {sD}, {sD}, {sCH}")
        e(f"s_lshl_b32 {sD}, {sD}, {11 + self.fs}")
        e(f"s_add_u32 {sD}, {sD}, {sActB}")
        e(f"s_add_u32 {sD}, {sD}, {(96 * 1024) << self.fs}")
        D = [190, 206, 128, 144]

        def omf(gg):
            return [I(f"v_mfma_f32_32x32x16_bf16 {v(D[2 * gg + hd], 16)}, {v((F0, F1)[hd], 4)}, {v(PQ + 8 * gg + 4 * hd, 4)}, 0") for hd in range(2)]

        def ofin(gg):
            for hd in range(2):
                d = D[2 * gg + hd]
                num, den = (d, d + 8) if hd == 0 else (d + 8, d)
                po = 80 + 4 * (2 * gg + hd)
                e(f"v_add_f32 {v(den)}, {v(vEL)}, {v(den)}")
                e(f"v_rcp_f32 {v(den)}, {v(den)}")
                for r in range(0, 8, 2):
                    e(f"v_pk_mul_f32 {v(num + r, 2)}, {v(num + r, 2)}, {v(den, 2)} op_sel_hi:[1,0]")
                for r in range(0, 8, 2):
                    e(f"v_cvt_pk_bf16_f32 {v(po + r // 2)}, {v(num + r)}, {v(num + r + 1)}")
                off = f" offset:{1024 << self.fs}" if hd else ""
                e(f"buffer_store_dwordx4 {v(po, 4)}, {self.vact}, {SRD['ws']}, {sD} offen{off} {self.opt.get('staux', 'sc1')}", "ost")
        S += [self.poll_issue(sPB, vP16, vPoll, "bpoll", dual=True)] + self.phi(vAcc2(0), PQ, lambda r: (v(vRs[0], 2), 0, 0))
        if post == 2:
            S += [Hold(True)] + chk + ld + [Hold(False)]
        if post:
            S += self.early_act() + self.phi(vAcc2(1), PQ + 8, lambda r: (v(vRs[1], 2), 0, 0)) + fb + omf(0) + omf(1)
        else:
            S += omf(0) + self.early_act() + self.phi(vAcc2(1), PQ + 8, lambda r: (v(vRs[1], 2), 0, 0)) + omf(1)
        ofin(0)
        e(f"s_add_u32 {sD}, {sD}, {131072 << self.fs}")
        ofin(1)
        self.stamp(S, "epi2")
        S += self.phase2("ost", sFO)
        return S

    def path_b(self):
        o = self.opt
        S = []
        e = lambda t, tag=None: S.append(I(t, tag))
        S += self.head("B")
        S += self.pass1("B")
        for g in range(2):
            for gg in range(2):
                S += self.mish(vAcc1(g, gg), gg, (sT0, sT1)[g])
        self.stamp(S, "epi1")
        S += self.pass2("B", mid={o.get("actflagT", 12): self.flag("actst", sFAct, True)})
        S.append(Rel(self.tail_groups()))
        S += [self.poll_issue(sPB, vP16, vPoll, "bpoll", dual=True)] + self.mish(vAcc2(0), 0, sT2) + self.early_act() + self.mish(vAcc2(1), 1, sT2)
        self.stamp(S, "epi2")
        S += self.phase2("actst", sFAct2)
        return S

    def phase2(self, sttag, sflag):
        o = self.opt
        S = []
        e = lambda t, tag=None: S.append(I(t, tag))
        R = o.get("R", 12)
        S += [FlushTo(f"x{R - 1}") if o.get("xfront", 1) else Flush(), Hold(True)]
        ld = self.act_ld
        S += ld(R)[:1]
        tp = Extras()
        tp.add(self.tail_prep())
        frag = lambda n: (lambda t, u: v(32 + 8 * (n & 3) + 4 * t + 2 * u, 2))
        back = o.get("pollback", 8)
        dA, dO = o.get("late", (0, 0))
        issue = {}
        for m in range(R, 59):
            st = m - R
            if m >= NA:
                st = max(st, NA - R + dO + (m - NA) // 2)
            elif m >= NB:
                st = max(st, NB - R + dA + (m - NB) // 2)
            issue[m] = st
        at = lambda n: [m for m in range(R, 59) if issue[m] == n]
        for n in range(59):
            m = n + R
            if n == NREGW - 2 or n == 44:
                S += [W("vm", "c46" if n < 44 else "c58"), I("s_barrier")]
            if n == issue[NB] - back:
                S.append(self.poll_issue(sPA, vP16, vPoll, "apoll", dual=True))
            if n == max(issue[NA] - back, issue[NB] + 1):
                S.append(self.poll_issue(sPO, vP16, vPoll, "opoll", dual=True))
            self.stamp(S, f"s{n}")
            if n == issue[NB]:
                self.stamp(S, "apre")
                S += self.poll_check(sPA, vP16, vPoll, "apoll", dual=True)
                self.stamp(S, "aok")
            if n == issue[NA]:
                self.stamp(S, "opre")
                S += self.poll_check(sPO, vP16, vPoll, "opoll", dual=True)
                self.stamp(S, "ook")
            S.append(W("vm", f"x{n}"))
            if n == o.get("flagstep", self.flagstep[sttag]):
                S += self.flag(sttag, sflag, True)
            if n >= NREGW:
                S.append(W("lg", f"w{n}"))
            if n == 57 and o.get("tail2", 1):
                mm = lambda k, tt: I(f"v_mfma_f32_32x32x16_bf16 {v(vAo[tt], 16)}, {v(32 + 8 * (k & 3) + 4 * tt, 4)}, {act_reg(k)}, {v(vAo[tt], 16)}")
                S += [mm(57, 1), W("vm", "x58"), W("lg", "w58"), mm(58, 1), mm(57, 0), mm(58, 0)]
                break
            for t in range(2):
                wf = a(8 * n + 4 * t, 4) if n < NREGW else v(32 + 8 * (n & 3) + 4 * t, 4)
                tt = 1 - t
                wf = a(8 * n + 4 * tt, 4) if n < NREGW else v(32 + 8 * (n & 3) + 4 * tt, 4)
                acc = v(vAo[tt], 16)
                e(f"v_mfma_f32_32x32x16_bf16 {acc}, {wf}, {act_reg(n)}, {'0' if n == 0 else acc}")
                q = at(n)
                if t < len(q):
                    S += ld(q[t])[1:] + (ld(q[t] + 1)[:1] if q[t] < 58 else [])
                elif t == 1:
                    S.append(Slot(0))
                if 8 <= n < NREGW - 2:
                    S += tp.take(2)
                if NREGW - 2 <= n < 57:
                    S += self.p2_reads(n + 2, frag(n + 2), f"w{n + 2}")[2 * t:2 * t + 2]
            if n == issue[58] + 1:
                e(f"s_or_b32 {sA}, s2, {sW}")
                e(f"s_cmp_eq_u32 {sA}, 0")
                e(f"s_cselect_b32 {sA}, 0, {OOB}")
                e(f"v_or_b32 v16, {sA}, {vL0}")
                e(f"buffer_store_dword {vTag}, v16, {SRD['ws']}, 0 offen offset:{WS_E}")
        self.stamp(S, "gemm2")
        assert not tp.q
        for t in (1, 0):
            for q in range(4):
                e(f"ds_write_b128 {v(112 + 4 * t + q)}, {v(vAo[t] + 4 * q, 4)}")
        S += [W("lg"), I("s_barrier")]
        for g in range(2):
            for src in range(2):
                for ee in range(2):
                    e(f"ds_read_b128 {v(128 + 16 * g + 8 * src + 4 * ee, 4)}, v{20 + ee} offset:{2048 * g + 16384 * src}", f"f{g}")
        for g in range(2):
            S.append(W("lg", f"f{g}"))
            b = 128 + 16 * g
            for r in range(0, 8, 2):
                e(f"v_pk_add_f32 {v(b + r, 2)}, {v(b + r, 2)}, {v(b + 8 + r, 2)}")
            for r in range(0, 8, 2):
                e(f"v_pk_add_f32 {v(b + r, 2)}, {v(b + r, 2)}, {v(96 + 8 * g + r, 2)}")
            for r in range(0, 8, 2):
                e(f"v_cvt_pk_bf16_f32 {v(120 + 4 * g + r // 2)}, {v(b + r)}, {v(b + r + 1)}")
            e(f"buffer_store_dwordx4 {v(120 + 4 * g, 4)}, v0, {SRD['out']}, {'s90' if g else '0'} offen")
        if o.get("stamps"):
            S.append(W("vm"))
            self.stamp(S, "end")
            pr = o.get("probe")
            if o.get("xprobe"):
                lp = self.label("probe")
                e(f"s_getreg_b32 {sA}, hwreg(HW_REG_XCC_ID, 0, 4)")
                e(f"s_sub_u32 {sA}, {sA}, s2")
                e(f"s_and_b32 {sA}, {sA}, 7")
                if o["xprobe"] == 2:
                    e(f"s_sub_u32 {sA}, 7, {sA}")
                e(f"s_mul_i32 {sA}, {sA}, 500")
                e(f"v_readlane_b32 {sC}, v179, {1 + self.allnames.index('end')}")
                e(f"{lp}:")
                e("s_memrealtime s[98:99]")
                e("s_waitcnt lgkmcnt(0)")
                e(f"s_sub_u32 {sB}, s98, {sC}")
                e(f"s_cmp_lt_u32 {sB}, {sA}")
                e(f"s_cbranch_scc1 {lp}")
            if pr:
                lp = self.label("probe")
                e(f"v_readlane_b32 {sA}, v179, {1 + self.allnames.index(pr)}")
                e(f"v_readlane_b32 {sC}, v179, {1 + self.allnames.index('end')}")
                e(f"s_sub_u32 {sA}, {sA}, s100")
                e(f"s_mul_i32 {sA}, {sA}, {o.get('mult', 4)}")
                e(f"{lp}:")
                e("s_memrealtime s[98:99]")
                e("s_waitcnt lgkmcnt(0)")
                e(f"s_sub_u32 {sB}, s98, {sC}")
                e(f"s_cmp_lt_u32 {sB}, {sA}")
                e(f"s_cbranch_scc1 {lp}")
            e(f"s_lshl_b32 {sA}, s2, 2")
            e(f"s_add_u32 {sA}, {sA}, {sW}")
            e(f"s_lshl_b32 {sA}, {sA}, 7")
            e(f"s_add_u32 {sA}, {sA}, {WS_STAMP}")
            e(f"v_cmp_gt_u32 vcc, 32, {vLane}")
            e(f"v_mov_b32 v21, {OOB}")
            e(f"v_cndmask_b32 v21, v21, {vL4}, vcc")
            e(f"buffer_store_dword v179, v21, {SRD['ws']}, {sA} offen")
        e("s_endpgm")
        return S

    def build(self):
        self.flagstep = {"actst": 0, "ost": 0}
        for path, tag in ((self.path_a, "ost"), (self.path_b, "actst")):
            seq = [it for it in schedule(self.prologue() + path())[0] if isinstance(it, I)]
            last = max(n for n, it in enumerate(seq) if it.tag == tag)
            self.flagstep[tag] = sum(1 for it in seq[:last] if it.tag and it.tag[0] == "x" and it.tag[1:].isdigit())
        self.slow = []
        self.uid = 0
        pro = self.prologue()
        A = self.path_a()
        B = self.path_b()
        la, pka, na, ea = finalize2(pro + A)
        lb, pkb, nb, eb = finalize2(pro + B)
        npro = len(finalize2(pro)[0])
        assert la[:npro] == lb[:npro]
        body = la + ["L_typeB:"] + lb[npro:] + self.slow + ["L_end:", "s_endpgm", "L_codeend:"]
        self.info = dict(peakA=pka, peakB=pkb, nopsA=na, nopsB=nb, nA=len(la), nB=len(lb), est=(ea, eb), fs=self.flagstep)
        hdr = open("cdna_kernels/" + NAME + ".s.ref").read().split("; Override launch")[0]
        txt = hdr + """; One persistent launch, 256 workgroups (one per CU) of 4 waves; emitted by a generator script.
; Phase 1: workgroup (i, j) multiplies the raw rows 128 i .. 128 i + 127 of x with 192 weight columns (even j: k, v, q of
;   four heads; odd j: six 32-column tiles of w1). LayerNorm is folded in: row mean / sqrt(var + eps) are computed for 8 rows
;   per workgroup and exchanged through d_ws, the mean (and the bias) enters as one extra MFMA step against the column sums
;   of the weights, the scale is applied in the epilogues. phi(k)^T v and sum(phi(k)) are summed over the row blocks with
;   float atomics in d_ws; o and Mish(h) go to d_ws as bf16 MFMA fragments.
; Phase 2: workgroup computes a 64 x 64 tile of x + [Mish(h) | o] [w2 ; wo]; its weights are staged in LDS / registers early.
; Hand-offs: write-through stores, then a flag carrying a tag that is new in every launch (derived from a word of d_ws that
;   workgroup 0 advances); flags inside a row block have a plain twin that is only a shortcut when both sides share an L2.
"""
        txt += "; @launch grid=(256,1,1) block=(256,1,1) lds=163840\n"
        txt += f'.amdgcn_target "amdgcn-amd-amdhsa--gfx950"\n.text\n.globl {NAME}_kernel\n.p2align 8\n.type {NAME}_kernel,@function\n{NAME}_kernel:\n'
        txt += "\n".join(("" if l.endswith(":") else "    ") + l for l in body) + "\n"
        txt += f""".section .rodata,"a"
.p2align 6
.amdhsa_kernel {NAME}_kernel
  .amdhsa_next_free_vgpr 512
  .amdhsa_next_free_sgpr 102
  .amdhsa_accum_offset 256
  .amdhsa_group_segment_fixed_size 0
  .amdhsa_kernarg_size 80
  .amdhsa_user_sgpr_count 2
  .amdhsa_user_sgpr_kernarg_segment_ptr 1
  .amdhsa_system_sgpr_workgroup_id_x 1
  .amdhsa_float_denorm_mode_32 3
.end_amdhsa_kernel
"""
        return txt


def generate(**opt):
    global WS_ACT, WS_BYTES
    WS_ACT = opt.get("actoff", 0x100000)
    WS_BYTES = max(0x2000000, WS_ACT + 0x1100000)
    KARG["ws"] = (72, WS_BYTES)
    g = Gen(opt)
    t = g.build()
    return t, g


if __name__ == "__main__":
    t, g = generate()
    out = sys.argv[1] if len(sys.argv) > 1 else "cdna_kernels/" + NAME + ".s"
    open(out, "w").write(t)
    print(g.info, len(t))
```

```python
import struct
import sys
sys.path.insert(0, "dev")
from asmfw import I, W, Rel, Flush, Pace, Hold, Slot, FlushTo, finalize2, schedule

NAME = "parallel_sum__linear_attn_block__dense_activation_mish__prompt"

WS_E = 0x0
WS_STAT = 0x1000
WS_ZF = 0x8000
WS_KVF = 0x9000
WS_AF = 0xA000
WS_BF = 0xB000
WS_OF = 0xC000
WS_DUAL = 0x3000
WS_KV = 0x10000
WS_ACT = 0x100000
WS_STAMP = 0x1800000
WS_BYTES = 0x2000000
TAGC = 0x5BD1E995
OOB = 0x7FFF0000
SPIN = 100000

SLOT0 = 8192
SLOT = [8192, 40960, 73728]
BBASE = 98304
SC_RS = 0
SC_CS = 1024
SC_KV = 4096
RED = 106496


def bpos(b):
    return 0 if b == 7 else b + 1


def _pc_first(n):
    if n < 6:
        return 73728 + n * 4096
    if n < 14:
        return 8192 + (n - 6) * 4096
    if n < 21:
        return 40960 + (n - 14) * 4096
    return 69632


P2BAR = {2: (0, [0]), 6: (1, [1, 2, 3, 4]), 10: (2, [5, 6, 7, 8]), 14: (3, [9, 10, 11, 12]), 18: (4, [13, 14, 15, 16]),
         22: (5, [17, 18, 19, 20]), 26: (6, []), 31: (7, [])}
PC = [_pc_first(n) for n in range(22)]
P2REL = {}
for _T, (_b, _st) in P2BAR.items():
    _new = [BBASE + 8192 * bpos(_b), BBASE + 8192 * bpos(_b) + 4096] + [_pc_first(n) for n in _st]
    P2REL[_T] = list(range(len(PC), len(PC) + len(_new)))
    PC += _new
assert len(PC) == 59


def pc_addr(n):
    return PC[n]


NREGW = 21
ORDER = [("f", 6 * p + q) for p in range(7) for q in range(4)] + [("f", 42)] \
    + [("f", 6 * p + 4 + q) for p in range(7) for q in range(2)] + [("o", hp) for hp in range(16)]
NB, NA = 29, 43
RING = 22

sT0, sT1 = "s0", "s1"
sW = "s3"
SRD = dict(x="s[4:7]", qkv="s[8:11]", w1="s[12:15]", wo="s[16:19]", w2="s[20:23]", b1="s[24:27]", out="s[28:31]", ws="s[32:35]", ws2="s[24:27]")
KARG = dict(x=(0, 2048 * 1024), qkv=(8, 512 * 3072), w1=(32, 512 * 2752), ws=(72, WS_BYTES), wo=(16, 512 * 1024),
            w2=(48, 1376 * 1024), b1=(40, 2752), out=(56, 2048 * 1024))
sI, sJ, sP, sRH, sCH, sT, sR2, sC2, sSig = "s36", "s37", "s38", "s39", "s40", "s41", "s42", "s43", "s44"
sSET0 = "s[46:47]"
sRHM = "s[48:49]"
sW8K, sW2K, sW1K = "s50", "s51", "s52"
sT2, sWO = "s53", "s54"
sA, sB, sC, sD = "s55", "s56", "s57", "s58"
sActB = "s59"
sCnt, sE, sM0, sM1 = "s60", "s61", "s62", "s63"
sFKV, sFAct, sFO, sPKV, sPB, sPA, sPO, sKV, sAct2, sG, sZF, sFAct2 = [f"s{64 + k}" for k in range(12)]
sXk = ["s45"] + [f"s{76 + k}" for k in range(1, 8)]
sLB = ["s[84:85]", "s[86:87]", "s[88:89]"]
PFS = "s[92:95]"

vLane, vL16, vL4, vMH0, vL0 = "v1", "v2", "v3", "v4", "v5"
vW2s, vTag = "v6", "v7"
vXs = [8, 9, 10, 11]
vWs = [12, 13, 14, 15]
vBs = [16, 17]
vXrA = [18, 19, 20, 21]
vXrB = [22, 23, 24, 25]
vWrA = [26, 27]
vWrB = [28, 29]
vBr = [30, 31]
vSel = 32
vCs = [36, 40, 44]
vWf = [[48, 52], [56, 60]]
vAcc1 = lambda G, gg: 64 + 32 * G + 16 * gg
vAcc2 = lambda gg: 128 + 16 * gg
vSt = [160, 162]
vZf, vB2, vZero, vP32 = 164, 165, 166, 167
vXa = [168, 172]
vPFd, vPFa, vStA = "v176", "v177", "v178"
vRs = [180, 182]
vC12 = 184
vEL = 186
vNE = 188
vRsA = [190, 206]
vT = 222
vWa = [246, 250, 160]
vDs = [46, 47]
vCsW, vCsR = "v254", "v255"
vP2r = [[8, 9], [10, 11], [12, 13]]
vP16, vPoll = "v14", "v15"
vAo = [64, 80]
vXr = 246


def v(n, k=1):
    return f"v{n}" if k == 1 else f"v[{n}:{n + k - 1}]"


def a(n, k=1):
    return f"a{n}" if k == 1 else f"a[{n}:{n + k - 1}]"


def act_reg(n):
    return a(168 + 4 * (n % RING), 4)


def f2u(x):
    return "0x%08x" % struct.unpack("<I", struct.pack("<f", x))[0]


LOG2E = 1.4426950408889634
LN2 = 0.6931471805599453
_SCC_USE = ("s_cselect", "s_addc", "s_cbranch_scc")


class Extras:
    def __init__(self):
        self.q = []

    def add(self, items):
        self.q += [it for it in items if not isinstance(it, Hold)]

    def take(self, n):
        out = []
        while self.q:
            it = self.q[0]
            glue = not isinstance(it, I) or it.t.endswith(":") or it.t.startswith(_SCC_USE)
            if n <= 0 and not glue:
                break
            out.append(self.q.pop(0))
            if isinstance(it, I) and not it.t.endswith(":"):
                n -= 1
        return out


class Gen:
    allnames = ["a0", "p1end", "epi1", "p2end", "epi2", "actok", "s1", "apre", "aok", "opre", "ook", "gemm2", "end"]

    def __init__(self, opt):
        self.opt = opt
        if opt.get("stampset"):
            self.allnames = opt["stampset"].split(",")
        self.slow = []
        self.fs = 1 if opt.get("skip3", 0) else 0
        self.vact = v(vB2) if self.fs else vL16
        self.uid = 0

    def stamp(self, S, name):
        if not self.opt.get("stamps") or name not in self.allnames:
            return
        S.append(I(f"{'s_memtime' if self.opt.get('cyc') else 's_memrealtime'} s[98:99]"))
        S.append(W("lg"))
        S.append(I(f"v_writelane_b32 v179, s98, {1 + self.allnames.index(name)}"))
        if self.opt.get("both"):
            S.append(I("s_memtime s[98:99]"))
            S.append(W("lg"))
            S.append(I(f"v_writelane_b32 v179, s98, {17 + self.allnames.index(name)}"))

    def label(self, base):
        self.uid += 1
        return f"L_{base}_{self.uid}"

    def prologue(self):
        o = self.opt
        S = []
        e = lambda t, tag=None: S.append(I(t, tag))
        e(f"s_lshr_b32 {sA}, s2, 8")
        e("s_cbranch_scc1 L_end")
        if o.get("stamps"):
            e("s_memtime s[100:101]" if o.get("cyc") else "s_memrealtime s[100:101]")
        e("s_load_dwordx2 s[4:5], s[0:1], 0")
        e("s_load_dwordx16 s[64:79], s[0:1], 0")
        e("s_load_dwordx2 s[32:33], s[0:1], 72")
        e("v_lshrrev_b32 v6, 6, v0")
        e(f"v_and_b32 {vLane}, 63, v0")
        e(f"v_readfirstlane_b32 {sW}, v6")
        e("s_lshl_b32 s7, 1, 17")
        e("s_getpc_b64 s[92:93]")
        e("s_lshr_b32 s92, s92, 8")
        e("s_lshl_b32 s92, s92, 8")
        e(f"s_mov_b32 s94, L_codeend-{NAME}_kernel")
        e("s_mov_b32 s95, s7")
        e("v_lshrrev_b32 v238, 4, v0")
        e("v_lshlrev_b32 v238, 7, v238")
        e(f"s_lshr_b32 {sB}, s2, 3")
        e(f"s_lshl_b32 {sA}, {sB}, 11")
        e(f"buffer_load_dword {vPFd}, v238, {PFS}, {sA} offen")
        e("s_lshl_b32 s6, 1, 21")
        e(f"s_and_b32 {sA}, s2, 7")
        e(f"s_lshr_b32 {sC}, s2, 7")
        e(f"s_lshl1_add_u32 {sI}, {sA}, {sC}")
        if o.get("rot", "l0") == "l0":
            e(f"s_lshl2_add_u32 {sA}, {sC}, {sA}")
            e(f"s_and_b32 {sA}, {sA}, 7")
        e(f"s_lshl_b32 {sXk[0]}, {sA}, 7")
        e(f"v_lshrrev_b32 v240, 3, {vLane}")
        e(f"v_and_b32 v241, 7, {vLane}")
        e(f"s_lshl2_add_u32 {sC}, {sI}, {sW}")
        e(f"s_lshl_b32 {sC}, {sC}, 15")
        e(f"v_lshl_add_u32 v243, v240, 10, {sC}")
        e("v_lshrrev_b32 v244, 1, v240")
        e("v_xor_b32 v244, v244, v241")
        e(f"v_lshl_add_u32 {v(vXs[0])}, v244, 4, v243")
        e(f"v_xor_b32 {v(vXs[1])}, 64, {v(vXs[0])}")
        e(f"v_add_u32 {v(vXs[1])}, {7168}, {v(vXs[1])}")
        e(f"v_add_u32 {v(vXs[2])}, {2 * 7168}, {v(vXs[0])}")
        e(f"v_add_u32 {v(vXs[3])}, {2 * 7168}, {v(vXs[1])}")
        e(f"s_lshl_b32 {sW8K}, {sW}, 13")
        e(f"s_add_u32 m0, {sW8K}, {SLOT[0]}")
        S.append(W("lg"))
        for pp in range(4):
            off = f" offset:{1024 * pp}" if pp else ""
            e(f"buffer_load_dwordx4 {v(vXs[pp])}, {SRD['x']}, {sXk[0]} offen{off} lds", "a0")
        e(f"s_and_b32 {sJ}, {sB}, 15")
        e("L_first256:")
        e(f"v_lshlrev_b32 {vL16}, 4, {vLane}")
        e(f"s_lshl4_add_u32 {sM0}, {sI}, {sJ}")
        e(f"s_lshl2_add_u32 {sM0}, {sM0}, {sW}")
        e(f"s_lshl_b32 {sM1}, {sM0}, 11")
        if o.get("strow1", 1):
            e(f"buffer_load_dwordx4 v[224:227], {vL16}, {SRD['x']}, {sM1} offen", "strow")
            e(f"buffer_load_dwordx4 v[228:231], {vL16}, {SRD['x']}, {sM1} offen offset:1024", "strow")
        e(f"s_load_dword {sE}, s[32:33], {WS_E}")
        e(f"s_lshr_b32 {sP}, {sJ}, 1")
        e(f"v_lshl_add_u32 v239, v6, 4, v240")
        e("v_lshlrev_b32 v242, 1, v240")
        e("v_and_b32 v242, 4, v242")
        e("v_xor_b32 v242, v242, v241")
        e("v_lshlrev_b32 v242, 4, v242")
        e(f"s_mul_i32 {sT0}, {sP}, 6")
        e(f"s_add_u32 {sT1}, {sT0}, 2")
        e(f"s_cmp_eq_u32 {sP}, 7")
        e(f"s_cselect_b32 {sD}, {OOB >> 7}, {sT1}")
        e(f"s_lshl1_add_u32 {sA}, {sP}, 16")
        e(f"s_lshl1_add_u32 {sB}, {sP}, 32")
        e(f"s_movk_i32 {sC}, 3072")
        e(f"s_bitcmp1_b32 {sJ}, 0")
        e(f"s_cselect_b32 {sA}, {sT0}, {sA}")
        e(f"s_cselect_b32 {sB}, {sD}, {sB}")
        e(f"s_cselect_b32 {sC}, 2752, {sC}")
        e("s_cselect_b64 s[80:81], s[72:73], s[66:67]")
        e(f"s_lshl_b32 s82, {sC}, 9")
        e("s_mov_b32 s83, s7")
        e(f"v_mul_u32_u24 v238, {sC}, v239")
        e(f"s_lshl_b32 {sA}, {sA}, 6")
        e(f"s_lshl_b32 {sB}, {sB}, 6")
        e(f"s_lshl_b32 {sD}, {sC}, 3")
        e(f"s_sub_u32 {sD}, {sD}, 1024")
        e(f"v_add3_u32 {v(vWs[0])}, v238, v242, {sA}")
        e(f"v_add3_u32 {v(vWs[2])}, v238, v242, {sB}")
        e(f"s_lshr_b32 {sC}, {sC}, 1")
        e(f"s_mul_i32 {sWO}, {sXk[0]}, {sC}")
        e(f"s_add_u32 m0, {sW8K}, {SLOT[0] + 4096}")
        e(f"v_add_u32 {v(vWs[1])}, {sD}, {v(vWs[0])}")
        e(f"v_add_u32 {v(vWs[3])}, {sD}, {v(vWs[2])}")
        e(f"buffer_load_dwordx4 {v(vWs[0])}, s[80:83], {sWO} offen lds", "a0")
        e(f"buffer_load_dwordx4 {v(vWs[1])}, s[80:83], {sWO} offen offset:1024 lds", "a0")
        e(f"s_add_u32 m0, {sW8K}, {SLOT[0] + 6144}")
        e(f"s_lshl_b32 {sM0}, {sM0}, 1")
        e(f"buffer_load_dwordx4 {v(vWs[2])}, s[80:83], {sWO} offen lds", "a0")
        e(f"buffer_load_dwordx4 {v(vWs[3])}, s[80:83], {sWO} offen offset:1024 lds", "a0")
        if o.get("pf3"):
            n = o["pf3"]
            e(f"s_lshr_b32 {sA}, s2, 3")
            e(f"s_lshl2_add_u32 {sA}, {sA}, {sW}")
            e(f"s_mul_i32 {sA}, {sA}, {4 * 3072}")
            e(f"s_add_u32 {sA}, {sA}, {384 + 1024 * (3 - n)}")
            e(f"v_and_b32 v236, 3, {vLane}")
            e("v_mul_u32_u24 v236, 3072, v236")
            e(f"v_lshrrev_b32 v235, 2, {vLane}")
            e("v_lshl_add_u32 v236, v235, 10, v236")
            e(f"v_cmp_gt_u32 vcc, {n}, v235")
            e(f"v_mov_b32 v235, {OOB}")
            e("s_mov_b64 s[8:9], s[66:67]")
            e(f"s_mov_b32 s10, {KARG['qkv'][1]}")
            e("s_mov_b32 s11, 0x20000")
            e("v_cndmask_b32 v236, v235, v236, vcc")
            e(f"buffer_load_dword {vPFd}, v236, {SRD['qkv']}, {sA} offen")
        if not o.get("strow1", 1):
            e(f"buffer_load_dwordx4 v[224:227], {vL16}, {SRD['x']}, {sM1} offen", "strow")
            e(f"buffer_load_dwordx4 v[228:231], {vL16}, {SRD['x']}, {sM1} offen offset:1024", "strow")
        if o.get("stamps"):
            e("v_mov_b32 v179, 0")
            e("v_writelane_b32 v179, s100, 0")
        self.stamp(S, "karg")
        for nm, p in (("qkv", 66), ("wo", 68), ("w1", 72), ("b1", 74), ("w2", 76), ("out", 78)):
            b = int(SRD[nm][2:].split(":")[0])
            e(f"s_mov_b64 s[{b}:{b + 1}], s[{p}:{p + 1}]")
        for nm in ("qkv", "w1"):
            b = int(SRD[nm][2:].split(":")[0])
            e(f"s_mov_b32 s{b + 2}, {KARG[nm][1]}")
            e(f"s_mov_b32 s{b + 3}, 0x20000")
        S += self.setup_now()
        if o.get("pfpos", "a0") == "a0":
            st, ld = self.pf_w2("chip")
            S += st + ld
        if o.get("dual", 1) and o.get("touch", 1):
            S += [I(f"s_and_b32 {sA}, s2, 7"), I(f"s_lshl_b32 {sA}, {sA}, 2"), I(f"s_lshr_b32 {sB}, s2, 6"), I(f"s_add_u32 {sA}, {sA}, {sB}"),
                  I(f"s_lshl_b32 {sA}, {sA}, 7"), I(f"s_add_u32 {sA}, {sA}, {WS_AF + WS_DUAL}"), I(f"s_min_u32 {sB}, {sW}, 2"),
                  I(f"s_lshl_b32 {sB}, {sB}, 12"), I(f"s_add_u32 {sA}, {sA}, {sB}"), I(f"v_mov_b32 {vPFa}, 0"),
                  I(f"buffer_load_dword {vPFd}, {vPFa}, {SRD['ws']}, {sA} offen")]
        e(f"s_bitcmp1_b32 {sJ}, 0")
        e("s_cbranch_scc1 L_typeB")
        return S

    def dma_a(self, s, typ):
        srd, stride = (SRD["qkv"], 3072) if typ == "A" else (SRD["w1"], 2752)
        slot = SLOT[s % 3]
        tag = f"a{s}"
        G = []
        mul = I(f"s_mul_i32 {sWO}, {sXk[s]}, {stride // 2}")
        if s:
            for pp in range(4):
                off = f" offset:{1024 * pp}" if pp else ""
                ins = I(f"buffer_load_dwordx4 {v(vXs[pp])}, {SRD['x']}, {sXk[s]} offen{off} lds", tag)
                G.append(([I(f"s_add_u32 m0, {sW8K}, {slot}"), mul] if pp == 0 else []) + [ins])
        for g in range(2):
            G.append(([mul] if (s == 0 and g == 0) else []) + [I(f"s_add_u32 m0, {sW8K}, {slot + 4096 + 2048 * g}"),
                      I(f"buffer_load_dwordx4 {v(vWs[2 * g])}, {srd}, {sWO} offen lds", tag)])
            G.append([I(f"buffer_load_dwordx4 {v(vWs[2 * g + 1])}, {srd}, {sWO} offen offset:1024 lds", tag)])
        return G

    def dma_b(self, b, typ):
        srd, stride = (SRD["w1"], 2752) if typ == "B" else (SRD["qkv"], 3072)
        tag = f"b{b}s"
        if self.opt.get("bswap", 0):
            pre = [I(f"s_xor_b32 m0, s90, {8192 * bpos(b)}"), I(f"s_xor_b32 {sWO}, {sXk[b]}, s91"),
                   I(f"s_add_u32 m0, m0, {sW2K}"), I(f"s_mul_i32 {sWO}, {sWO}, {stride // 2}")]
        else:
            pre = [I(f"s_add_u32 m0, {sW2K}, {8192 * bpos(b)}"), I(f"s_mul_i32 {sWO}, {sXk[b]}, {stride // 2}")]
        return [pre + [I(f"buffer_load_dwordx4 {v(vBs[0])}, {srd}, {sWO} offen lds", tag)],
                [I(f"buffer_load_dwordx4 {v(vBs[1])}, {srd}, {sWO} offen offset:1024 lds", tag)]]

    def dma_w2(self, n):
        kind, T = ORDER[n]
        srd = SRD["w2"] if kind == "f" else SRD["wo"]
        return [I(f"s_add_u32 m0, {sW1K}, {pc_addr(n)}"), I(f"s_mov_b32 {sWO}, {T * 32768}"),
                I(f"buffer_load_dwordx4 {vW2s}, {srd}, {sWO} offen lds", f"c{n}")]

    def code_touch(self):
        lb = self.label("pc")
        S = [I("s_getpc_b64 s[84:85]"), I(f"{lb}:"), I(f"s_sub_u32 s84, s84, {lb}-{NAME}_kernel"), I("s_subb_u32 s85, s85, 0"),
             I(f"s_mov_b32 s86, L_codeend-{NAME}_kernel"), I("s_mov_b32 s87, 0x20000"),
             I(f"s_lshr_b32 {sA}, s2, 3"), I(f"s_lshl_b32 {sA}, {sA}, 2"), I(f"s_add_u32 {sA}, {sA}, {sW}"), I(f"s_lshl_b32 {sA}, {sA}, 9"),
             I(f"v_and_b32 v219, 3, {vLane}"), I(f"v_lshl_add_u32 v219, v219, 7, {sA}")]
        return S, [I(f"buffer_load_dword {vPFd}, v219, s[84:87], 0 offen")]

    def pf_w2(self, kind):
        again = kind == "chip2"
        if again:
            kind = "chip"
        sh = 7 if kind == "chip" else 10
        r0 = 84 if again else 92
        va = "v220" if kind == "chip" else vPFa
        S = []
        e = lambda t, tag=None: S.append(I(t, tag))
        idx = "s2" if (kind == "chip" and not again) else sA
        if again:
            e(f"s_add_u32 {sA}, s2, {self.opt.get('pf2d', 1)}")
            e(f"s_and_b32 {sA}, {sA}, 255")
        if kind == "col":
            e(f"s_lshr_b32 {sA}, s2, 3")
        e(f"s_mul_i32 {sB}, {idx}, 43")
        e(f"s_mul_i32 {sC}, {sW}, 22")
        e(f"s_add_u32 {sB}, {sB}, {sC}")
        e(f"s_lshl_b32 {sC}, {idx}, 4")
        e(f"s_cmp_ge_u32 {sW}, 2")
        e(f"s_cselect_b32 {sB}, {sC}, {sB}")
        e(f"s_cselect_b32 s{r0}, s16, s20")
        e(f"s_cselect_b32 s{r0 + 1}, s17, s21")
        e(f"s_lshl_b32 {sB}, {sB}, {sh}")
        if kind == "col":
            e(f"s_add_u32 {sB}, {sB}, 384")
        e(f"s_add_u32 s{r0}, s{r0}, {sB}")
        e(f"s_addc_u32 s{r0 + 1}, s{r0 + 1}, 0")
        e(f"s_lshl_b32 {sC}, {sW}, 3")
        e(f"s_lshr_b32 s{r0 + 2}, {0x00101516}, {sC}")
        e(f"s_and_b32 s{r0 + 2}, s{r0 + 2}, 0xff")
        e(f"s_lshl_b32 s{r0 + 2}, s{r0 + 2}, {sh}")
        if kind == "col":
            e(f"s_sub_u32 s{r0 + 2}, s{r0 + 2}, 512")
            e(f"s_max_i32 s{r0 + 2}, s{r0 + 2}, 0")
        e(f"s_mov_b32 s{r0 + 3}, 0x20000")
        e(f"v_lshlrev_b32 {va}, {sh}, {vLane}")
        return S, [I(f"buffer_load_dword {vPFd}, {va}, s[{r0}:{r0 + 3}], 0 offen")]

    def reads1(self, T):
        s, tau = divmod(T, 4)
        slot = s % 3
        xr = vXrA if slot < 2 else vXrB
        wr = vWrA if slot < 2 else vWrB
        so = 32768 if slot == 1 else 0
        buf = T & 1
        wrd = lambda g, u, tag: I(f"ds_read_b64_tr_b16 {v(vWf[buf][g] + 2 * u, 2)}, {v(wr[tau & 1])} offset:{so + (tau & 2) * 8192 + 2048 * g + 512 * u}", tag)
        xrd = lambda g, tag: I(f"ds_read_b128 {a(8 * T + 4 * g, 4)}, {v(xr[tau])} offset:{so + 8192 * g}", tag)
        return ([wrd(0, 0, f"r{T}a"), wrd(0, 1, f"r{T}a"), xrd(0, f"r{T}a")],
                [xrd(1, f"r{T}b"), wrd(1, 0, f"r{T}c"), wrd(1, 1, f"r{T}c")])

    def mfma1(self, T, typ):
        buf = T & 1
        big, sm = [], []
        for g in range(2):
            for gg in range(2):
                acc = v(vAcc1(g, gg), 16)
                xf, wf = a(8 * T + 4 * gg, 4), v(vWf[buf][g], 4)
                A_, B_ = (xf, wf) if typ == "A" else (wf, xf)
                big.append(I(f"v_mfma_f32_32x32x16_bf16 {acc}, {A_}, {B_}, {'0' if T == 0 else acc}"))
            if (T & 1) == 0:
                cs = v(vCs[g], 4)
                sm.append(I(f"v_mfma_f32_16x16x32_bf16 {cs}, {v(vSel, 4)}, {v(vWf[buf][g], 4)}, {'0' if T == 0 else cs}"))
        if self.opt.get("snake", 0):
            big[2], big[3] = big[3], big[2]
        return big, sm

    def reads2(self, T):
        b, tau = divmod(T, 4)
        return [I(f"ds_read_b64_tr_b16 {v(48 + 4 * (T & 3) + 2 * u, 2)}, {v(vBr[tau & 1])} offset:{8192 * bpos(b) + (tau & 2) * 2048 + 512 * u}", f"q{T}")
                for u in range(2)]

    def mfma2(self, T):
        wf = v(48 + 4 * (T & 3), 4)
        big = [I(f"v_mfma_f32_32x32x16_bf16 {v(vAcc2(gg), 16)}, {wf}, {a(8 * T + 4 * gg, 4)}, {'0' if T == 0 else v(vAcc2(gg), 16)}") for gg in range(2)]
        cs = v(vCs[2], 4)
        return big, I(f"v_mfma_f32_16x16x32_bf16 {cs}, {v(vSel, 4)}, {wf}, {'0' if T == 0 else cs}")

    def setup_now(self):
        S = []
        e = lambda t, tag=None: S.append(I(t, tag))
        for nm in ("ws", "w2", "wo"):
            b = int(SRD[nm][2:].split(":")[0])
            e(f"s_mov_b32 s{b + 2}, {KARG[nm][1]}")
            e(f"s_mov_b32 s{b + 3}, 0x20000")
        e(f"s_and_b32 {sRH}, {sW}, 1")
        e(f"s_lshr_b32 {sCH}, {sW}, 1")
        for k in range(1, 8):
            e(f"s_add_u32 {sXk[k]}, {sXk[k - 1]}, 128")
            e(f"s_and_b32 {sXk[k]}, {sXk[k]}, 0x380")
        e(f"v_and_b32 v232, 31, {vLane}")
        e(f"v_lshrrev_b32 v233, 5, {vLane}")
        e(f"v_lshlrev_b32 {v(vP32)}, 2, v232")
        e("v_bfe_u32 v234, v232, 1, 3")
        e("v_xor_b32 v234, v234, v233")
        e(f"s_lshl_b32 {sA}, {sRH}, 14")
        e(f"s_add_u32 {sA}, {sA}, {SLOT0}")
        e(f"v_lshl_add_u32 v235, v232, 7, {sA}")
        e(f"s_lshl_b32 {sB}, {sRH}, 1")
        e(f"v_xor_b32 v234, {sB}, v234")
        e(f"v_lshl_add_u32 {v(vXrA[0])}, v234, 4, v235")
        for tau in range(1, 4):
            e(f"v_xor_b32 {v(vXrA[tau])}, {32 * tau}, {v(vXrA[0])}")
        for tau in range(4):
            e(f"v_add_u32 {v(vXrB[tau])}, 65536, {v(vXrA[tau])}")
        e(f"v_bfe_u32 v234, {vLane}, 2, 2")
        e(f"v_bfe_u32 v238, {vLane}, 4, 1")
        e("v_lshlrev_b32 v238, 5, v238")
        e(f"v_and_b32 v236, 3, {vLane}")
        e("v_lshl_add_u32 v238, v236, 3, v238")
        e("v_lshrrev_b32 v236, 1, v234")
        e(f"v_xor_b32 v236, {sCH}, v236")
        e("v_lshl_add_u32 v236, v236, 6, v238")
        e("v_lshl_add_u32 v237, v233, 3, v234")
        e("v_lshl_add_u32 v237, v237, 7, v236")
        e(f"s_lshl_b32 {sA}, {sRH}, 13")
        e(f"s_add_u32 {sB}, {sA}, {SLOT0 + 4096}")
        e(f"s_sub_u32 {sC}, {SLOT0 + 4096 + 8192}, {sA}")
        e(f"v_add_u32 {v(vWrA[0])}, {sB}, v237")
        e(f"v_add_u32 {v(vWrA[1])}, {sC}, v237")
        e(f"v_add_u32 {v(vWrB[0])}, 65536, {v(vWrA[0])}")
        e(f"v_add_u32 {v(vWrB[1])}, 65536, {v(vWrA[1])}")
        e(f"v_lshrrev_b32 v234, 2, {vLane}")
        e(f"v_xor_b32 v234, v234, {vLane}")
        e("v_and_b32 v234, 4, v234")
        e("v_cmp_eq_u32 vcc, 0, v234")
        e(f"v_mov_b32 {v(vNE + 1)}, 0x3f803f80")
        for r in range(4):
            e(f"v_cndmask_b32 {v(vSel + r)}, 0, {v(vNE + 1)}, vcc")
        e(f"v_cmp_eq_u32 vcc, 63, {vLane}")
        e(f"v_mov_b32 v212, {OOB}")
        e(f"s_lshl_b32 {sM0}, {sM0}, 3")
        e(f"s_add_u32 {sM0}, {sM0}, {WS_STAT}")
        e("v_cndmask_b32 v212, v212, 0, vcc")
        return S

    def setup_later(self, typ):
        S = []
        e = lambda t, tag=None: S.append(I(t, tag))
        e(f"v_cmp_eq_u32 vcc, 0, {vLane}")
        e(f"v_mov_b32 v222, {OOB}")
        e(f"v_mov_b32 {v(vZero)}, 0")
        e(f"v_cndmask_b32 {vL0}, v222, 0, vcc")
        if typ == "A":
            e(f"s_sub_u32 {sB}, {sW}, 3")
            e(f"s_lshr_b32 {sC}, {sI}, 1")
            e(f"s_or_b32 {sB}, {sB}, {sC}")
            e(f"s_cmp_eq_u32 {sB}, 0")
            e(f"s_cselect_b32 {sB}, 0, {OOB}")
            e(f"s_lshl_b32 {sA}, {sP}, 1")
            e(f"s_add_u32 {sA}, {sA}, {sI}")
            e(f"s_lshl_b32 {sC}, {sA}, 12")
            e(f"s_add_u32 {sC}, {sC}, {sB}")
            e(f"v_add_u32 v194, {sC}, {vL16}")
            e(f"s_lshl_b32 {sC}, {sA}, 7")
            e(f"s_add_u32 {sC}, {sC}, {sB}")
            e(f"v_add_u32 v195, {sC}, {vL0}")
            e(f"v_min_u32 v195, {OOB}, v195")
            for r in range(4):
                e(f"v_mov_b32 v{196 + r}, 0")
            S.append(Rel([[I(f"s_mov_b32 {sG}, {WS_KV}")] +
                          [I(f"buffer_store_dwordx4 v[196:199], v194, {SRD['ws']}, {sG} offen offset:{1024 * k} sc1", "zst") for k in range(3)]]))
        e("s_mov_b32 s27, 0x20000")
        if typ == "B":
            e(f"s_mov_b32 s26, {KARG['b1'][1]}")
            e(f"v_lshrrev_b32 v221, 1, {v(vP32)}")
            e(f"s_add_u32 {sT2}, {sT0}, 4")
            S.append(Rel([[I(f"s_add_u32 {sG}, {st}, {sCH}"), I(f"s_lshl_b32 {sG}, {sG}, 6"),
                           I(f"buffer_load_ushort {v(d)}, v221, {SRD['b1']}, {sG} offen", "b1")]
                          for st, d in ((sT0, vWa[0] + 1), (sT1, vWa[1] + 1), (sT2, vB2))]))
        e(f"s_lshl_b32 {sW2K}, {sW}, 11")
        e(f"s_add_u32 {sW2K}, {sW2K}, {BBASE}")
        e(f"s_and_b32 s91, {sI}, 1")
        e("s_lshl_b32 s90, s91, 15")
        e("s_lshl_b32 s91, s91, 9")
        e(f"s_lshl_b32 {sW1K}, {sW}, 10")
        stride = 2752 if typ == "B" else 3072
        e(f"v_mul_u32_u24 v222, {stride}, v239")
        if typ == "A":
            e(f"s_lshl_b32 {sA}, {sP}, 7")
        else:
            e(f"s_lshl_b32 {sA}, {sT2}, 6")
            e(f"s_cmp_eq_u32 {sP}, 7")
            e(f"s_cselect_b32 {sA}, {OOB >> 1}, {sA}")
        e(f"v_add3_u32 {v(vBs[0])}, v222, v242, {sA}")
        e(f"v_add_u32 {v(vBs[1])}, {8 * stride - 1024}, {v(vBs[0])}")
        e(f"s_lshl_b32 {sA}, {sRH}, 11")
        e(f"s_add_u32 {sB}, {sA}, {BBASE}")
        e(f"s_sub_u32 {sC}, {BBASE + 2048}, {sA}")
        e(f"v_add_u32 {v(vBr[0])}, {sB}, v237")
        e(f"v_add_u32 {v(vBr[1])}, {sC}, v237")
        e(f"s_lshl_b32 {sA}, {sP}, 1")
        e(f"s_add_u32 {sA}, {sA}, {sCH}")
        e(f"s_lshl_b32 {sB}, {sI}, 1")
        e(f"s_add_u32 {sB}, {sB}, {sRH}")
        e(f"s_lshl_b32 {sM0}, {sB}, 9")
        e(f"s_add_u32 {sM0}, {sM0}, {WS_STAT}")
        e(f"v_lshlrev_b32 {vStA}, 1, {v(vP32)}")
        e(f"s_lshl_b32 {sC}, {sA}, 7")
        e(f"s_add_u32 {sZF}, {sC}, {WS_ZF}")
        S.append("STATREADY")
        e(f"s_add_u32 {sPKV}, {sC}, {WS_KVF}")
        e(f"s_lshl_b32 {sKV}, {sA}, 12")
        e(f"s_add_u32 {sKV}, {sKV}, {WS_KV}")
        e(f"s_lshl_b32 {sC}, {sB}, 2")
        e(f"s_add_u32 {sFKV}, {sPKV}, {sC}")
        e(f"s_lshl_b32 {sActB}, {sB}, {18 + self.fs}")
        e(f"s_add_u32 {sActB}, {sActB}, {WS_ACT}")
        e(f"s_lshl_b32 {sB}, {sB}, 5")
        e(f"s_add_u32 {sB}, {sB}, {sA}")
        e(f"s_lshl_b32 {sB}, {sB}, 2")
        e(f"s_add_u32 {sFAct}, {sB}, {WS_BF}")
        e(f"s_add_u32 {sFAct2}, {sB}, {WS_AF}")
        e(f"s_add_u32 {sFO}, {sB}, {WS_OF}")
        e(f"s_and_b32 {sR2}, s2, 7")
        e(f"s_lshl_b32 {sR2}, {sR2}, 2")
        e(f"s_lshr_b32 {sA}, s2, 6")
        e(f"s_add_u32 {sR2}, {sR2}, {sA}")
        e(f"s_lshr_b32 {sC2}, s2, 3")
        e(f"s_and_b32 {sC2}, {sC2}, 7")
        if self.opt.get("c2m", 0):
            e(f"s_and_b32 {sA}, {sA}, 1")
            e(f"s_xor_b32 {sC2}, {sC2}, {sA}")
        elif self.opt.get("c2x", 1):
            e(f"s_xor_b32 {sC2}, {sC2}, {self.opt.get('c2x', 1)}")
        e(f"s_lshl_b32 {sA}, {sW}, 3")
        e(f"v_add_lshl_u32 v222, {sA}, v240, 10")
        e(f"s_lshl_b32 {sA}, {sC2}, 7")
        e(f"v_add3_u32 {vW2s}, v222, v242, {sA}")
        e(f"v_cmp_gt_u32 vcc, 32, {vLane}")
        e(f"v_mov_b32 {v(vEL + 1)}, {f2u(LOG2E)}")
        e(f"v_lshlrev_b32 {vL4}, 2, {vLane}")
        e(f"v_cndmask_b32 {vMH0}, 0, -1, vcc")
        e(f"v_mov_b32 {v(vEL)}, {f2u(1e-6)}")
        e(f"v_mov_b32 {v(vNE)}, {f2u(-1e-6 * LOG2E)}")
        e(f"v_mov_b32 {v(vC12)}, {f2u(-2 * LN2)}")
        e(f"v_mov_b32 {v(vC12 + 1)}, {f2u(LN2)}")
        for r in (vXa[0] + 2, vXa[0] + 3, vXa[1] + 2, vXa[1] + 3, vWa[0] + 2, vWa[0] + 3, vWa[1] + 2, vWa[1] + 3):
            e(f"v_mov_b32 {v(r)}, 0")
        if typ == "A":
            e(f"v_mov_b32 {v(vWa[0] + 1)}, 0")
            e(f"v_mov_b32 {v(vWa[1] + 1)}, 0")
        e(f"v_and_b32 v222, 16, {vLane}")
        e(f"v_cmp_eq_u32 {sSET0}, 0, v222")
        e(f"s_lshl_b32 {sA}, {sW}, 9")
        e(f"v_add_u32 {vCsW}, {sA}, {vL4}")
        e(f"v_xor_b32 {vCsR}, 512, {vCsW}")
        if self.opt.get("colpos", "a7") == "a7":
            S += self.pf_w2("col")[0]
        return S

    def setup_p2a(self):
        S = []
        e = lambda t, tag=None: S.append(I(t, tag))
        e(f"v_bfe_u32 v224, {vLane}, 2, 2")
        e(f"v_lshrrev_b32 v226, 5, {vLane}")
        e("v_lshl_add_u32 v225, v226, 2, v224")
        e("v_lshlrev_b32 v225, 7, v225")
        e(f"v_bfe_u32 v226, {vLane}, 4, 1")
        e("v_lshl_add_u32 v225, v226, 5, v225")
        e(f"v_and_b32 v226, 3, {vLane}")
        e("v_lshl_add_u32 v225, v226, 3, v225")
        e(f"s_lshl_b32 {sA}, {sCH}, 11")
        e(f"s_add_u32 {sA}, {sA}, {SLOT0}")
        e("v_lshrrev_b32 v224, 1, v224")
        e(f"v_xor_b32 v224, {sCH}, v224")
        e("v_lshl_add_u32 v225, v224, 6, v225")
        e(f"v_add_u32 {v(vP2r[0][0])}, {sA}, v225")
        e(f"v_xor_b32 {v(vP2r[0][1])}, 64, {v(vP2r[0][0])}")
        for rg in (1, 2):
            for t in range(2):
                e(f"v_add_u32 {v(vP2r[rg][t])}, {65536 * rg}, {v(vP2r[0][t])}")
        if self.fs:
            assert self.opt.get("map", "r") == "r"
            e(f"s_and_b32 {sA}, {sI}, 7")
            e(f"s_cmp_eq_u32 {sA}, 3")
            e(f"s_cselect_b32 {sA}, 5, {sA}")
            e(f"s_lshl_b32 {sA}, {sA}, 7")
            e(f"s_add_u32 {sA}, {sA}, {1024 - 384}")
            e(f"v_lshrrev_b32 v224, 3, {vLane}")
            e("v_cmp_eq_u32 vcc, 3, v224")
            e(f"v_add_u32 v225, {sA}, {vL16}")
            e(f"v_cndmask_b32 {self.vact}, {vL16}, v225, vcc")
        return S

    def setup_kv(self):
        S = []
        e = lambda t, tag=None: S.append(I(t, tag))
        e(f"v_and_b32 v222, 19, {vLane}")
        e(f"v_bfe_u32 v223, {vLane}, 2, 1")
        e("v_lshl_add_u32 v222, v223, 3, v222")
        e(f"v_bfe_u32 v223, {vLane}, 3, 1")
        e("v_lshl_add_u32 v222, v223, 2, v222")
        e("v_lshlrev_b32 v222, 2, v222")
        e(f"v_lshrrev_b32 v223, 4, {vLane}")
        e(f"v_cmp_ne_u32 vcc, {sRH}, v223")
        e(f"v_mov_b32 v223, {OOB}")
        e(f"v_cndmask_b32 {v(vZf)}, v222, v223, vcc")
        e(f"s_cmp_eq_u32 {sRH}, 1")
        e(f"s_cselect_b64 {sRHM}, -1, 0")
        e(f"s_lshl_b32 {sA}, {sW}, 10")
        e(f"v_add_u32 v165, {sA}, {vL16}")
        e(f"s_lshl_b32 {sA}, {sW}, 8")
        e(f"v_add_u32 v166, {sA}, {vL4}")
        e(f"v_xor_b32 {vStA}, 256, v166")
        e(f"s_lshl_b32 {sB}, {sRH}, 10")
        e(f"s_add_u32 {sM1}, {sB}, {sKV}")
        return S

    def setup_p2b(self):
        S = []
        e = lambda t, tag=None: S.append(I(t, tag))
        e(f"v_lshrrev_b32 v20, 5, {vLane}")
        e(f"s_lshl_b32 {sA}, {sR2}, 7")
        e(f"s_add_u32 {sPB}, {sA}, {WS_BF}")
        e(f"s_add_u32 {sPA}, {sA}, {WS_AF}")
        e(f"s_add_u32 {sPO}, {sA}, {WS_OF}")
        e(f"s_lshl_b32 {sA}, {sR2}, 1")
        e(f"s_add_u32 {sA}, {sA}, {sRH}")
        e(f"s_lshl_b32 {sB}, {sA}, 7")
        e(f"s_add_u32 {sB}, {sB}, {sCH}")
        e(f"s_lshl_b32 {sB}, {sB}, {10 + self.fs}")
        e(f"s_add_u32 {sAct2}, {sB}, {WS_ACT}")
        e(f"s_lshl1_add_u32 {sA}, {sA}, {sCH}")
        e(f"s_lshl_b32 {sA}, {sA}, 14")
        e(f"s_lshl_b32 {sB}, {sC2}, 7")
        e(f"s_add_u32 {sA}, {sA}, {sB}")
        e(f"v_lshrrev_b32 v21, 3, {vLane}")
        e(f"v_and_b32 v22, 7, {vLane}")
        e(f"v_lshl_add_u32 v0, v22, 4, {sA}")
        e("v_lshl_add_u32 v0, v21, 10, v0")
        e("s_movk_i32 s90, 8192")
        e(f"s_mov_b32 s30, {KARG['out'][1]}")
        e("s_mov_b32 s31, 0x20000")
        e(f"v_and_b32 {vP16}, 60, {v(vP32)}")
        e(f"v_bfe_u32 v23, {v(vP32)}, 2, 3")
        e("v_xor_b32 v23, v23, v20")
        e(f"s_lshl_b32 {sA}, {sW}, 13")
        e(f"s_lshl_b32 {sB}, {sCH}, 7")
        e(f"s_add_u32 {sA}, {sA}, {sB}")
        e(f"s_add_u32 {sA}, {sA}, {RED}")
        e(f"v_lshl_add_u32 v23, v23, 4, {sA}")
        e(f"v_lshl_add_u32 v19, {v(vP32)}, 6, v23")
        e("v_lshlrev_b32 v22, 1, v22")
        e("v_xor_b32 v22, v22, v21")
        e(f"s_lshl_b32 {sA}, {sRH}, 13")
        e(f"s_lshl_b32 {sB}, {sCH}, 12")
        e(f"s_add_u32 {sA}, {sA}, {sB}")
        e(f"s_add_u32 {sA}, {sA}, {RED}")
        e(f"v_lshl_add_u32 v22, v22, 4, {sA}")
        e("v_lshl_add_u32 v20, v21, 8, v22")
        return S

    def stats_produce(self):
        S = []
        e = lambda t, tag=None: S.append(I(t, tag))
        base = [224, 228]
        acc = [200, 201, 202, 203]
        for k in range(2):
            e(f"v_dot2_f32_bf16 {v(acc[k])}, {v(base[k])}, {v(vNE + 1)}, 0")
            e(f"v_dot2_f32_bf16 {v(acc[2 + k])}, {v(base[k])}, {v(base[k])}, 0")
        for d in range(1, 4):
            for k in range(2):
                e(f"v_dot2_f32_bf16 {v(acc[k])}, {v(base[k] + d)}, {v(vNE + 1)}, {v(acc[k])}")
                e(f"v_dot2_f32_bf16 {v(acc[2 + k])}, {v(base[k] + d)}, {v(base[k] + d)}, {v(acc[2 + k])}")
        e("s_nop 2")
        for m in ("row_ror:8 row_mask:0xf", "row_ror:4 row_mask:0xf", "row_ror:2 row_mask:0xf", "row_ror:1 row_mask:0xf",
                  "row_bcast:15 row_mask:0xa", "row_bcast:31 row_mask:0xc"):
            for k in range(4):
                e(f"v_add_f32_dpp {v(acc[k])}, {v(acc[k])}, {v(acc[k])} {m} bank_mask:0xf")
        for k in range(4):
            e(f"v_mul_f32 {v(acc[k])}, {f2u(1.0 / 512)}, {v(acc[k])}")
        for k in range(2):
            e(f"v_fma_f32 {v(acc[2 + k])}, -{v(acc[k])}, {v(acc[k])}, {v(acc[2 + k])}")
        for k in range(2):
            e(f"v_max_f32 {v(acc[2 + k])}, 0, {v(acc[2 + k])}")
        e("v_cvt_pk_bf16_f32 v204, v202, v203")
        e("v_lshlrev_b32 v205, 16, v204")
        e("v_and_b32 v206, 0xffff0000, v204")
        e(f"v_add_f32 v205, {f2u(1e-5)}, v205")
        e(f"v_add_f32 v206, {f2u(1e-5)}, v206")
        e("v_cvt_pk_bf16_f32 v204, v205, v206")
        e("v_lshlrev_b32 v205, 16, v204")
        e("v_and_b32 v206, 0xffff0000, v204")
        e("v_sqrt_f32 v205, v205")
        e("v_sqrt_f32 v206, v206")
        S.append(W("lg"))
        e(f"s_add_u32 {sT}, {sE}, {TAGC}")
        e(f"v_mov_b32 {vTag}, {sT}")
        e(f"v_mov_b32 v209, {sT}")
        e(f"v_mov_b32 v211, {sT}")
        e("v_cvt_pk_bf16_f32 v208, v200, v205")
        e("v_cvt_pk_bf16_f32 v210, v201, v206")
        e(f"buffer_store_dwordx4 v[208:211], v212, {SRD['ws']}, {sM1} offen sc1")
        return S

    def head(self, typ):
        o = self.opt
        S = [Hold(True)]
        S += [Rel(self.dma_a(1, typ)), Flush(o.get("early1", 2))]
        later = [x for x in self.setup_later(typ) if x != "STATREADY"]
        S += [I(f"s_mov_b32 {sM1}, {sM0}")]
        self.early_ex = []
        if o.get("spread" + typ, o.get("spread", 0)):
            self.early_ex = [W("vm", "strow")] + [x for x in self.stats_produce() if not isinstance(x, W)] + later
            S += [W("lg"), Flush(), Rel(self.dma_a(2, typ))]
            return S
        late_groups = [g for x in later if isinstance(x, Rel) for g in x.groups]
        S += [x for x in later if not isinstance(x, Rel)]
        self.stamp(S, "setup")
        S.append(W("vm", "strow"))
        self.stamp(S, "strow")
        S += [Hold(False), Pace(o.get("pace0", 40))] + self.stats_produce()
        self.stamp(S, "stats")
        S.append(Flush())
        self.stamp(S, "prea0")
        S.append(Rel(self.dma_a(2, typ) + late_groups))
        return S

    def stat_loads(self, typ):
        G = [I(f"buffer_load_dwordx2 {v(vSt[0], 2)}, {vStA}, {SRD['ws']}, {sM0} offen sc1", "stat"),
             I(f"buffer_load_dwordx2 {v(vSt[1], 2)}, {vStA}, {SRD['ws']}, {sM0} offen offset:256 sc1", "stat")]
        if typ == "A":
            G.append(I(f"buffer_load_dword {v(vZf)}, {v(vZero)}, {SRD['ws']}, {sZF} offen sc1", "stat"))
        return G

    def stat_check(self, typ):
        S = []
        e = lambda t, tag=None: S.append(I(t, tag))
        slow, back = self.label("slow"), self.label("back")
        cmp = [f"v_xor_b32 v222, {sT}, {v(vSt[0] + 1)}", f"v_xor_b32 v223, {sT}, {v(vSt[1] + 1)}", "v_or_b32 v222, v222, v223"]
        if typ == "A":
            cmp += [f"v_xor_b32 v223, {sT}, {v(vZf)}", "v_or_b32 v222, v222, v223"]
        cmp.append("v_cmp_ne_u32 vcc, 0, v222")
        S.append(W("vm", "stat"))
        for t in cmp:
            e(t)
        e(f"s_cbranch_vccnz {slow}")
        e(f"{back}:")
        self.slow += [f"{slow}:", f"s_mov_b32 {sCnt}, {SPIN}", f"{slow}_l:"] + self.backoff() + \
            [it.t for it in self.stat_loads(typ)] + ["s_waitcnt vmcnt(0)"] + cmp + \
            [f"s_cbranch_vccz {back}", f"s_sub_u32 {sCnt}, {sCnt}, 1", f"s_cbranch_scc0 {slow}_l", f"s_branch {back}"]
        for gg in range(2):
            g = v(vSt[gg])
            e(f"v_and_b32 v222, 0xffff, {g}")
            e(f"v_and_b32 v223, 0xffff0000, {g}")
            e("v_xor_b32 v222, 0x8000, v222")
            e(f"v_rcp_f32 {v(vRs[gg])}, v223")
            e("v_lshl_or_b32 v222, v222, 16, v222")
            e(f"v_lshrrev_b32 v223, 16, {g}")
            e(f"v_and_b32 {v(vXa[gg])}, {vMH0}, v222")
            e(f"v_and_b32 {v(vXa[gg] + 1)}, {vMH0}, v223")
            e(f"v_mul_f32 {v(vRs[gg] + 1)}, {v(vEL + 1)}, {v(vRs[gg])}")
        if typ == "A":
            e(f"s_lshl_b32 {sA}, {sW}, 8")
            e(f"v_add_u32 v222, {sA}, {v(vP32)}")
            e(f"v_lshrrev_b32 v223, 5, {vLane}")
            e(f"ds_write_b32 v222, {v(vRs[0])} offset:{SC_RS}")
            e(f"ds_write_b32 v222, {v(vRs[1])} offset:{SC_RS + 128}")
            e(f"v_lshl_add_u32 v223, v223, 4, {sA}")
            for gg in range(2):
                for jj in range(4):
                    e(f"ds_read_b128 {v(vRsA[gg] + 4 * jj, 4)}, v223 offset:{SC_RS + 128 * gg + 32 * jj}", "rs")
        S.append(W("vm", "b1"))
        e(f"s_add_u32 s24, s32, {WS_DUAL}")
        e("s_addc_u32 s25, s33, 0")
        e(f"s_mov_b32 s26, {WS_BYTES - WS_DUAL}")
        e(f"v_mov_b32 {v(vWa[2] + 1)}, {v(vB2) if typ == 'B' else 0}")
        e(f"v_mov_b32 {v(vWa[2] + 2)}, 0")
        e(f"v_mov_b32 {v(vWa[2] + 3)}, 0")
        return S

    def backoff(self):
        return [f"s_sleep {self.opt['sleep']}"] if self.opt.get("sleep") else []

    def poll_issue(self, line_s, vaddr, reg, tag, dual=False):
        off = f" offset:{0}" if not dual else ""
        if dual and self.opt.get("dual", 1):
            return I(f"buffer_load_dword {reg}, {vaddr}, {SRD['ws2']}, {line_s} offen sc1", tag)
        return I(f"buffer_load_dword {reg}, {vaddr}, {SRD['ws']}, {line_s} offen sc1", tag)

    def poll_check(self, line_s, vaddr, reg, tag, prelude=(), dual=False):
        slow, back = self.label("slow"), self.label("back")
        L = [f"{slow}:"] + list(prelude) + [f"s_mov_b32 {sCnt}, {SPIN}", f"{slow}_l:"] + self.backoff()
        one = lambda srd: [f"buffer_load_dword {reg}, {vaddr}, {srd}, {line_s} offen sc1", "s_waitcnt vmcnt(0)",
                           f"v_cmp_ne_u32 vcc, {sT}, {reg}", f"s_cbranch_vccz {back}"]
        if dual and self.opt.get("dual", 1):
            L += one(SRD["ws2"]) + [f"s_sub_u32 {sCnt}, {sCnt}, 1", f"s_and_b32 {sM1}, {sCnt}, 7", f"s_cbranch_scc1 {slow}_l"]
        L += one(SRD["ws"]) + [f"s_sub_u32 {sCnt}, {sCnt}, 1", f"s_cbranch_scc0 {slow}_l", f"s_branch {back}"]
        self.slow += L
        return [W("vm", tag), I(f"v_cmp_ne_u32 vcc, {sT}, {reg}"), I(f"s_cbranch_vccnz {slow}"), I(f"{back}:")]

    def flag(self, tag, sreg, dual=False):
        S = [W("vm", tag)]
        if dual and self.opt.get("dual", 1):
            S.append(I(f"buffer_store_dword {vTag}, {vL0}, {SRD['ws2']}, {sreg} offen"))
        return S + [I(f"buffer_store_dword {vTag}, {vL0}, {SRD['ws']}, {sreg} offen sc1")]

    def cs_write(self, regs):
        return [I(f"ds_write_b32 {vCsW}, {v(r)} offset:{SC_CS + 256 * k}") for k, r in enumerate(regs)]

    def cs_read(self, regs):
        return [I(f"ds_read_b32 {v(r + 1)}, {vCsR} offset:{SC_CS + 256 * k}", "cs") for k, r in enumerate(regs)]

    def aug_v(self, cs, wa):
        return [I(f"v_add_f32 {v(cs)}, {v(cs)}, {v(cs + 1)}"), I(f"v_cvt_pk_bf16_f32 {v(cs + 1)}, {v(cs)}, {v(cs)}"),
                I(f"v_and_b32 {v(cs + 1)}, 0xffff0000, {v(cs + 1)}"), I(f"v_sub_f32 {v(cs + 2)}, {v(cs)}, {v(cs + 1)}"),
                I(f"v_cvt_pk_bf16_f32 {v(wa)}, {v(cs + 1)}, {v(cs + 2)}")]

    def aug_m(self, wa, accs, normal):
        S = []
        for gg, acc in enumerate(accs):
            A_, B_ = (v(vXa[gg], 4), v(wa, 4)) if normal else (v(wa, 4), v(vXa[gg], 4))
            S.append(I(f"v_mfma_f32_32x32x16_bf16 {v(acc, 16)}, {A_}, {B_}, {v(acc, 16)}"))
        return S

    def mish(self, acc, gg, st):
        S = []
        e = lambda t, tag=None: S.append(I(t, tag))
        E, U, P = vT, vT + 8, vT + 16
        e(f"s_add_u32 {sD}, {st}, {sCH}")
        e(f"s_lshl_b32 {sD}, {sD}, {11 + self.fs}")
        e(f"s_add_u32 {sD}, {sD}, {sActB}")
        if gg:
            e(f"s_add_u32 {sD}, {sD}, {131072 << self.fs}")
        for half in range(2):
            b = acc + 8 * half
            po = P + 4 * half
            Q = (0, 2, 4, 6)
            for r in Q:
                e(f"v_pk_mul_f32 {v(E + r, 2)}, {v(b + r, 2)}, {v(vRs[gg], 2)} op_sel:[0,1] op_sel_hi:[1,1]")
            for r in range(8):
                e(f"v_exp_f32 {v(U + r)}, {v(E + r)}")
            for r in Q:
                e(f"v_pk_add_f32 {v(U + r, 2)}, {v(U + r, 2)}, 1.0 op_sel_hi:[1,0]")
            for r in Q:
                e(f"v_pk_fma_f32 {v(U + r, 2)}, {v(U + r, 2)}, {v(U + r, 2)}, 1.0 op_sel_hi:[1,1,0]")
            for r in range(8):
                e(f"v_rcp_f32 {v(U + r)}, {v(U + r)}")
            for r in Q:
                e(f"v_pk_fma_f32 {v(U + r, 2)}, {v(U + r, 2)}, {v(vC12, 2)}, {v(vC12, 2)} op_sel:[0,0,1] op_sel_hi:[1,0,1]")
            for r in Q:
                e(f"v_pk_mul_f32 {v(E + r, 2)}, {v(E + r, 2)}, {v(U + r, 2)}")
            for r in Q:
                e(f"v_cvt_pk_bf16_f32 {v(po + r // 2)}, {v(E + r)}, {v(E + r + 1)}")
            off = f" offset:{1024 << self.fs}" if half else ""
            vv = vL0 if self.opt.get("x_nost") else self.vact
            e(f"buffer_store_dwordx4 {v(po, 4)}, {vv}, {SRD['ws']}, {sD} offen{off} {self.opt.get('staux', 'sc1')}", "actst")
        return S

    def phi(self, acc, dst, rs_fn):
        S = []
        e = lambda t, tag=None: S.append(I(t, tag))
        Tt, U = vT, vT + 8
        Q = (0, 2, 4, 6)
        for q in (0, 8):
            for r in Q:
                op, sel, selh = rs_fn(q + r)
                e(f"v_pk_fma_f32 {v(Tt + r, 2)}, {v(acc + q + r, 2)}, {op}, {v(vEL, 2)} op_sel:[0,{sel},0] op_sel_hi:[1,{selh},0]")
            for r in Q:
                e(f"v_pk_fma_f32 {v(U + r, 2)}, {v(Tt + r, 2)}, {v(vEL, 2)}, {v(vNE, 2)} op_sel:[0,1,0] op_sel_hi:[1,1,0]")
            for r in range(8):
                e(f"v_exp_f32_e64 {v(U + r)}, {v(U + r)} clamp")
            for r in range(8):
                e(f"v_max_f32 {v(Tt + r)}, {v(Tt + r)}, {v(vEL)}")
            for r in Q:
                e(f"v_pk_add_f32 {v(Tt + r, 2)}, {v(Tt + r, 2)}, {v(U + r, 2)}")
            for r in Q:
                e(f"v_cvt_pk_bf16_f32 {v(dst + (q + r) // 2)}, {v(Tt + r)}, {v(Tt + r + 1)}")
        return S

    def p2_reads(self, n, dst_fn, tag):
        rg, off = divmod(pc_addr(n) - SLOT0, 65536)
        return [I(f"ds_read_b64_tr_b16 {dst_fn(t, u)}, {v(vP2r[rg][t])} offset:{off + 1024 * u}", tag)
                for t in range(2) for u in range(2)]

    def xres_loads(self):
        return [[I(f"buffer_load_dwordx4 {v(vXr, 4)}, v0, {SRD['x']}, 0 offen", "xres")],
                [I(f"buffer_load_dwordx4 {v(vXr + 4, 4)}, v0, {SRD['x']}, s90 offen", "xres")]]

    def tail_prep(self):
        S = [W("vm", "xres")]
        for d in range(8):
            S += [I(f"v_lshlrev_b32 {v(96 + 2 * d)}, 16, {v(vXr + d)}"), I(f"v_and_b32 {v(97 + 2 * d)}, 0xffff0000, {v(vXr + d)}")]
        for t in range(2):
            for q in range(4):
                S.append(I(f"v_xor_b32 {v(112 + 4 * t + q)}, {128 * t + 32 * q}, v19"))
        S.append(I("v_xor_b32 v21, 16, v20"))
        return S

    def pass1(self, typ):
        o = dict(dict(bkB=[1, 2, 3, 4, 4, 5, 5, 6], s3B=[3, 31]), **self.opt)
        for key in ("bk", "s3"):
            if key + typ in o:
                o[key] = o[key + typ]
        S = [W("vm", "a0"), I("s_barrier")]
        self.stamp(S, "a0")
        S.append(Hold(True))
        r0, r1 = self.reads1(0)
        S += r0 + r1
        ex = Extras()
        ex.add(self.early_ex)
        spread = o.get("spread" + typ, o.get("spread", 0))
        for T in range(32):
            if T == 31:
                S += [W("lg"), I("s_barrier")]
                self.stamp(S, "p1end")
                G = []
                if o.get("bk") is None:
                    for b in range(o.get("bearly", 8), 8):
                        G += self.dma_b(b, typ)
                S.append(Rel(G + [self.dma_w2(n) for n in range(0 if o.get("bk") is None else 14, 22)]))
            elif T % 4 == 3:
                k = (T + 1) // 4
                S += [W("lg")]
                self.stamp(S, f"pre{k}")
                S += [W("vm", f"a{k}"), I("s_barrier")]
                self.stamp(S, f"a{k}")
                G = []
                if k <= 5 and not o.get("x_nodma"):
                    G += self.dma_a(k + 2, typ)
                if o.get("x_halfdma"):
                    G = G[:4]
                if k == o.get("statk", 5 if spread else 4):
                    assert not ex.q
                if typ == "A" and k == (4 if spread else 2):
                    G = [[W("vm", "zst"), I(f"s_mov_b32 {sG}, {WS_ZF}"),
                          I(f"buffer_store_dword {vTag}, v195, {SRD['ws']}, {sG} offen sc1")]] + G
                if k == o.get("statk", 5 if spread else 4):
                    G = [self.stat_loads(typ)] + G
                bk = o.get("bk")
                if bk is None:
                    if k == 5:
                        for b in range(min(3, o.get("bearly", 8))):
                            G += self.dma_b(b, typ)
                    if k == 6:
                        for b in range(3, o.get("bearly", 8)):
                            G += self.dma_b(b, typ)
                else:
                    assert not spread or min(bk) >= 4
                    for b in range(8):
                        if bk[b] == k:
                            G += self.dma_b(b, typ)
                    if k == 6:
                        G += [self.dma_w2(n) for n in range(0, 6)]
                    if k == 7:
                        G += [self.dma_w2(n) for n in range(6, 14)]
                if k == o.get("statk", 5 if spread else 4) + 1:
                    ex.add(self.stat_check(typ))
                if k == 6:
                    ex.add((self.setup_kv() if typ == "A" else []) + self.setup_p2a())
                if k == 7 and o.get("colpos", "a7") == "a7":
                    G.append(self.pf_w2("col")[1])
                S.append(Rel(G))
            big, sm = self.mfma1(T, typ)
            if o.get("x_nom16") and T != 30:
                sm = []
            dT = o.get("dotT", 32)
            dots = []
            if sm and T < dT:
                for d in range(4):
                    for g in range(2):
                        acc = v(vDs[g])
                        dots.append(I(f"v_dot2_f32_bf16 {acc}, {v(vWf[0][g] + d)}, {v(vNE + 1)}, {'0' if (T == 0 and d == 0) else acc}"))
                sm = []
            elif sm and T == dT + (dT & 1) and dT:
                sm = [I(m.t.rsplit(",", 1)[0] + ", 0") for m in sm]
            if T == 31:
                S += [big[0]] + self.cs_read(vCs[:2]) + [Slot(0), big[1], W("lg", "cs")] + self.aug_v(vCs[0], vWa[0]) + \
                    [big[2]] + self.aug_v(vCs[1], vWa[1]) + [big[3], Slot(0)]
                S += self.aug_m(vWa[0], [vAcc1(0, 0), vAcc1(0, 1)], typ == "A") + self.aug_m(vWa[1], [vAcc1(1, 0), vAcc1(1, 1)], typ == "A")
                continue
            r0, r1 = self.reads1(T + 1)
            if T == 30:
                fin = []
                if dT:
                    for g in range(2):
                        fin += [I(f"v_mov_b32 {v(vCs[g] + 1)}, {v(vDs[g])}")]
                    for g in range(2):
                        fin += [I(f"v_permlane32_swap_b32 {v(vCs[g] + 1)}, {v(vDs[g])}")]
                    for g in range(2):
                        if dots:
                            fin += [I(f"v_add_f32 {v(vCs[g])}, {v(vCs[g] + 1)}, {v(vDs[g])}")]
                        else:
                            fin += [I(f"v_add_f32 {v(vDs[g])}, {v(vCs[g] + 1)}, {v(vDs[g])}"), I(f"v_add_f32 {v(vCs[g])}, {v(vCs[g])}, {v(vDs[g])}")]
                S += [W("lg", f"r{T}c")] + sm + dots + [big[0]] + r0 + ex.take(2) + [big[1]] + r1 + [I("s_nop 0")] * bool(dots) + fin + \
                    [big[2]] + self.cs_write(vCs[:2]) + ex.take(3) + [big[3]] + ex.take(1000)
                continue
            busy = T < 27
            if o.get("x_pad") and T in range(*o.get("x_padr", (0, 32))):
                S += [I("s_nop 7")] * o["x_pad"]
            S += [W("lg", f"r{T}a"), big[0]] + r0 + ([Slot(0)] if T < 3 else [])
            n1, n3 = o.get("exn", (8, 10)) if (spread and T < 19) else ((3, 3) if busy else (5, 5))
            S += [W("lg", f"r{T}b"), big[1], Slot(0)] + ex.take(n1)
            S += sm[:1] + [W("lg", f"r{T}c"), big[2]] + r1 + ([Slot(0, True)] if (T >= 3 and not ((T & 1) == 0 and T in range(*o.get("s3", (0, 0))))) else [Slot(0)])
            S += [big[3], Slot(0)] + ex.take(n3) + sm[1:] + dots
        S += [Hold(False), Pace(o.get("pace2" + typ, o.get("pace2", 80)))]
        return S

    def pass2(self, typ, mid=None, extra=None):
        o = dict(self.opt)
        if "p2s2" + typ in o:
            o["p2s2"] = o["p2s2" + typ]
        bw = 4 if o.get("bswap", 0) else 0
        S = [W("vm", f"b{bw}s"), W("vm", "c0"), I("s_barrier"), Hold(True)]
        self.stamp(S, "w0")
        S += self.reads2(0) + self.reads2(1)
        wr = {k + 1: k for k in range(21)}
        ex = Extras()
        ex.add(extra or [])
        ex.add(self.setup_p2b())
        gap = o.get("gap2", 40)
        for T in range(32):
            if T in P2BAR and T < 31:
                S += [W("lg")]
                self.stamp(S, f"u{T}")
                S += [W("vm", f"b{min(7, (T + 2) // 4 + bw)}s"), W("vm", f"c{min(T + 2, 20)}"), I("s_barrier")]
                self.stamp(S, f"w{T}")
                S.append(Rel([self.dma_w2(n) for n in P2REL[T]]))
            if mid and T in mid:
                S.append(Rel([mid[T]], front=True))
            big, sm = self.mfma2(T)
            if T == 31:
                S += [W("lg"), I("s_barrier")]
                self.stamp(S, "p2end")
                S += [big[0]] + self.cs_read(vCs[2:]) + [Slot(0), big[1], W("lg", "cs")] + self.aug_v(vCs[2], vWa[2])
                S += self.aug_m(vWa[2], [vAcc2(0), vAcc2(1)], False)
                continue
            rd = self.reads2(T + 2) if T < 30 else self.cs_write(vCs[2:])
            wq = self.p2_reads(wr[T], lambda t, u: a(8 * wr[T] + 4 * t + 2 * u, 2), "wreg") if T in wr else []
            S += [W("lg", f"q{T}"), big[0]] + rd + (wq[:1] if wq else ex.take(2)) + [big[1], Slot(gap)] + (wq[1:] if wq else ex.take(3))
            if T == 29:
                S += [W("lg", "q30"), self.mfma2(30)[1]]
            elif T == 30:
                S += ex.take(1000)
            elif (T & 1) == 0:
                S += [sm] + ([Slot(0)] if (o.get("p2s2", 4) and T % o.get("p2s2", 4) == 0) else ex.take(1))
        S += [Hold(False), Pace(o.get("pace4" + typ, o.get("pace4", 80)))]
        return S

    def tail_groups(self):
        return ([] if self.opt.get("xfront", 1) else self.xres_loads()) + [self.dma_w2(n) for n in P2REL[31]]

    def act_ld(self, n):
        kind, T = ORDER[n]
        T = T if kind == "f" else 48 + T
        return [I(f"s_add_u32 {sG}, {sAct2}, {(T * 2048) << self.fs}"),
                I(f"buffer_load_dwordx4 {act_reg(n)}, {self.vact}, {SRD['ws']}, {sG} offen sc1", f"x{n}")]

    def early_act(self):
        S = [Hold(True)] + self.poll_check(sPB, vP16, vPoll, "bpoll", dual=True) + [Hold(False)]
        self.stamp(S, "actok")
        xf = self.opt.get("xfront", 1)
        S.append(Rel((self.xres_loads() if xf else []) + [self.act_ld(n) for n in range(self.opt.get("R", 12))], front=bool(xf)))
        return S

    def path_a(self):
        o = self.opt
        S = []
        e = lambda t, tag=None: S.append(I(t, tag))
        S += self.head("A")
        S += self.pass1("A")
        PK, PV = 128, 144
        C0, C1 = 64, 80
        S.append(W("lg"))
        for gg in range(2):
            S += self.phi(vAcc1(0, gg), PK + 8 * gg, lambda r, gg=gg: (v(vRsA[gg] + r, 2), 0, 1))
        for gg in range(2):
            acc = vAcc1(1, gg)
            for r in range(0, 16, 2):
                e(f"v_pk_mul_f32 {v(acc + r, 2)}, {v(acc + r, 2)}, {v(vRsA[gg] + r, 2)}")
            for r in range(0, 16, 2):
                e(f"v_cvt_pk_bf16_f32 {v(PV + 8 * gg + r // 2)}, {v(acc + r)}, {v(acc + r + 1)}")
        for f in range(4):
            e(f"v_mfma_f32_32x32x16_bf16 {v(C0, 16)}, {v(PK + 4 * f, 4)}, {v(PV + 4 * f, 4)}, {'0' if f == 0 else v(C0, 16)}")
        M, Z = 100, 108
        for r in range(16):
            e(f"v_dot2_f32_bf16 {v(Z + (r & 1))}, {v(PK + r)}, {v(vNE + 1)}, {'0' if r < 2 else v(Z + (r & 1))}")
        e("s_nop 2")
        e(f"v_add_f32 {v(Z)}, {v(Z)}, {v(Z + 1)}")
        e(f"v_mov_b32 {v(Z + 1)}, {v(Z)}")
        e(f"v_permlane32_swap_b32 {v(Z + 1)}, {v(Z)}")
        e(f"v_add_f32 {v(Z)}, {v(Z)}, {v(Z + 1)}")
        e(f"ds_write_b32 v166, {v(Z)} offset:3072")
        SD, KP = 116, 120
        for r in range(8):
            e(f"v_cndmask_b32 {v(M + r)}, {v(C0 + 8 + r)}, {v(C0 + r)}, {sSET0}")
        for r in range(4):
            e(f"v_cndmask_b32 {v(SD + r)}, {v(M + 4 + r)}, {v(M + r)}, {sRHM}")
        e(f"ds_write_b128 v165, {v(SD, 4)} offset:{SC_KV}")
        for r in range(4):
            e(f"v_cndmask_b32 {v(KP + r)}, {v(M + r)}, {v(M + 4 + r)}, {sRHM}")
        e("v_xor_b32 v165, 1024, v165")
        S += [W("lg"), I("s_barrier"), Hold(True)]
        e(f"ds_read_b128 {v(124, 4)}, v165 offset:{SC_KV}")
        e(f"ds_read_b32 {v(Z + 1)}, {vStA} offset:3072")
        S += [Slot(0), W("lg")]
        for r in range(4):
            e(f"v_add_f32 {v(KP + r)}, {v(KP + r)}, {v(124 + r)}")
            e(f"buffer_atomic_add_f32 {v(KP + r)}, {vL4}, {SRD['ws']}, {sM1} offen offset:{256 * r}", "kvat")
        e(f"v_add_f32 {v(Z)}, {v(Z)}, {v(Z + 1)}")
        e(f"buffer_atomic_add_f32 {v(Z)}, {v(vZf)}, {SRD['ws']}, {sKV} offen offset:2048", "kvat")
        S.append(Hold(False))
        self.stamp(S, "epi1")
        KV, ZZ, PQ = 96, 104, 112
        kT = o.get("kvpollT", 24)
        za = [I(f"v_bfe_u32 v64, {vLane}, 4, 1"), I("v_xor_b32 v64, 1, v64"), I(f"v_lshrrev_b32 v66, 5, {vLane}"),
              I("v_lshlrev_b32 v64, 6, v64"), I("v_lshl_add_u32 v64, v66, 5, v64")]
        ld = [I(f"buffer_load_dword {v(KV + r)}, {vL4}, {SRD['ws']}, {sKV} offen offset:{256 * r} sc1", "kvld") for r in range(8)] + \
             [I(f"buffer_load_dwordx4 {v(ZZ + 4 * k, 4)}, v64, {SRD['ws']}, {sKV} offen offset:{2048 + 16 * k} sc1", "kvld") for k in range(2)]
        chk = self.poll_check(sPKV, v(vP32), "v65", "kvpoll")
        self.stamp(chk, "kvok")
        post = o.get("kvpost", 2)
        mid = {o.get("kvflagT", 7): self.flag("kvat", sFKV),
               (o.get("kvpollT", 26 + 2 * post) if post else kT): [self.poll_issue(sPKV, v(vP32), "v65", "kvpoll")]}
        if not post:
            mid[o.get("kvchkT", 29)] = chk + ld
        S += self.pass2("A", mid=mid, extra=za)
        if post == 1:
            S += [Hold(True)] + chk + ld + [Hold(False)]
        S.append(Rel(self.tail_groups()))
        KP_, ZP, F0, F1 = 64, 68, 72, 76
        fb = [W("vm", "kvld")]
        for r in range(4):
            fb.append(I(f"v_cvt_pk_bf16_f32 {v(KP_ + r)}, {v(KV + 2 * r)}, {v(KV + 2 * r + 1)}"))
            fb.append(I(f"v_cvt_pk_bf16_f32 {v(ZP + r)}, {v(ZZ + 2 * r)}, {v(ZZ + 2 * r + 1)}"))
        for r in range(4):
            fb.append(I(f"v_cndmask_b32 {v(F0 + r)}, {v(ZP + r)}, {v(KP_ + r)}, {sSET0}"))
            fb.append(I(f"v_cndmask_b32 {v(F1 + r)}, {v(KP_ + r)}, {v(ZP + r)}, {sSET0}"))
        if not post:
            S += fb
        e(f"s_lshl_b32 {sD}, {sP}, 1")
        e(f"s_add_u32 {sD}, {sD}, {sCH}")
        e(f"s_lshl_b32 {sD}, {sD}, {11 + self.fs}")
        e(f"s_add_u32 {sD}, {sD}, {sActB}")
        e(f"s_add_u32 {sD}, {sD}, {(96 * 1024) << self.fs}")
        D = [190, 206, 128, 144]

        def omf(gg):
            return [I(f"v_mfma_f32_32x32x16_bf16 {v(D[2 * gg + hd], 16)}, {v((F0, F1)[hd], 4)}, {v(PQ + 8 * gg + 4 * hd, 4)}, 0") for hd in range(2)]

        def ofin(gg):
            for hd in range(2):
                d = D[2 * gg + hd]
                num, den = (d, d + 8) if hd == 0 else (d + 8, d)
                po = 80 + 4 * (2 * gg + hd)
                e(f"v_add_f32 {v(den)}, {v(vEL)}, {v(den)}")
                e(f"v_rcp_f32 {v(den)}, {v(den)}")
                for r in range(0, 8, 2):
                    e(f"v_pk_mul_f32 {v(num + r, 2)}, {v(num + r, 2)}, {v(den, 2)} op_sel_hi:[1,0]")
                for r in range(0, 8, 2):
                    e(f"v_cvt_pk_bf16_f32 {v(po + r // 2)}, {v(num + r)}, {v(num + r + 1)}")
                off = f" offset:{1024 << self.fs}" if hd else ""
                e(f"buffer_store_dwordx4 {v(po, 4)}, {self.vact}, {SRD['ws']}, {sD} offen{off} {self.opt.get('staux', 'sc1')}", "ost")
        S += [self.poll_issue(sPB, vP16, vPoll, "bpoll", dual=True)] + self.phi(vAcc2(0), PQ, lambda r: (v(vRs[0], 2), 0, 0))
        if post == 2:
            S += [Hold(True)] + chk + ld + [Hold(False)]
        if post:
            S += self.early_act() + self.phi(vAcc2(1), PQ + 8, lambda r: (v(vRs[1], 2), 0, 0)) + fb + omf(0) + omf(1)
        else:
            S += omf(0) + self.early_act() + self.phi(vAcc2(1), PQ + 8, lambda r: (v(vRs[1], 2), 0, 0)) + omf(1)
        ofin(0)
        e(f"s_add_u32 {sD}, {sD}, {131072 << self.fs}")
        ofin(1)
        self.stamp(S, "epi2")
        S += self.phase2("ost", sFO)
        return S

    def path_b(self):
        o = self.opt
        S = []
        e = lambda t, tag=None: S.append(I(t, tag))
        S += self.head("B")
        S += self.pass1("B")
        for g in range(2):
            for gg in range(2):
                S += self.mish(vAcc1(g, gg), gg, (sT0, sT1)[g])
        self.stamp(S, "epi1")
        S += self.pass2("B", mid={o.get("actflagT", 12): self.flag("actst", sFAct, True)})
        S.append(Rel(self.tail_groups()))
        S += [self.poll_issue(sPB, vP16, vPoll, "bpoll", dual=True)] + self.mish(vAcc2(0), 0, sT2) + self.early_act() + self.mish(vAcc2(1), 1, sT2)
        self.stamp(S, "epi2")
        S += self.phase2("actst", sFAct2)
        return S

    def phase2(self, sttag, sflag):
        o = self.opt
        S = []
        e = lambda t, tag=None: S.append(I(t, tag))
        R = o.get("R", 12)
        S += [FlushTo(f"x{R - 1}") if o.get("xfront", 1) else Flush(), Hold(True)]
        ld = self.act_ld
        S += ld(R)[:1]
        tp = Extras()
        tp.add(self.tail_prep())
        frag = lambda n: (lambda t, u: v(32 + 8 * (n & 3) + 4 * t + 2 * u, 2))
        back = o.get("pollback", 8)
        dA, dO = o.get("late", (0, 0))
        issue = {}
        for m in range(R, 59):
            st = m - R
            if m >= NA:
                st = max(st, NA - R + dO + (m - NA) // 2)
            elif m >= NB:
                st = max(st, NB - R + dA + (m - NB) // 2)
            issue[m] = st
        at = lambda n: [m for m in range(R, 59) if issue[m] == n]
        for n in range(59):
            m = n + R
            if n == NREGW - 2 or n == 44:
                S += [W("vm", "c46" if n < 44 else "c58"), I("s_barrier")]
            if n == issue[NB] - back:
                S.append(self.poll_issue(sPA, vP16, vPoll, "apoll", dual=True))
            if n == max(issue[NA] - back, issue[NB] + 1):
                S.append(self.poll_issue(sPO, vP16, vPoll, "opoll", dual=True))
            self.stamp(S, f"s{n}")
            if n == issue[NB]:
                self.stamp(S, "apre")
                S += self.poll_check(sPA, vP16, vPoll, "apoll", dual=True)
                self.stamp(S, "aok")
            if n == issue[NA]:
                self.stamp(S, "opre")
                S += self.poll_check(sPO, vP16, vPoll, "opoll", dual=True)
                self.stamp(S, "ook")
            S.append(W("vm", f"x{n}"))
            if n == o.get("flagstep", self.flagstep[sttag]):
                S += self.flag(sttag, sflag, True)
            if n >= NREGW:
                S.append(W("lg", f"w{n}"))
            if n == 57 and o.get("tail2", 1):
                mm = lambda k, tt: I(f"v_mfma_f32_32x32x16_bf16 {v(vAo[tt], 16)}, {v(32 + 8 * (k & 3) + 4 * tt, 4)}, {act_reg(k)}, {v(vAo[tt], 16)}")
                S += [mm(57, 1), W("vm", "x58"), W("lg", "w58"), mm(58, 1), mm(57, 0), mm(58, 0)]
                break
            for t in range(2):
                wf = a(8 * n + 4 * t, 4) if n < NREGW else v(32 + 8 * (n & 3) + 4 * t, 4)
                tt = 1 - t
                wf = a(8 * n + 4 * tt, 4) if n < NREGW else v(32 + 8 * (n & 3) + 4 * tt, 4)
                acc = v(vAo[tt], 16)
                e(f"v_mfma_f32_32x32x16_bf16 {acc}, {wf}, {act_reg(n)}, {'0' if n == 0 else acc}")
                q = at(n)
                if t < len(q):
                    S += ld(q[t])[1:] + (ld(q[t] + 1)[:1] if q[t] < 58 else [])
                elif t == 1:
                    S.append(Slot(0))
                if 8 <= n < NREGW - 2:
                    S += tp.take(2)
                if NREGW - 2 <= n < 57:
                    S += self.p2_reads(n + 2, frag(n + 2), f"w{n + 2}")[2 * t:2 * t + 2]
            if n == issue[58] + 1:
                e(f"s_or_b32 {sA}, s2, {sW}")
                e(f"s_cmp_eq_u32 {sA}, 0")
                e(f"s_cselect_b32 {sA}, 0, {OOB}")
                e(f"v_or_b32 v16, {sA}, {vL0}")
                e(f"buffer_store_dword {vTag}, v16, {SRD['ws']}, 0 offen offset:{WS_E}")
        self.stamp(S, "gemm2")
        assert not tp.q
        for t in (1, 0):
            for q in range(4):
                e(f"ds_write_b128 {v(112 + 4 * t + q)}, {v(vAo[t] + 4 * q, 4)}")
        S += [W("lg"), I("s_barrier")]
        for g in range(2):
            for src in range(2):
                for ee in range(2):
                    e(f"ds_read_b128 {v(128 + 16 * g + 8 * src + 4 * ee, 4)}, v{20 + ee} offset:{2048 * g + 16384 * src}", f"f{g}")
        for g in range(2):
            S.append(W("lg", f"f{g}"))
            b = 128 + 16 * g
            for r in range(0, 8, 2):
                e(f"v_pk_add_f32 {v(b + r, 2)}, {v(b + r, 2)}, {v(b + 8 + r, 2)}")
            for r in range(0, 8, 2):
                e(f"v_pk_add_f32 {v(b + r, 2)}, {v(b + r, 2)}, {v(96 + 8 * g + r, 2)}")
            for r in range(0, 8, 2):
                e(f"v_cvt_pk_bf16_f32 {v(120 + 4 * g + r // 2)}, {v(b + r)}, {v(b + r + 1)}")
            e(f"buffer_store_dwordx4 {v(120 + 4 * g, 4)}, v0, {SRD['out']}, {'s90' if g else '0'} offen")
        if o.get("stamps"):
            S.append(W("vm"))
            self.stamp(S, "end")
            pr = o.get("probe")
            if o.get("xprobe"):
                lp = self.label("probe")
                e(f"s_getreg_b32 {sA}, hwreg(HW_REG_XCC_ID, 0, 4)")
                e(f"s_sub_u32 {sA}, {sA}, s2")
                e(f"s_and_b32 {sA}, {sA}, 7")
                if o["xprobe"] == 2:
                    e(f"s_sub_u32 {sA}, 7, {sA}")
                e(f"s_mul_i32 {sA}, {sA}, 500")
                e(f"v_readlane_b32 {sC}, v179, {1 + self.allnames.index('end')}")
                e(f"{lp}:")
                e("s_memrealtime s[98:99]")
                e("s_waitcnt lgkmcnt(0)")
                e(f"s_sub_u32 {sB}, s98, {sC}")
                e(f"s_cmp_lt_u32 {sB}, {sA}")
                e(f"s_cbranch_scc1 {lp}")
            if pr:
                lp = self.label("probe")
                e(f"v_readlane_b32 {sA}, v179, {1 + self.allnames.index(pr)}")
                e(f"v_readlane_b32 {sC}, v179, {1 + self.allnames.index('end')}")
                e(f"s_sub_u32 {sA}, {sA}, s100")
                e(f"s_mul_i32 {sA}, {sA}, {o.get('mult', 4)}")
                e(f"{lp}:")
                e("s_memrealtime s[98:99]")
                e("s_waitcnt lgkmcnt(0)")
                e(f"s_sub_u32 {sB}, s98, {sC}")
                e(f"s_cmp_lt_u32 {sB}, {sA}")
                e(f"s_cbranch_scc1 {lp}")
            e(f"s_lshl_b32 {sA}, s2, 2")
            e(f"s_add_u32 {sA}, {sA}, {sW}")
            e(f"s_lshl_b32 {sA}, {sA}, 7")
            e(f"s_add_u32 {sA}, {sA}, {WS_STAMP}")
            e(f"v_cmp_gt_u32 vcc, 32, {vLane}")
            e(f"v_mov_b32 v21, {OOB}")
            e(f"v_cndmask_b32 v21, v21, {vL4}, vcc")
            e(f"buffer_store_dword v179, v21, {SRD['ws']}, {sA} offen")
        e("s_endpgm")
        return S

    def build(self):
        self.flagstep = {"actst": 0, "ost": 0}
        for path, tag in ((self.path_a, "ost"), (self.path_b, "actst")):
            seq = [it for it in schedule(self.prologue() + path())[0] if isinstance(it, I)]
            last = max(n for n, it in enumerate(seq) if it.tag == tag)
            self.flagstep[tag] = sum(1 for it in seq[:last] if it.tag and it.tag[0] == "x" and it.tag[1:].isdigit())
        self.slow = []
        self.uid = 0
        pro = self.prologue()
        A = self.path_a()
        B = self.path_b()
        la, pka, na, ea = finalize2(pro + A)
        lb, pkb, nb, eb = finalize2(pro + B)
        npro = len(finalize2(pro)[0])
        assert la[:npro] == lb[:npro]
        body = la + ["L_typeB:"] + lb[npro:] + self.slow + ["L_end:", "s_endpgm", "L_codeend:"]
        self.info = dict(peakA=pka, peakB=pkb, nopsA=na, nopsB=nb, nA=len(la), nB=len(lb), est=(ea, eb), fs=self.flagstep)
        hdr = open("cdna_kernels/" + NAME + ".s.ref").read().split("; Override launch")[0]
        txt = hdr + """; One persistent launch, 256 workgroups (one per CU) of 4 waves; emitted by a generator script.
; Phase 1: workgroup (i, j) multiplies the raw rows 128 i .. 128 i + 127 of x with 192 weight columns (even j: k, v, q of
;   four heads; odd j: six 32-column tiles of w1). LayerNorm is folded in: row mean / sqrt(var + eps) are computed for 8 rows
;   per workgroup and exchanged through d_ws, the mean (and the bias) enters as one extra MFMA step against the column sums
;   of the weights, the scale is applied in the epilogues. phi(k)^T v and sum(phi(k)) are summed over the row blocks with
;   float atomics in d_ws; o and Mish(h) go to d_ws as bf16 MFMA fragments.
; Phase 2: workgroup computes a 64 x 64 tile of x + [Mish(h) | o] [w2 ; wo]; its weights are staged in LDS / registers early.
; Hand-offs: write-through stores, then a flag carrying a tag that is new in every launch (derived from a word of d_ws that
;   workgroup 0 advances); flags inside a row block have a plain twin that is only a shortcut when both sides share an L2.
"""
        txt += "; @launch grid=(256,1,1) block=(256,1,1) lds=163840\n"
        txt += f'.amdgcn_target "amdgcn-amd-amdhsa--gfx950"\n.text\n.globl {NAME}_kernel\n.p2align 8\n.type {NAME}_kernel,@function\n{NAME}_kernel:\n'
        txt += "\n".join(("" if l.endswith(":") else "    ") + l for l in body) + "\n"
        txt += f""".section .rodata,"a"
.p2align 6
.amdhsa_kernel {NAME}_kernel
  .amdhsa_next_free_vgpr 512
  .amdhsa_next_free_sgpr 102
  .amdhsa_accum_offset 256
  .amdhsa_group_segment_fixed_size 0
  .amdhsa_kernarg_size 80
  .amdhsa_user_sgpr_count 2
  .amdhsa_user_sgpr_kernarg_segment_ptr 1
  .amdhsa_system_sgpr_workgroup_id_x 1
  .amdhsa_float_denorm_mode_32 3
.end_amdhsa_kernel
"""
        return txt


def generate(**opt):
    global WS_ACT, WS_BYTES
    WS_ACT = opt.get("actoff", 0x100000)
    WS_BYTES = max(0x2000000, WS_ACT + 0x1100000)
    KARG["ws"] = (72, WS_BYTES)
    g = Gen(opt)
    t = g.build()
    return t, g


if __name__ == "__main__":
    t, g = generate()
    out = sys.argv[1] if len(sys.argv) > 1 else "cdna_kernels/" + NAME + ".s"
    open(out, "w").write(t)
    print(g.info, len(t))
```

```python
import sys; sys.path.insert(0, "dev")
from h import *
def gen(nper, groups=16):
    L = []; e = L.append
    e("s_cmp_ge_u32 s2, 256"); e("s_cbranch_scc1 L_end")
    e("s_load_dwordx2 s[10:11], s[0:1], 72"); e("s_load_dwordx2 s[8:9], s[0:1], 48")
    e("v_lshrrev_b32 v1, 6, v0"); e("s_nop 0"); e("v_readfirstlane_b32 s3, v1")
    e("v_and_b32 v2, 63, v0")
    for r in range(8, 100): e(f"v_mov_b32 v{r}, 0.5")
    e("s_waitcnt lgkmcnt(0)")
    e("s_mov_b32 s32, s10"); e("s_and_b32 s33, s11, 0xffff"); e(f"s_mov_b32 s34, {1<<26}"); e("s_mov_b32 s35, 0x20000")
    e("s_mov_b32 s20, s8"); e("s_and_b32 s21, s9, 0xffff"); e(f"s_mov_b32 s22, {1376*1024}"); e("s_mov_b32 s23, 0x20000")
    e("s_lshr_b32 s13, s2, 3"); e("s_lshl_b32 s14, s13, 2"); e("s_add_u32 s14, s14, s3"); e("s_lshl_b32 s14, s14, 8")
    e("s_add_u32 s24, s8, s14"); e("s_addc_u32 s25, s9, 0")
    e("s_and_b32 s13, s13, 7"); e("s_lshl_b32 s13, s13, 7"); e("v_lshrrev_b32 v3, 3, v2"); e("s_lshl_b32 s14, s3, 3"); e("v_add_u32 v3, s14, v3"); e("v_lshlrev_b32 v3, 10, v3")
    e("v_and_b32 v4, 7, v2"); e("v_lshl_add_u32 v3, v4, 4, v3"); e("v_add_u32 v3, s13, v3"); e("s_lshl_b32 s15, s3, 10")
    e("s_barrier"); e("s_memtime s[40:41]"); e("s_waitcnt lgkmcnt(0)")
    n = 0
    for u in range(groups):
        ins = [f"v_pk_mul_f32 v[{20+r}:{21+r}], v[{8+r}:{9+r}], v[40:41]" for r in (0, 2, 4, 6)] + [f"v_exp_f32 v{30+r}, v{20+r}" for r in range(8)] + [f"v_pk_add_f32 v[{50+r}:{51+r}], v[{30+r}:{31+r}], v[40:41]" for r in (0, 2, 4, 6)]
        for k, t in enumerate(ins):
            e(t)
            if 4 <= k < 4 + nper:
                e(f"s_load_dword s{60 + n % 30}, s[24:25], {(n // 2) * 32768 + (n & 1) * 128}"); n += 1
    e("s_memtime s[42:43]"); e("s_waitcnt lgkmcnt(0)"); e("s_memtime s[44:45]"); e("s_barrier")
    for i in range(32):
        if i >= 12: e("s_waitcnt vmcnt(11)")
        e(f"s_add_u32 m0, s15, {i * 4096}"); e(f"s_mov_b32 s16, {i * 32768}"); e("buffer_load_dwordx4 v3, s[20:23], s16 offen lds")
    e("s_waitcnt vmcnt(0)"); e("s_memtime s[46:47]"); e("s_waitcnt lgkmcnt(0)")
    e("s_cmp_lg_u32 s3, 0"); e("s_cbranch_scc1 L_end")
    e("s_lshl_b32 s17, s2, 6"); e("v_mov_b32 v200, s17")
    e("s_sub_u32 s46, s46, s44"); e("s_sub_u32 s44, s44, s42"); e("s_sub_u32 s42, s42, s40")
    for k, r in enumerate((42, 44, 46)):
        e(f"v_mov_b32 v201, s{r}"); e(f"buffer_store_dword v201, v200, s[32:35], 0 offen offset:{4*k}")
    e("L_end:")
    return wrap("\n".join(L) + "\n", block=256, vg=512, acc=256)
if len(sys.argv) > 1:
    co = build(gen(4), 'chk'); print(CL.address_register_problem(co, NAME+'_kernel')); raise SystemExit
env = Env()
for nper in (0, 1, 2, 4):
    k = Kern(gen(nper), f"mb21_{nper}")
    r = []
    for it in range(7):
        env.reset(cold=True); k.launch(env); env.sync(); env.memset(env.flushbuf, 2, 64 << 20); env.sync()
        k.launch(env); env.sync()
        st = env.read(env.ws, np.uint32, 256 * 16).reshape(256, 16).astype(np.int64)
        r.append(np.median(st[:, :3], axis=0))
    r = np.median(np.array(r), axis=0)
    print(f"{nper * 16:3d} s_loads per wave: VALU part {r[0]:.0f} cyc, drain {r[1]:.0f}, then 32 DMA per wave in {r[2]:.0f} cyc")
```
